```python
import torch

def _softmax(x, axis=-1):
    return torch.softmax(x, dim=axis)
def _gelu(x):
    return torch.nn.functional.gelu(x, approximate="tanh")
def _silu(x):
    return torch.nn.functional.silu(x)
def _sigmoid(x):
    return torch.sigmoid(x)
def _layernorm(x, axis=-1, eps=1e-5):
    m = x.mean(dim=axis, keepdim=True)
    v = x.var(dim=axis, keepdim=True, unbiased=False)
    return (x - m) / torch.sqrt(v + eps)
def _scatter_add(tgt, idx, src, axis=0):
    return tgt.clone().index_add_(axis, idx, src)
def _segment_sum(src, seg, n):
    out = torch.zeros((n,) + src.shape[1:], dtype=src.dtype)
    return out.index_add_(0, seg, src)
def _pad(x, pw):
    flat = tuple(v for pair in reversed(pw) for v in pair)
    return torch.nn.functional.pad(x, flat)

kernel_name = 'gated_mix__softmax_full_mha__dense_activation_squared_relu__prompt'

def setup_inputs():

    _w = (lambda a: (lambda t: t.to(torch.bfloat16) if t.is_floating_point() else t)(torch.as_tensor(a)))
    def _A_setup():
        B, S, D = 1, 2048, 640
        return {
            "x": _w((lambda *s: torch.randn(*s, dtype=torch.bfloat16) * 0.05)(B, S, D)),
            "wqkv": _w((lambda *s: torch.randn(*s, dtype=torch.bfloat16) * 0.8)(D, 3 * D)),
            "wo": _w((lambda *s: torch.randn(*s, dtype=torch.bfloat16) * 0.1)(D, D)),
        }
    _A_in = _A_setup()

    def _B_setup():
        B, S, D, F = 1, 2048, 640, 1536
        return {
            "x": _w((lambda *s: torch.randn(*s, dtype=torch.bfloat16) * 0.05)(B, S, D)),
            "w1": _w((lambda *s: torch.randn(*s, dtype=torch.bfloat16) * 0.1)(D, F)),
            "b1": _w((lambda *s: torch.randn(*s, dtype=torch.bfloat16) * 0.1)(F)),
            "w2": _w((lambda *s: torch.randn(*s, dtype=torch.bfloat16) * 0.1)(F, D)),
            "b2": _w((lambda *s: torch.randn(*s, dtype=torch.bfloat16) * 0.05)(D)),
        }
    _B_in = _B_setup()

    return {
        "A_x": _A_in["x"],
        "A_wqkv": _A_in["wqkv"],
        "A_wo": _A_in["wo"],
        "B_x": _B_in["x"],
        "B_w1": _B_in["w1"],
        "B_b1": _B_in["b1"],
        "B_w2": _B_in["w2"],
        "B_b2": _B_in["b2"],
        "gate_w": _w((lambda *s: torch.randn(*s, dtype=torch.bfloat16) * 0.05)(640) * 16.0),
    }

def reference(A_x, A_wqkv, A_wo, B_x, B_w1, B_b1, B_w2, B_b2, gate_w):
    def _A_ref(x, wqkv, wo):
        B, S, D = x.shape
        H = 32; Dh = D // H
        qkv = (lambda x, *d: x.permute(*d))((x @ wqkv).reshape(B, S, 3, H, Dh), 2, 0, 3, 1, 4)
        q, k, v = qkv[0], qkv[1], qkv[2]
        scale = Dh ** -0.5
        scores = torch.einsum("bhqd,bhkd->bhqk", q, k) * scale
        p = _softmax(scores, axis=-1)
        o = torch.einsum("bhqk,bhkd->bhqd", p, v)
        return (lambda x, *d: x.permute(*d))(o, 0, 2, 1, 3).reshape(B, S, D) @ wo

    def _B_ref(x, w1, b1, w2, b2):
        h = torch.einsum("bsd,df->bsf", x, w1) + b1
        zero = torch.zeros_like(h)
        r = torch.where(h > zero, h, zero)
        h = r * r
        out = torch.einsum("bsf,fd->bsd", h, w2) + b2
        return out

    x = A_x
    g = _sigmoid((x * gate_w).sum(-1, keepdims=True))
    a = _A_ref(x, A_wqkv, A_wo)
    b = _B_ref(x, B_w1, B_b1, B_w2, B_b2)
    return g * a + (1 - g) * b
```

```python
import re

class Asm:
    def __init__(self):
        self.lines = []
        self.vm = []
        self.lg = []
        self.uid = 0
    def __call__(self, s):
        for ln in s.split("\n"):
            ln = ln.strip()
            if ln:
                self.lines.append(ln)
    def c(self, s):
        self.lines.append("; " + s)
    def label(self, name):
        self.lines.append(name + ":")
    def newlabel(self, base):
        self.uid += 1
        return f"L_{base}_{self.uid}"
    def vmem(self, s, tag, definite=True):
        self(s)
        self.vm.append((tag, definite))
    def _vm_n(self, tags):
        if isinstance(tags, str): tags = [tags]
        last = -1
        for i, (t, d) in enumerate(self.vm):
            if t in tags: last = i
        if last < 0: return None
        return sum(1 for (t, d) in self.vm[last+1:] if d), last
    def wait_vm(self, tags, lg0=False):
        r = self._vm_n(tags)
        parts = []
        if r is not None:
            n, last = r
            assert n <= 63, n
            parts.append(f"vmcnt({n})")
            self.vm = self.vm[last+1:]
        if lg0:
            parts.append("lgkmcnt(0)")
            self.lg = []
        if parts:
            self("s_waitcnt " + " ".join(parts))
    def vm_all(self):
        self("s_waitcnt vmcnt(0)")
        self.vm = []
    def ds(self, s, tag):
        self(s)
        self.lg.append(tag)
    def wait_lg(self, tags):
        if isinstance(tags, str): tags = [tags]
        last = -1
        for i, t in enumerate(self.lg):
            if t in tags: last = i
        if last < 0: return
        n = len(self.lg) - last - 1
        if n > 15:
            n = 15
            last = len(self.lg) - 16
        self(f"s_waitcnt lgkmcnt({n})")
        self.lg = self.lg[last+1:]
    def lg_all(self):
        self("s_waitcnt lgkmcnt(0)")
        self.lg = []
    def text(self):
        out = []
        for ln in self.lines:
            if ln.endswith(":") or ln.startswith(".") or ln.startswith(";"):
                out.append(ln)
            else:
                out.append("    " + ln)
        return "\n".join(out) + "\n"

_reg = re.compile(r"\b([vsa])(\d+)\b|\b([vsa])\[(\d+):(\d+)\]|\b(vcc|exec|m0|scc)\b")
def regs_of(tok):
    out = set()
    for m in _reg.finditer(tok):
        if m.group(1): out.add(m.group(1) + m.group(2))
        elif m.group(3):
            for i in range(int(m.group(4)), int(m.group(5)) + 1): out.add(m.group(3) + str(i))
        else: out.add(m.group(6))
    return out
TRANS = ("v_exp_f32","v_log_f32","v_rcp_f32","v_rsq_f32","v_sqrt_f32","v_sin_f32","v_cos_f32","v_rcp_iflag_f32","v_exp_f16")
def split_ops(rest):
    ops=[];d=0;cur=""
    for ch in rest:
        if ch=="[": d+=1
        if ch=="]": d-=1
        if ch=="," and d==0: ops.append(cur.strip()); cur=""
        else: cur+=ch
    if cur.strip(): ops.append(cur.strip())
    return ops
def parse(ln):
    ln = ln.split(";")[0].strip()
    if not ln or ln.endswith(":") or ln.startswith("."): return None
    p = ln.split(None,1)
    op = p[0]; rest = p[1] if len(p)>1 else ""
    ops = split_ops(rest)
    I = dict(op=op, text=ln, dst=set(), src=set(), kind="other", srcC=set(), srcAB=set(), data=set())
    if op.startswith("v_mfma"):
        I["kind"]="mfma"; I["dst"]=regs_of(ops[0]); I["srcAB"]=regs_of(ops[1])|regs_of(ops[2]); I["srcC"]=regs_of(ops[3]); I["src"]=I["srcAB"]|I["srcC"]
        I["passes"] = 4 if "16x16" in op else 8
        if "_2b" in op: I["passes"]=16
    elif op.startswith("v_"):
        I["kind"]="valu"
        if op.startswith("v_cmp"):
            I["dst"]=regs_of(ops[0]);
            if op.startswith("v_cmpx"): I["dst"]|={"exec"}
            for o in ops[1:]: I["src"]|=regs_of(o)
        elif op.startswith("v_permlane") and "swap" in op:
            I["dst"]=regs_of(ops[0])|regs_of(ops[1]); I["src"]=set(I["dst"]); I["perm"]=True
        elif op.startswith(("v_add_co","v_sub_co","v_addc_co","v_subb_co")):
            I["dst"]=regs_of(ops[0])|regs_of(ops[1])
            for o in ops[2:]: I["src"]|=regs_of(o)
        else:
            I["dst"]=regs_of(ops[0])
            for o in ops[1:]: I["src"]|=regs_of(o)
            if op.startswith(("v_fmac","v_dot2c","v_pk_fmac")): I["src"]|=I["dst"]
            if op.startswith("v_cndmask") and len(ops)==3: I["src"]|={"vcc"}
        if "dpp" in ln or "row_" in ln or "quad_perm" in ln: I["dpp"]=True; I["src"]|=I["dst"]
        if op.replace("_e32","").replace("_e64","") in TRANS: I["trans"]=True
        if op.startswith(("v_readfirstlane","v_readlane")): I["rdlane"]=True
    elif op.startswith(("buffer_","global_")):
        I["kind"]="vmem"
        isstore = "store" in op or ("atomic" in op)
        islds = re.search(r"\blds\b", ln) is not None
        if op.startswith("buffer_inv") or op.startswith("buffer_wbl2"): return I
        if islds:
            for o in ops: I["src"]|=regs_of(o)
            I["src"]|={"m0"}; I["dma"]=True
        elif isstore:
            for o in ops: I["src"]|=regs_of(o)
            if op.startswith("buffer_"): I["data"]=regs_of(ops[0])
            else: I["data"]=regs_of(ops[1])
            if "x3" in op or "x4" in op: I["wide"]=True
        else:
            I["dst"]=regs_of(ops[0])
            for o in ops[1:]: I["src"]|=regs_of(o)
    elif op.startswith("ds_"):
        I["kind"]="ds"
        if "read" in op or "permute" in op or "swizzle" in op:
            I["dst"]=regs_of(ops[0])
            for o in ops[1:]: I["src"]|=regs_of(o)
        else:
            for o in ops: I["src"]|=regs_of(o)
    elif op.startswith("s_"):
        I["kind"]="salu"
        if op=="s_nop": I["nop"]=int(ops[0],0)+1
        elif op.startswith(("s_waitcnt","s_barrier","s_branch","s_cbranch","s_endpgm","s_setprio","s_sleep","s_cmp")):
            for o in ops: I["src"]|=regs_of(o)
        else:
            if ops: I["dst"]=regs_of(ops[0])
            for o in ops[1:]: I["src"]|=regs_of(o)
    return I

def check_hazards(lines):
    ins=[]
    for idx,ln in enumerate(lines):
        I=parse(ln)
        if I: I["line"]=idx; ins.append(I)
    errs=[]
    for i,B in enumerate(ins):
        dist=0
        for j in range(i-1, max(-1,i-24), -1):
            A=ins[j]
            need=0; why=""
            vd={r for r in A["dst"] if r[0] in "va" and r not in("vcc",)}
            sd={r for r in A["dst"] if r[0]=="s" or r in("vcc","exec","m0")}
            if A["kind"]=="valu":
                if B["kind"]=="mfma" and vd & B["src"]: need,why=2,"valu->mfma"
                if B["kind"]=="mfma" and "exec" in A["dst"]: need,why=4,"valu exec->mfma"
                if A.get("trans") and B["kind"] in("valu",) and not B.get("trans") and vd & B["src"]: need,why=max(need,1),"trans->valu"
                if A.get("trans") and B["kind"]=="valu" and B.get("trans") and vd & B["src"]: need,why=max(need,1),"trans->trans(conservative)"
                if B.get("perm") and vd & B["src"]: need,why=max(need,2),"valu->permlane"
                if B.get("dpp") and vd & B["src"]: need,why=max(need,2),"valu->dpp"
                if B.get("rdlane") and vd & B["src"]: need,why=max(need,1),"valu->readlane"
                if B["kind"]=="vmem" and (sd & B["src"]): need,why=max(need,5),"valu sgpr->vmem"
                if B["kind"]=="valu" and (sd & B["src"]): need,why=max(need,2),"valu sgpr->valu"
                if B["kind"]=="salu" and (sd & B["src"]): need,why=max(need,1),"valu sgpr->salu(cons)"
                if "exec" in A["dst"] and B.get("dpp"): need,why=max(need,5),"valu exec->dpp"
                if "exec" in A["dst"] and (B.get("rdlane") or B.get("perm")): need,why=max(need,4),"valu exec->lane"
            if A["kind"]=="mfma":
                p=A["passes"]
                rd={4:8,8:12,16:20}[p]
                if B["kind"] in("valu","vmem","ds") and (vd & (B["src"]|B["dst"])): need,why=rd,"mfma->valu/mem"
                if B["kind"]=="mfma":
                    if vd & B["srcAB"]: need,why=rd,"mfma->mfma AB"
                    elif vd & B["srcC"]:
                        if not (A["dst"]==B["srcC"] and A["op"]==B["op"]): need,why=max(need,{4:6,8:10,16:18}[p]),"mfma->mfma C overlap"
                    elif vd & B["dst"]: need,why=max(need,{4:6,8:10,16:18}[p]),"mfma->mfma WAW(cons)"
                if B["kind"]=="valu" and (A["srcC"] & B["dst"]): need,why=max(need,{4:3,8:7,16:15}[p]),"mfma C WAR"
            if A["kind"]=="salu" and "m0" in A["dst"] and B.get("dma"): need,why=max(need,1),"m0->dma"
            if A["kind"]=="vmem" and A.get("wide") and (A["data"] & B["dst"]) and B["kind"] in("valu","mfma"): need,why=max(need,2),"store data WAR"
            if need>dist:
                errs.append(f"line {B['line']}: '{B['text']}' needs {need} ws after '{A['text']}' (has {dist}) [{why}]")
            dist += A.get("nop",1)
    return errs
```

```python
import sys, math
from emit import Asm, check_hazards

NAME = "gated_mix__softmax_full_mha__dense_activation_squared_relu__prompt"
QF_OFF = 0
KV_OFF = 2621440
AF_OFF = KV_OFF + 5242880
AF_T = 68 * 1024
WF_OFF = AF_OFF + 128 * AF_T
G_OFF = WF_OFF + 8 * 68 * 5120
FLAG_OFF = G_OFF + 8192
WS_USED = FLAG_OFF + 16384
QSCALE = (20 ** -0.5) * math.log2(math.e)

import struct
def f32hex(x): return "0x%08x" % struct.unpack("<I", struct.pack("<f", x))[0]

S_X, S_WQ, S_W1, S_WS, S_OUT, S_M1, S_M2 = 8, 12, 16, 20, 24, 28, 32
P_WO, P_B1, P_W2, P_B2, P_GW, P_DBG = 36, 38, 40, 42, 44, 46
sWAVE, sM, sJ, sT0, sT1, sT2, sT3, sT4, sT5 = 48, 49, 50, 51, 52, 53, 54, 55, 56
sLDSW, sOffX, sOffW, sScale, sXCD, sLO = 57, 58, 59, 60, 61, 62
sHI = 63
sEXV = 64
sSAVE = 66
def srd(b): return f"s[{b}:{b+3}]"
def vr(b, n=1): return f"v{b}" if n == 1 else f"v[{b}:{b+n-1}]"

def mk_srd(a, base, ptr, size):
    a(f"s_mov_b32 s{base}, s{ptr}")
    a(f"s_mov_b32 s{base+1}, s{ptr+1}")
    a(f"s_mov_b32 s{base+2}, {size}")
    a(f"s_mov_b32 s{base+3}, 0x00020000")

def prologue(a):
    a("s_cmp_ge_u32 s2, 256")
    a("s_cbranch_scc1 L_exit_" + a.kname)
    a("s_load_dwordx16 s[68:83], s[0:1], 0")
    a("s_load_dwordx8 s[84:91], s[0:1], 64")
    a(f"v_lshrrev_b32 v1, 6, v0")
    a(f"s_and_b32 s{sXCD}, s2, 7")
    a(f"v_readfirstlane_b32 s{sWAVE}, v1")
    a(f"s_lshr_b32 s{sLO}, s2, 3")
    a(f"s_and_b32 s{sLO}, s{sLO}, 7")
    a(f"s_lshr_b32 s{sHI}, s2, 6")
    a(f"v_and_b32 v0, 63, v0")
    a("s_waitcnt lgkmcnt(0)")
    mk_srd(a, S_X, 68, 2621440)
    mk_srd(a, S_WQ, 70, 2457600)
    mk_srd(a, S_W1, 76, 1966080)
    mk_srd(a, S_WS, 90, WS_USED)
    mk_srd(a, S_OUT, 86, 2621440)
    for dst, src in ((P_WO, 72), (P_B1, 78), (P_W2, 80), (P_B2, 82), (P_GW, 84), (P_DBG, 88)):
        a(f"s_mov_b64 s[{dst}:{dst+1}], s[{src}:{src+1}]")

XR, ACC, WF = 96, 64, 32
vX0, vX1, vW0, vW1, vU0, vU1, vU2 = 1, 2, 3, 4, 5, 6, 7
vXA = 8
vTA = 10
vTB = 14
vB1 = 18
vT = 24
PP_LDS = 131072

def p1_setup(a):
    t0, t1, t2, t3 = vT, vT+1, vT+2, vT+3
    a.c("---- phase 1 setup")
    a(f"s_and_b32 s{sM}, s{sXCD}, 1")
    a(f"s_lshl_b32 s{sM}, s{sM}, 3")
    a(f"s_add_u32 s{sM}, s{sM}, s{sLO}")
    a(f"s_lshr_b32 s{sJ}, s{sXCD}, 1")
    a(f"s_lshl_b32 s{sJ}, s{sJ}, 2")
    a(f"s_add_u32 s{sJ}, s{sJ}, s{sHI}")
    a(f"s_lshl_b32 s{sLDSW}, s{sWAVE}, 12")
    a(f"s_mul_i32 s{sOffX}, s{sM}, {128*1280}")
    a(f"s_lshl_b32 s{sOffW}, s{sJ}, 8")
    a(f"v_lshrrev_b32 v{t0}, 3, v0")
    a(f"s_lshl_b32 s{sT0}, s{sWAVE}, 4")
    a(f"v_add_u32 v{t0}, s{sT0}, v{t0}")
    a(f"v_mul_u32_u24 v{t0}, 1280, v{t0}")
    a(f"v_and_b32 v{t1}, 7, v0")
    a(f"v_lshrrev_b32 v{t2}, 4, v0")
    a(f"v_xor_b32 v{t1}, v{t1}, v{t2}")
    a(f"v_lshl_add_u32 v{vX0}, v{t1}, 4, v{t0}")
    a(f"v_xor_b32 v{t1}, 4, v{t1}")
    a(f"v_lshl_add_u32 v{vX1}, v{t1}, 4, v{t0}")
    a(f"v_add_u32 v{vX1}, {8*1280-1024}, v{vX1}")
    a(f"s_lshl_b32 s{sT0}, s{sWAVE}, 3")
    a(f"v_add_u32 v{t0}, s{sT0}, v{t2}")
    a(f"v_mul_u32_u24 v{t0}, 3840, v{t0}")
    a(f"s_and_b32 s{sT0}, s{sWAVE}, 1")
    a(f"s_lshl_b32 s{sT0}, s{sT0}, 2")
    a(f"v_or_b32 v{t1}, s{sT0}, v{t2}")
    a(f"v_bfe_u32 v{t3}, v0, 1, 3")
    a(f"v_xor_b32 v{t1}, v{t1}, v{t3}")
    a(f"v_lshlrev_b32 v{t1}, 5, v{t1}")
    a(f"v_and_b32 v{t3}, 1, v0")
    a(f"v_lshl_add_u32 v{t1}, v{t3}, 4, v{t1}")
    a(f"v_add_u32 v{vW0}, v{t0}, v{t1}")
    a(f"v_add_u32 v{vW1}, {4*3840-1024}, v{vW0}")

def p1_dma_qkv(a, c):
    slot = (c % 4) * 32768
    a(f"s_add_u32 m0, s{sLDSW}, {slot}")
    a(f"s_add_u32 s{sT0}, s{sOffX}, {c*128}")
    a.vmem(f"buffer_load_dwordx4 v{vX0}, {srd(S_X)}, s{sT0} offen lds", f"c{c}")
    a.vmem(f"buffer_load_dwordx4 v{vX1}, {srd(S_X)}, s{sT0} offen offset:1024 lds", f"c{c}")
    a(f"s_add_u32 m0, s{sLDSW}, {slot+2048}")
    a(f"s_add_u32 s{sT0}, s{sOffW}, {c*64*3840}")
    a.vmem(f"buffer_load_dwordx4 v{vW0}, {srd(S_WQ)}, s{sT0} offen lds", f"c{c}")
    a.vmem(f"buffer_load_dwordx4 v{vW1}, {srd(S_WQ)}, s{sT0} offen offset:1024 lds", f"c{c}")

def p1_dma_w1(a, c):
    slot = (c % 4) * 32768
    cc = c - 10
    a(f"s_mul_i32 s{sT1}, s{sWAVE}, 3072")
    a(f"s_add_u32 m0, s{sT1}, {slot}")
    a(f"s_mul_i32 s{sT0}, s{sJ}, 192")
    a(f"s_add_u32 s{sT0}, s{sT0}, {cc*128*3072}")
    for e, v in enumerate((vU0, vU1, vU2)):
        off = f" offset:{e*1024}" if e else ""
        a.vmem(f"buffer_load_dwordx4 v{v}, {srd(S_W1)}, s{sT0} offen{off} lds", f"c{c}")

def p1_setup2(a):
    t0, t1, t2, t3, t4, t5 = vT, vT+1, vT+2, vT+3, vT+4, vT+5
    for e, v in enumerate((vU0, vU1, vU2)):
        a(f"v_add_u32 v{t0}, {e*64}, v0")
        a(f"v_mul_u32_u24 v{t1}, 5462, v{t0}")
        a(f"v_lshrrev_b32 v{t1}, 16, v{t1}")
        a(f"v_mul_u32_u24 v{t2}, 12, v{t1}")
        a(f"v_sub_u32 v{t2}, v{t0}, v{t2}")
        a(f"v_bfe_u32 v{t3}, v{t1}, 2, 1")
        a(f"v_bfe_u32 v{t4}, v{t1}, 3, 1")
        a(f"v_and_b32 v{t5}, 3, v{t1}")
        a(f"v_lshl_add_u32 v{t5}, v{t3}, 3, v{t5}")
        a(f"v_lshl_add_u32 v{t5}, v{t4}, 2, v{t5}")
        a(f"s_lshl_b32 s{sT0}, s{sWAVE}, 4")
        a(f"v_add_u32 v{t5}, s{sT0}, v{t5}")
        a(f"v_mul_u32_u24 v{t5}, 3072, v{t5}")
        a(f"v_lshlrev_b32 v{t3}, 1, v{t3}")
        a(f"v_xor_b32 v{t2}, v{t2}, v{t3}")
        a(f"v_lshl_add_u32 v{v}, v{t2}, 4, v{t5}")
        if e: a(f"v_subrev_u32 v{v}, {e*1024}, v{v}")
    a(f"s_and_b32 s{sT0}, s{sWAVE}, 3")
    a(f"s_lshl_b32 s{sT0}, s{sT0}, 13")
    a(f"v_bfe_u32 v{t0}, v0, 3, 1")
    a(f"v_lshlrev_b32 v{t0}, 10, v{t0}")
    a(f"v_and_b32 v{t1}, 7, v0")
    a(f"v_lshl_add_u32 v{t0}, v{t1}, 7, v{t0}")
    a(f"v_add_u32 v{t0}, s{sT0}, v{t0}")
    a(f"v_lshrrev_b32 v{t1}, 4, v0")
    a(f"v_bfe_u32 v{t2}, v0, 1, 3")
    a(f"v_xor_b32 v{t2}, v{t1}, v{t2}")
    a(f"v_lshl_add_u32 v{vXA}, v{t2}, 4, v{t0}")
    a(f"v_xor_b32 v{vXA+1}, 64, v{vXA}")
    a(f"v_bfe_u32 v{t2}, v0, 2, 2")
    a(f"v_lshlrev_b32 v{t0}, 12, v{t1}")
    a(f"v_lshl_add_u32 v{t0}, v{t2}, 8, v{t0}")
    a(f"v_and_b32 v{t3}, 3, v0")
    a(f"v_lshl_add_u32 v{t0}, v{t3}, 3, v{t0}")
    a(f"v_bfe_u32 v{t4}, v0, 4, 1")
    a(f"v_lshl_add_u32 v{t5}, v{t4}, 2, v{t2}")
    a(f"s_lshr_b32 s{sT0}, s{sWAVE}, 2")
    a(f"s_lshl_b32 s{sT1}, s{sT0}, 2")
    a(f"v_xor_b32 v{t5}, s{sT1}, v{t5}")
    for T in range(4):
        a(f"v_xor_b32 v{vTA+T}, {T}, v{t5}")
        a(f"v_lshl_add_u32 v{vTA+T}, v{vTA+T}, 5, v{t0}")
    a(f"v_lshrrev_b32 v{t0}, 5, v0")
    a(f"v_lshlrev_b32 v{t0}, 4, v{t0}")
    a(f"v_lshl_add_u32 v{t0}, v{t4}, 2, v{t0}")
    a(f"v_add_u32 v{t0}, v{t0}, v{t2}")
    a(f"v_mul_u32_u24 v{t0}, 192, v{t0}")
    a(f"v_lshl_add_u32 v{t0}, v{t3}, 3, v{t0}")
    a(f"s_mul_i32 s{sT1}, s{sT0}, 3")
    for T in range(3):
        a(f"s_add_u32 s{sT2}, s{sT1}, {T}")
        a(f"v_xor_b32 v{vTB+T}, s{sT2}, v{t4}")
        a(f"v_lshl_add_u32 v{vTB+T}, v{vTB+T}, 5, v{t0}")
    mk_srd(a, S_M1, P_B1, 3072)
    a(f"s_mul_i32 s{sT1}, s{sJ}, 192")
    a(f"s_mul_i32 s{sT2}, s{sT0}, 96")
    a(f"s_add_u32 s{sT1}, s{sT1}, s{sT2}")
    a(f"v_lshlrev_b32 v{t1}, 3, v{t1}")
    for T in range(3):
        a.vmem(f"buffer_load_dwordx2 {vr(vB1+2*T,2)}, v{t1}, {srd(S_M1)}, s{sT1} offen offset:{32*T}", "b1")

def pp_dma(a, second):
    t0, t1, t2, t3, t4 = vT, vT+1, vT+2, vT+3, vT+4
    base = PP_LDS + second * 10240
    L = a.newlabel("pp")
    a(f"s_lshr_b32 s{sT4}, s{sT3}, 2")
    a(f"s_and_b32 s{sT5}, s{sT3}, 3")
    a(f"s_mul_i32 s{sT5}, s{sT5}, 320")
    for rep in range(2):
        if rep == 1:
            a(f"s_cmp_ge_u32 s{sWAVE}, 2")
            a(f"s_cbranch_scc1 {L}_done")
        a(f"s_lshl_b32 s{sT0}, s{sWAVE}, 6")
        a(f"v_add_u32 v{t0}, s{sT0}, v0")
        if rep: a(f"v_add_u32 v{t0}, 512, v{t0}")
        a(f"v_mul_u32_u24 v{t1}, 3277, v{t0}")
        a(f"v_lshrrev_b32 v{t1}, 16, v{t1}")
        a(f"v_mul_u32_u24 v{t2}, 20, v{t1}")
        a(f"v_sub_u32 v{t2}, v{t0}, v{t2}")
        a(f"s_cmp_ge_u32 s{sT4}, 48")
        a(f"s_cbranch_scc1 {L}_wo{rep}")
        mk_srd(a, S_M2, P_W2, 1966080)
        a(f"s_lshl_b32 s{sT0}, s{sT4}, 5")
        a(f"v_add_u32 v{t1}, s{sT0}, v{t1}")
        a(f"s_branch {L}_go{rep}")
        a.label(f"{L}_wo{rep}")
        mk_srd(a, S_M2, P_WO, 819200)
        a(f"v_lshrrev_b32 v{t3}, 3, v{t1}")
        a(f"s_cmp_ge_u32 s{sT4}, 64")
        a(f"s_cbranch_scc1 {L}_rem{rep}")
        a(f"s_sub_u32 s{sT0}, s{sT4}, 48")
        a(f"s_lshl_b32 s{sT0}, s{sT0}, 2")
        a(f"v_add_u32 v{t3}, s{sT0}, v{t3}")
        a(f"v_lshrrev_b32 v{t4}, 1, v{t3}")
        a(f"v_mul_u32_u24 v{t4}, 20, v{t4}")
        a(f"v_and_b32 v{t3}, 1, v{t3}")
        a(f"v_lshl_add_u32 v{t4}, v{t3}, 3, v{t4}")
        a(f"v_and_b32 v{t1}, 7, v{t1}")
        a(f"v_add_u32 v{t1}, v{t4}, v{t1}")
        a(f"s_branch {L}_go{rep}")
        a.label(f"{L}_rem{rep}")
        a(f"s_sub_u32 s{sT0}, s{sT4}, 64")
        a(f"s_lshl_b32 s{sT0}, s{sT0}, 2")
        a(f"v_add_u32 v{t3}, s{sT0}, v{t3}")
        a(f"v_bfe_u32 v{t4}, v{t1}, 2, 1")
        a(f"v_lshl_add_u32 v{t4}, v{t3}, 1, v{t4}")
        a(f"v_mul_u32_u24 v{t4}, 20, v{t4}")
        a(f"v_and_b32 v{t1}, 3, v{t1}")
        a(f"v_add3_u32 v{t1}, v{t4}, v{t1}, 16")
        a.label(f"{L}_go{rep}")
        a(f"v_mul_u32_u24 v{t1}, 1280, v{t1}")
        a(f"v_lshl_add_u32 v{t1}, v{t2}, 4, v{t1}")
        a(f"s_lshl_b32 s{sT0}, s{sWAVE}, 10")
        a(f"s_add_u32 m0, s{sT0}, {base + rep*8192}")
        a("s_nop 0")
        a.vmem(f"buffer_load_dwordx4 v{t1}, {srd(S_M2)}, s{sT5} offen lds", "pp", definite=(rep == 0 and not second))
    a.label(f"{L}_done")

def pp_finish(a, second, tmp):
    base = PP_LDS + second * 10240
    L = a.newlabel("ppf")
    t0, t1, t2 = vT, vT+1, vT+2
    for rep in range(2):
        if rep == 1:
            a(f"s_cmp_ge_u32 s{sWAVE}, 2")
            a(f"s_cbranch_scc1 {L}_done")
        a(f"s_add_u32 s{sT0}, s{sWAVE}, {8*rep}")
        a(f"s_cmp_ge_u32 s{sT0}, 5")
        a(f"s_cselect_b32 s{sT1}, 1, 0")
        a(f"s_mul_i32 s{sT2}, s{sT1}, 5")
        a(f"s_sub_u32 s{sT0}, s{sT0}, s{sT2}")
        a(f"s_lshr_b32 s{sT2}, s{sT0}, 1")
        a(f"s_lshl_b32 s{sT2}, s{sT2}, 6")
        a(f"s_and_b32 s{sT4}, s{sT0}, 1")
        a(f"s_lshl_b32 s{sT4}, s{sT4}, 3")
        a(f"s_add_u32 s{sT2}, s{sT2}, s{sT4}")
        a(f"s_mul_i32 s{sT4}, s{sT1}, 160")
        a(f"s_add_u32 s{sT2}, s{sT2}, s{sT4}")
        a(f"s_add_u32 s{sT2}, s{sT2}, {base}")
        a(f"s_cmp_eq_u32 s{sT0}, 4")
        a(f"s_cselect_b32 s{sT4}, 3, 4")
        a(f"v_and_b32 v{t0}, 3, v0")
        a(f"v_lshlrev_b32 v{t0}, s{sT4}, v{t0}")
        a(f"v_lshrrev_b32 v{t1}, 4, v0")
        a(f"v_bfe_u32 v{t2}, v0, 2, 2")
        a(f"v_lshl_add_u32 v{t1}, v{t1}, 3, v{t2}")
        a(f"v_mul_u32_u24 v{t1}, 320, v{t1}")
        a(f"v_add3_u32 v{t0}, v{t0}, v{t1}, s{sT2}")
        a.ds(f"ds_read_b64_tr_b16 {vr(tmp,2)}, v{t0}", "pp")
        a.ds(f"ds_read_b64_tr_b16 {vr(tmp+2,2)}, v{t0} offset:1280", "pp")
        a(f"s_and_b32 s{sT2}, s{sT3}, 3")
        a(f"s_lshl_b32 s{sT2}, s{sT2}, 1")
        a(f"s_add_u32 s{sT2}, s{sT2}, s{sT1}")
        a(f"s_mul_i32 s{sT2}, s{sT2}, 68")
        a(f"s_lshr_b32 s{sT4}, s{sT3}, 2")
        a(f"s_add_u32 s{sT2}, s{sT2}, s{sT4}")
        a(f"s_mul_i32 s{sT2}, s{sT2}, 5120")
        a(f"s_lshl_b32 s{sT0}, s{sT0}, 10")
        a(f"s_add_u32 s{sT2}, s{sT2}, s{sT0}")
        a(f"s_add_u32 s{sT2}, s{sT2}, {WF_OFF}")
        a(f"v_lshlrev_b32 v{t1}, 4, v0")
        a.lg_all()
        a.vmem(f"buffer_store_dwordx4 {vr(tmp,4)}, v{t1}, {srd(S_WS)}, s{sT2} offen sc1", "st1", definite=(rep == 0 and not second))
        a("s_nop 1")
    a.label(f"{L}_done")

def p1_reads(a, s):
    out = []
    buf = WF + (s % 2) * 16
    if s < 20:
        c, ks = s // 2, s % 2
        base = ((c % 4) % 2) * 32768
        for b in range(2):
            out.append(f"ds_read_b128 {vr(XR+(s*2+b)*4,4)}, v{vXA+ks} offset:{base + b*4096}")
        for T in range(4):
            for r2 in range(2):
                out.append(f"ds_read_b64_tr_b16 {vr(buf+T*4+r2*2,2)}, v{vTA+T} offset:{base + 2048 + ks*16384 + r2*1024}")
    else:
        sf = s - 20
        c, ks = 10 + sf // 4, sf % 4
        base = ((c % 4) % 2) * 32768
        for T in range(3):
            for r2 in range(2):
                out.append(f"ds_read_b64_tr_b16 {vr(buf+T*4+r2*2,2)}, v{vTB+T} offset:{base + ks*6144 + r2*1536}")
    return out

def p1_mfmas(a, s, vmode):
    out = []
    buf = WF + (s % 2) * 16
    ks = s % 20
    nT = 4 if s < 20 else 3
    for T in range(nT):
        for b in range(2):
            d = vr(ACC + (b*4+T)*4, 4)
            w = vr(buf + T*4, 4); x = vr(XR + (ks*2+b)*4, 4)
            cin = "0" if s == 0 else d
            if vmode and s < 20: out.append(f"v_mfma_f32_16x16x32_bf16 {d}, {x}, {w}, {cin}")
            else: out.append(f"v_mfma_f32_16x16x32_bf16 {d}, {w}, {x}, {cin}")
    return out

def half_of_chunk(c): return (c % 4) // 2

def p1_stage(a, s, vmode, pre_barrier=None, post_barrier=None):
    if s < 20: start = (s % 2 == 0); c = s // 2
    elif s < 40: start = ((s - 20) % 4 == 0); c = 10 + (s - 20) // 4
    else: start = False; c = None
    if start:
        if pre_barrier: pre_barrier()
        a.wait_vm(f"c{c}", lg0=True)
        a("s_barrier")
        n = c + 3
        if n < 10: p1_dma_qkv(a, n)
        elif n < 15: p1_dma_w1(a, n)
        if post_barrier: post_barrier()
        if c > 0 and half_of_chunk(c) != half_of_chunk(c-1):
            regs = ([vXA, vXA+1] + [vTA+T for T in range(4)] if c < 10 else []) + [vTB+T for T in range(3)]
            for r in regs: a(f"v_xor_b32 v{r}, 0x10000, v{r}")
    else:
        a.lg_all()
    rd = p1_reads(a, s) if s < 40 else []
    mf = p1_mfmas(a, s-1, vmode) if s > 0 else []
    n = max(len(rd), len(mf))
    for i in range(n):
        if i < len(mf): a(mf[i])
        if i < len(rd): a.ds(rd[i], f"r{s}")

def qk_epilogue(a):
    t0, t1, t2, t3 = vT, vT+1, vT+2, vT+3
    a.c("---- Q/K epilogue")
    a(f"s_cmp_ge_u32 s{sJ}, 5")
    a(f"s_cselect_b32 s{sT0}, 5, 0")
    a(f"s_cselect_b32 s{sScale}, 1.0, {f32hex(QSCALE)}")
    a(f"s_cselect_b32 s{sT1}, 1, 0")
    a(f"s_cselect_b32 s{sT2}, {KV_OFF}, {QF_OFF}")
    a(f"s_lshl_b32 s{sT4}, 81920, s{sT1}")
    a(f"s_lshl_b32 s{sT5}, 1280, s{sT1}")
    a(f"s_sub_u32 s{sT0}, s{sJ}, s{sT0}")
    a(f"s_lshl_b32 s{sT0}, s{sT0}, 5")
    a(f"s_lshr_b32 s{sT1}, s{sWAVE}, 2")
    a(f"s_lshl_b32 s{sT1}, s{sT1}, 4")
    a(f"s_add_u32 s{sT0}, s{sT0}, s{sT1}")
    a(f"s_and_b32 s{sT1}, s{sWAVE}, 3")
    a(f"s_lshl_b32 s{sT3}, s{sM}, 2")
    a(f"s_add_u32 s{sT1}, s{sT1}, s{sT3}")
    a(f"s_mul_i32 s{sT5}, s{sT5}, s{sT1}")
    a(f"s_add_u32 s{sT5}, s{sT5}, s{sT2}")
    a(f"v_and_b32 v{t3}, 9, v0")
    a(f"v_bfe_u32 v{t0}, v0, 1, 1")
    a(f"v_lshl_add_u32 v{t3}, v{t0}, 2, v{t3}")
    a(f"v_bfe_u32 v{t0}, v0, 2, 1")
    a(f"v_lshl_add_u32 v{t3}, v{t0}, 1, v{t3}")
    a(f"v_lshlrev_b32 v{t3}, 4, v{t3}")
    a(f"v_lshrrev_b32 v{t0}, 4, v0")
    a(f"v_add_u32 v{t0}, s{sT0}, v{t0}")
    for T in range(4):
        o = WF + 16 + T*4
        adr = vT + 4 + T
        a(f"v_add_u32 v{t1}, {4*T}, v{t0}")
        a(f"v_mul_u32_u24 v{t2}, 205, v{t1}")
        a(f"v_lshrrev_b32 v{t2}, 10, v{t2}")
        a(f"v_mul_u32_u24 v{adr}, 5, v{t2}")
        a(f"v_sub_u32 v{t1}, v{t1}, v{adr}")
        a(f"v_lshlrev_b32 v{t1}, 2, v{t1}")
        a(f"s_mov_b32 s{sT3}, 0x43120")
        a(f"v_bfe_u32 v{t1}, s{sT3}, v{t1}, 4")
        a(f"v_mul_lo_u32 v{adr}, v{t2}, s{sT4}")
        a(f"v_lshl_add_u32 v{adr}, v{t1}, 8, v{adr}")
        a(f"v_add_u32 v{adr}, v{adr}, v{t3}")
        for b in range(2):
            for r in range(4):
                x = ACC + (b*4+T)*4 + r
                a(f"v_mul_f32 v{x}, s{sScale}, v{x}")
        for b in range(2):
            x = ACC + (b*4+T)*4
            a(f"v_cvt_pk_bf16_f32 v{o+2*b}, v{x}, v{x+1}")
            a(f"v_cvt_pk_bf16_f32 v{o+2*b+1}, v{x+2}, v{x+3}")
        a.vmem(f"buffer_store_dwordx4 {vr(o,4)}, v{adr}, {srd(S_WS)}, s{sT5} offen sc1", "stq")

def v_epilogue(a):
    t0, t1, t2, t3 = vT, vT+1, vT+2, vT+3
    a.c("---- V epilogue")
    a(f"s_sub_u32 s{sT0}, s{sJ}, 10")
    a(f"s_lshl_b32 s{sT0}, s{sT0}, 7")
    a(f"s_lshr_b32 s{sT1}, s{sWAVE}, 2")
    a(f"s_lshl_b32 s{sT1}, s{sT1}, 6")
    a(f"s_add_u32 s{sT0}, s{sT0}, s{sT1}")
    a(f"s_and_b32 s{sT1}, s{sWAVE}, 3")
    a(f"s_lshl_b32 s{sT3}, s{sM}, 2")
    a(f"s_add_u32 s{sT1}, s{sT1}, s{sT3}")
    a(f"s_mul_i32 s{sT5}, s{sT1}, 2560")
    a(f"s_add_u32 s{sT5}, s{sT5}, {KV_OFF + 1280}")
    a(f"s_mov_b32 s{sT4}, 163840")
    a(f"v_lshrrev_b32 v{t3}, 4, v0")
    a(f"v_mul_u32_u24 v{t3}, 320, v{t3}")
    a(f"v_and_b32 v{t0}, 15, v0")
    a(f"v_add_u32 v{t0}, s{sT0}, v{t0}")
    for T in range(4):
        o = WF + 16 + T*4
        adr = vT + 4 + T
        a(f"v_add_u32 v{t1}, {16*T}, v{t0}")
        a(f"v_mul_u32_u24 v{t2}, 3277, v{t1}")
        a(f"v_lshrrev_b32 v{t2}, 16, v{t2}")
        a(f"v_mul_u32_u24 v{adr}, 20, v{t2}")
        a(f"v_sub_u32 v{t1}, v{t1}, v{adr}")
        a(f"v_mul_lo_u32 v{adr}, v{t2}, s{sT4}")
        a(f"v_and_b32 v{t2}, 0x13, v{t1}")
        a(f"v_bfe_u32 v{o}, v{t1}, 2, 1")
        a(f"v_lshl_add_u32 v{t2}, v{o}, 3, v{t2}")
        a(f"v_bfe_u32 v{o}, v{t1}, 3, 1")
        a(f"v_lshl_add_u32 v{t2}, v{o}, 2, v{t2}")
        a(f"v_lshl_add_u32 v{adr}, v{t2}, 4, v{adr}")
        a(f"v_add_u32 v{adr}, v{adr}, v{t3}")
        for r in range(4):
            a(f"v_cvt_pk_bf16_f32 v{o+r}, v{ACC + T*4 + r}, v{ACC + (4+T)*4 + r}")
        a.vmem(f"buffer_store_dwordx4 {vr(o,4)}, v{adr}, {srd(S_WS)}, s{sT5} offen sc1", "stq")

def ffn1_init(a):
    a.wait_vm("b1")
    for T in range(3):
        for r in range(4):
            src = vB1 + 2*T + r//2
            d0 = ACC + T*4 + r; d1 = ACC + (4+T)*4 + r
            if r % 2 == 0: a(f"v_lshlrev_b32 v{d0}, 16, v{src}")
            else: a(f"v_and_b32 v{d0}, 0xffff0000, v{src}")
            a(f"v_mov_b32 v{d1}, v{d0}")

GA = 88
def gate_loads(a):
    mk_srd(a, S_M1, P_GW, 1280)
    a(f"s_lshl_b32 s{sT0}, s2, 3")
    a(f"s_add_u32 s{sT0}, s{sT0}, s{sWAVE}")
    a(f"s_mul_i32 s{sT0}, s{sT0}, 1280")
    a(f"v_lshlrev_b32 v{vT}, 4, v0")
    a(f"v_lshlrev_b32 v{vT+1}, 2, v0")
    a.vmem(f"buffer_load_dwordx4 v[76:79], v{vT}, {srd(S_X)}, s{sT0} offen", "gate")
    a.vmem(f"buffer_load_dword v92, v{vT+1}, {srd(S_X)}, s{sT0} offen offset:1024", "gate")
    a.vmem(f"buffer_load_dwordx4 v[44:47], v{vT}, {srd(S_M1)}, 0 offen", "gate")
    a.vmem(f"buffer_load_dword v93, v{vT+1}, {srd(S_M1)}, 0 offen offset:1024", "gate")

def gate_finish(a):
    a.c("---- gate")
    a.wait_vm("gate")
    acc = 94
    a(f"v_mov_b32 v{acc}, 0")
    xs = [76, 77, 78, 79, 92]; gs = [44, 45, 46, 47, 93]
    t0, t1, t2, t3 = 60, 61, 62, 63
    for x, g in zip(xs, gs):
        a(f"v_lshlrev_b32 v{t0}, 16, v{x}")
        a(f"v_lshlrev_b32 v{t1}, 16, v{g}")
        a(f"v_and_b32 v{t2}, 0xffff0000, v{x}")
        a(f"v_and_b32 v{t3}, 0xffff0000, v{g}")
        a(f"v_mul_f32 v{t0}, v{t0}, v{t1}")
        a(f"v_mul_f32 v{t2}, v{t2}, v{t3}")
        a(f"v_cvt_pk_bf16_f32 v{t0}, v{t0}, v{t2}")
        a(f"v_lshlrev_b32 v{t1}, 16, v{t0}")
        a(f"v_and_b32 v{t2}, 0xffff0000, v{t0}")
        a(f"v_add_f32 v{acc}, v{acc}, v{t1}")
        a(f"v_add_f32 v{acc}, v{acc}, v{t2}")
    for ctrl in ("row_shr:1 row_mask:0xf bank_mask:0xf bound_ctrl:0", "row_shr:2 row_mask:0xf bank_mask:0xf bound_ctrl:0",
                 "row_shr:4 row_mask:0xf bank_mask:0xf bound_ctrl:0", "row_shr:8 row_mask:0xf bank_mask:0xf bound_ctrl:0",
                 "row_bcast:15 row_mask:0xa bank_mask:0xf", "row_bcast:31 row_mask:0xc bank_mask:0xf"):
        a("s_nop 1")
        a(f"v_add_f32_dpp v{acc}, v{acc}, v{acc} {ctrl}")
    a("s_nop 1")
    a(f"v_cvt_pk_bf16_f32 v{acc}, v{acc}, v{acc}")
    a(f"v_and_b32 v{acc}, 0xffff0000, v{acc}")
    a(f"v_mul_f32 v{acc}, {f32hex(-math.log2(math.e))}, v{acc}")
    a(f"v_exp_f32 v{acc}, v{acc}")
    a("s_nop 0")
    a(f"v_add_f32 v{acc}, 1.0, v{acc}")
    a(f"v_rcp_f32 v{acc}, v{acc}")
    a("s_nop 0")
    a(f"v_cvt_pk_bf16_f32 v{acc}, v{acc}, v{acc}")
    a(f"v_and_b32 v{acc}, 0xffff0000, v{acc}")
    a(f"s_lshl_b32 s{sT0}, s2, 3")
    a(f"s_add_u32 s{sT0}, s{sT0}, s{sWAVE}")
    a(f"s_lshl_b32 s{sT0}, s{sT0}, 2")
    a(f"s_add_u32 s{sT0}, s{sT0}, {G_OFF}")
    a(f"v_mov_b32 v{t0}, 0")
    a(f"s_mov_b32 s{sSAVE}, 0")
    a(f"s_mov_b32 s{sSAVE+1}, 0x80000000")
    a(f"s_mov_b64 exec, s[{sSAVE}:{sSAVE+1}]")
    a.vmem(f"buffer_store_dword v{acc}, v{t0}, {srd(S_WS)}, s{sT0} offen sc1", "st1")
    a("s_mov_b64 exec, -1")

def ffn1_epilogue(a):
    a.c("---- FFN1 epilogue")
    t0, t1 = vT, vT+1
    a(f"s_and_b32 s{sT0}, s{sWAVE}, 3")
    a(f"s_lshl_b32 s{sT0}, s{sT0}, 1")
    a(f"s_lshl_b32 s{sT1}, s{sM}, 3")
    a(f"s_add_u32 s{sT0}, s{sT0}, s{sT1}")
    a(f"s_mul_i32 s{sT0}, s{sT0}, {AF_T}")
    a(f"s_lshr_b32 s{sT1}, s{sWAVE}, 2")
    a(f"s_mul_i32 s{sT1}, s{sT1}, 1536")
    a(f"s_mul_i32 s{sT2}, s{sJ}, 3072")
    a(f"s_add_u32 s{sT0}, s{sT0}, s{sT1}")
    a(f"s_add_u32 s{sT0}, s{sT0}, s{sT2}")
    a(f"s_add_u32 s{sT0}, s{sT0}, {AF_OFF}")
    a(f"v_bfe_u32 v{t0}, v0, 4, 1")
    a(f"v_mul_u32_u24 v{t0}, {AF_T}, v{t0}")
    a(f"v_lshrrev_b32 v{t1}, 5, v0")
    a(f"v_lshl_add_u32 v{t0}, v{t1}, 8, v{t0}")
    a(f"v_and_b32 v{t1}, 15, v0")
    a(f"v_lshl_add_u32 v{t0}, v{t1}, 4, v{t0}")
    for T in range(3):
        o = WF + T*4
        for b in range(2):
            for r in range(4):
                x = ACC + (b*4+T)*4 + r
                a(f"v_max_f32 v{x}, 0, v{x}")
        for b in range(2):
            for r in range(4):
                x = ACC + (b*4+T)*4 + r
                a(f"v_mul_f32 v{x}, v{x}, v{x}")
        for b in range(2):
            x = ACC + (b*4+T)*4
            a(f"v_cvt_pk_bf16_f32 v{o+2*b}, v{x}, v{x+1}")
            a(f"v_cvt_pk_bf16_f32 v{o+2*b+1}, v{x+2}, v{x+3}")
        a("s_nop 1")
        a(f"v_permlane16_swap_b32 v{o}, v{o+2}")
        a(f"v_permlane16_swap_b32 v{o+1}, v{o+3}")
        a.vmem(f"buffer_store_dwordx4 {vr(o,4)}, v{t0}, {srd(S_WS)}, s{sT0} offen offset:{512*T} sc1", "st1")

def phase1(a, hookA=None):
    p1_setup(a)
    for c in range(3): p1_dma_qkv(a, c)
    p1_setup2(a)
    a(f"s_mov_b32 s{sT3}, s2")
    pp_dma(a, 0)
    L15 = a.newlabel("j15")
    a(f"s_cmp_lg_u32 s{sJ}, 15")
    a(f"s_cbranch_scc1 {L15}")
    a(f"s_add_u32 s{sT3}, s{sM}, 256")
    pp_dma(a, 1)
    a.label(L15)
    LV = a.newlabel("vpass"); LJ = a.newlabel("join"); LN = a.newlabel("noepi")
    a(f"s_cmp_ge_u32 s{sJ}, 10")
    a(f"s_cbranch_scc1 {LV}")
    save = (list(a.vm), list(a.lg))
    for s in range(21): p1_stage(a, s, False)
    a("s_nop 7")
    qk_epilogue(a)
    a(f"s_branch {LJ}")
    endstate = (list(a.vm), list(a.lg))
    a.vm, a.lg = list(save[0]), list(save[1])
    a.label(LV)
    for s in range(21): p1_stage(a, s, True)
    a(f"s_cmp_eq_u32 s{sJ}, 15")
    a(f"s_cbranch_scc1 {LJ}")
    a("s_nop 6")
    v_epilogue(a)
    assert [t for t,_ in a.vm] == [t for t,_ in endstate[0]], (a.vm, endstate[0])
    a.vm = [(t, d and t != "stq") for t, d in a.vm]
    a.label(LJ)
    a("s_nop 6")
    ffn1_init(a)
    a(f"s_mov_b32 s{sT3}, s2")
    pp_finish(a, 0, 76)
    L15 = a.newlabel("j15b")
    a(f"s_cmp_lg_u32 s{sJ}, 15")
    a(f"s_cbranch_scc1 {L15}")
    a(f"s_add_u32 s{sT3}, s{sM}, 256")
    pp_finish(a, 1, 76)
    a.label(L15)
    gate_loads(a)
    for s in range(21, 41):
        pre = post = None
        if s == 28 and hookA:
            pre = lambda: a.wait_vm("stq")
            post = hookA
        p1_stage(a, s, False, pre, post)
    a("s_nop 7")
    ffn1_epilogue(a)
    gate_finish(a)

def kernel_wrap(a, name, body, nvgpr=256):
    a.kname = name
    a(".text")
    a(f".globl {name}")
    a(".p2align 8")
    a(f".type {name},@function")
    a.label(name)
    a.vm = []; a.lg = []
    prologue(a)
    body(a)
    a.label("L_exit_" + name)
    a("s_endpgm")
    a('.section .rodata,"a"')
    a(".p2align 6")
    a(f".amdhsa_kernel {name}")
    a(f".amdhsa_next_free_vgpr {nvgpr}")
    a(".amdhsa_next_free_sgpr 102")
    a(f".amdhsa_accum_offset {nvgpr}")
    a(".amdhsa_group_segment_fixed_size 0")
    a(".amdhsa_kernarg_size 96")
    a(".amdhsa_user_sgpr_count 2")
    a(".amdhsa_user_sgpr_kernarg_segment_ptr 1")
    a(".amdhsa_system_sgpr_workgroup_id_x 1")
    a(".end_amdhsa_kernel")

SA, SB, OA, OB, PB, QA, QB, KB, VB = 8, 24, 40, 56, 72, 80, 86, 92, 104
vKA, vKB, vVA, vD4, vD1, vAT0, vAT1 = 1, 2, 3, 4, 5, 6, 7
sH, sQB, sKVG, sKH = 49, 50, 58, 59
KVL = 0
XCH = 122880

def att_dma(a, c):
    slot = KVL + (c % 4) * 10240
    a(f"s_add_u32 m0, s{sLDSW}, {slot}")
    a(f"s_add_u32 s{sT0}, s{sKVG}, {c*10240}")
    a.vmem(f"buffer_load_dwordx4 v{vD4}, {srd(S_WS)}, s{sT0} offen sc1 lds", f"kv{c}")
    a.vmem(f"buffer_load_dword v{vD1}, {srd(S_WS)}, s{sT0} offen offset:1024 sc1 lds", f"kv{c}")

def att_setup(a):
    a.c("---- attention setup")
    a(f"s_lshl_b32 s{sH}, s{sXCD}, 2")
    a(f"s_add_u32 s{sH}, s{sH}, s{sHI}")
    a(f"s_mov_b32 s{sQB}, s{sLO}")
    a(f"s_mul_i32 s{sLDSW}, s{sWAVE}, 1280")
    a(f"s_mul_i32 s{sKVG}, s{sH}, 163840")
    a(f"s_add_u32 s{sKVG}, s{sKVG}, s{sLDSW}")
    a(f"s_add_u32 s{sKVG}, s{sKVG}, {KV_OFF}")
    a(f"s_lshr_b32 s{sKH}, s{sWAVE}, 2")
    a(f"v_lshlrev_b32 v{vD4}, 4, v0")
    a(f"v_lshlrev_b32 v{vD1}, 2, v0")
    a(f"s_mov_b32 s{sEXV}, 0x000fffff")
    a(f"s_mov_b32 s{sEXV+1}, 0x000fffff")

def att_qload(a):
    t0, t1 = vAT0, vAT1
    a(f"v_and_b32 v{t0}, 9, v0")
    a(f"v_bfe_u32 v{t1}, v0, 1, 1")
    a(f"v_lshl_add_u32 v{t0}, v{t1}, 2, v{t0}")
    a(f"v_bfe_u32 v{t1}, v0, 2, 1")
    a(f"v_lshl_add_u32 v{t0}, v{t1}, 1, v{t0}")
    a(f"v_lshlrev_b32 v{t0}, 4, v{t0}")
    a(f"v_bfe_u32 v{t1}, v0, 4, 1")
    a(f"v_lshl_add_u32 v{t0}, v{t1}, 3, v{t0}")
    a(f"v_lshrrev_b32 v{t1}, 5, v0")
    a(f"v_lshl_add_u32 v{t1}, v{t1}, 8, v{t0}")
    a(f"s_and_b32 s{sT0}, s{sWAVE}, 3")
    a(f"s_lshl_b32 s{sT0}, s{sT0}, 1")
    a(f"s_lshl_b32 s{sT1}, s{sQB}, 3")
    a(f"s_add_u32 s{sT0}, s{sT0}, s{sT1}")
    a(f"s_add_u32 s{sT1}, s{sT0}, s{sKH}")
    a(f"s_xor_b32 s{sT2}, s{sT1}, 1")
    a(f"s_mul_i32 s{sT3}, s{sH}, 81920")
    for T, Q in ((sT1, QA), (sT2, QB)):
        a(f"s_mul_i32 s{T}, s{T}, 1280")
        a(f"s_add_u32 s{T}, s{T}, s{sT3}")
        if QF_OFF: a(f"s_add_u32 s{T}, s{T}, {QF_OFF}")
        a.vmem(f"buffer_load_dwordx2 {vr(Q,2)}, v{t1}, {srd(S_WS)}, s{T} offen sc1", "q")
        a.vmem(f"buffer_load_dwordx2 {vr(Q+2,2)}, v{t1}, {srd(S_WS)}, s{T} offen offset:512 sc1", "q")
        a.vmem(f"buffer_load_dwordx2 {vr(Q+4,2)}, v{t0}, {srd(S_WS)}, s{T} offen offset:1024 sc1", "q")

def att_setup2(a):
    t0, t1 = vAT0, vAT1
    a(f"s_mul_i32 s{sT0}, s{sKH}, 5120")
    if KVL: a(f"s_add_u32 s{sT0}, s{sT0}, {KVL}")
    a(f"v_and_b32 v{vKB}, 31, v0")
    a(f"v_lshlrev_b32 v{vVA}, 4, v{vKB}")
    a(f"v_lshlrev_b32 v{vKB}, 3, v{vKB}")
    a(f"v_add_u32 v{vKB}, s{sT0}, v{vKB}")
    a(f"v_lshrrev_b32 v{vKA}, 5, v0")
    a(f"v_mul_u32_u24 v{PB}, 320, v{vKA}")
    a(f"v_add3_u32 v{vVA}, v{vVA}, v{PB}, s{sT0}")
    a(f"v_lshl_add_u32 v{vKA}, v{vKA}, 8, v{vKB}")
    for r in range(16):
        a(f"v_mov_b32 v{VB+r}, 0x3f803f80")
    for r in range(16):
        a(f"v_mov_b32 v{OA+r}, 0")
        a(f"v_mov_b32 v{OB+r}, 0")

def k_reads(t):
    c, e = t >> 1, t & 1
    tp = (c % 4) * 4 + e
    kb = KB + (t % 2) * 6
    return [f"ds_read2st64_b64 {vr(kb,4)}, v{vKA} offset0:{5*tp} offset1:{5*tp+1}",
            f"ds_read_b64 {vr(kb+4,2)}, v{vKB} offset:{tp*2560+1024}"]
def v_reads(t):
    c, e = t >> 1, t & 1
    tp = (c % 4) * 4 + e
    vb = VB + (t % 2) * 8
    return [f"ds_read_b128 {vr(vb+4*kk,4)}, v{vVA} offset:{tp*2560+1280+kk*640}" for kk in range(2)]
def qk8(t, S, Q):
    kb = KB + (t % 2) * 6
    return f"v_mfma_f32_32x32x8_bf16 {vr(S,16)}, {vr(kb+4,2)}, {vr(Q+4,2)}, 0"
def qk16(t, S, Q):
    kb = KB + (t % 2) * 6
    return f"v_mfma_f32_32x32x16_bf16 {vr(S,16)}, {vr(kb,4)}, {vr(Q,4)}, {vr(S,16)}"
def pv(t, O, kk, pbuf):
    vb = VB + (t % 2) * 8 + 4 * kk
    return f"v_mfma_f32_32x32x16_bf16 {vr(O,16)}, {vr(vb,4)}, {vr(PB+4*pbuf,4)}, {vr(O,16)}"

def att_group(a, S, pbuf, m1, m2, mid=None, after_m1=None):
    p = PB + 4 * pbuf
    if m1: a(m1)
    if after_m1: after_m1()
    for r in range(4): a(f"v_exp_f32 v{S+r}, v{S+r}")
    a(f"v_cvt_pk_bf16_f32 v{p}, v{S}, v{S+1}")
    a(f"v_cvt_pk_bf16_f32 v{p+1}, v{S+2}, v{S+3}")
    if m2: a(m2)
    if mid: mid()
    for r in range(4, 8): a(f"v_exp_f32 v{S+r}, v{S+r}")
    a(f"v_cvt_pk_bf16_f32 v{p+2}, v{S+4}, v{S+5}")
    a(f"v_cvt_pk_bf16_f32 v{p+3}, v{S+6}, v{S+7}")

def att_vreads(a, t):
    a(f"s_mov_b64 exec, s[{sEXV}:{sEXV+1}]")
    for r in v_reads(t): a.ds(r, f"v{t}")
    a("s_mov_b64 exec, -1")

def att_barrier(a, c, extra=None):
    a.wait_vm(f"kv{c}", lg0=True)
    a("s_barrier")
    if c + 3 < 16: att_dma(a, c + 3)
    if extra: extra(c)

def attention_main(a, extra=None):
    NT = 32
    att_barrier(a, 0)
    for r in k_reads(0): a.ds(r, "k0")
    att_vreads(a, 0)
    a.wait_vm("q")
    a("s_mov_b32 exec_lo, 0")
    for Q in (QA, QB):
        a(f"v_mov_b32 v{Q+4}, 0")
        a(f"v_mov_b32 v{Q+5}, 0")
    a("s_mov_b32 exec_lo, -1")
    a.lg_all()
    a("s_nop 0")
    a(qk8(0, SA, QA))
    a("s_nop 9")
    a(qk16(0, SA, QA))
    a("s_nop 11")
    for t in range(NT):
        last = (t == NT - 1)
        if t % 2 == 1 and not last: att_barrier(a, (t + 1) // 2, extra)
        def kr():
            if not last:
                for r in k_reads(t + 1): a.ds(r, f"k{t+1}")
        def vrd():
            if not last: att_vreads(a, t + 1)
        att_group(a, SA, 0, qk8(t, SB, QB), pv(t-1, OB, 1, 1) if t > 0 else None, mid=vrd, after_m1=kr)
        att_group(a, SA+8, 1, qk16(t, SB, QB), pv(t, OA, 0, 0))
        if not last: a.lg_all()
        att_group(a, SB, 0, None if last else qk8(t+1, SA, QA), pv(t, OA, 1, 1))
        att_group(a, SB+8, 1, None if last else qk16(t+1, SA, QA), pv(t, OB, 0, 0))
    a("s_nop 1")
    a(pv(NT-1, OB, 1, 1))

def att_finish_store(a):
    r = SB
    a(f"v_rcp_f32 v{r}, v{OA+12}")
    a("s_nop 0")
    for i in range(12): a(f"v_mul_f32 v{OA+i}, v{r}, v{OA+i}")
    for i in range(6): a(f"v_cvt_pk_bf16_f32 v{SA+i}, v{OA+2*i}, v{OA+2*i+1}")
    a.vmem(f"buffer_store_dwordx4 {vr(SA,4)}, v{vAT0}, {srd(S_WS)}, s{sT4} offen sc1", "sto")
    a("s_mov_b32 exec_hi, 0")
    a.vmem(f"buffer_store_dwordx2 {vr(SA+4,2)}, v{vAT1}, {srd(S_WS)}, s{sT5} offen sc1", "sto")
    a("s_mov_b32 exec_hi, -1")

def att_epilogue(a):
    a.c("---- attention epilogue")
    t0, t1 = vAT0, vAT1
    a(f"s_lshl_b32 s{sT0}, s{sWAVE}, 12")
    a(f"s_add_u32 s{sT0}, s{sT0}, {XCH}")
    a(f"v_add_u32 v{t0}, s{sT0}, v{vD4}")
    a(f"s_xor_b32 s{sT1}, s{sWAVE}, 4")
    a(f"s_lshl_b32 s{sT1}, s{sT1}, 12")
    a(f"s_add_u32 s{sT1}, s{sT1}, {XCH}")
    a(f"v_add_u32 v{t1}, s{sT1}, v{vD4}")
    a("s_nop 7")
    for i in range(4): a.ds(f"ds_write_b128 v{t0}, {vr(OB+4*i,4)} offset:{1024*i}", "x")
    a.lg_all()
    a("s_barrier")
    for i in range(4): a.ds(f"ds_read_b128 {vr(SA+4*i,4)}, v{t1} offset:{1024*i}", "x")
    a(f"s_and_b32 s{sT0}, s{sWAVE}, 3")
    a(f"s_lshl_b32 s{sT0}, s{sT0}, 1")
    a(f"s_lshl_b32 s{sT1}, s{sQB}, 3")
    a(f"s_add_u32 s{sT0}, s{sT0}, s{sT1}")
    a(f"s_add_u32 s{sT0}, s{sT0}, s{sKH}")
    a(f"s_mul_i32 s{sT0}, s{sT0}, {2*AF_T}")
    a(f"s_add_u32 s{sT0}, s{sT0}, {AF_OFF}")
    a(f"s_lshl_b32 s{sT4}, s{sH}, 9")
    a(f"s_add_u32 s{sT4}, s{sT4}, s{sT0}")
    a(f"s_add_u32 s{sT4}, s{sT4}, {48*1024}")
    a(f"s_lshr_b32 s{sT5}, s{sH}, 1")
    a(f"s_lshl_b32 s{sT5}, s{sT5}, 8")
    a(f"s_and_b32 s{sT1}, s{sH}, 1")
    a(f"s_lshl_b32 s{sT1}, s{sT1}, 3")
    a(f"s_add_u32 s{sT5}, s{sT5}, s{sT1}")
    a(f"s_add_u32 s{sT5}, s{sT5}, s{sT0}")
    a(f"s_add_u32 s{sT5}, s{sT5}, {64*1024}")
    a(f"v_bfe_u32 v{t1}, v0, 4, 1")
    a(f"v_mul_u32_u24 v{t1}, {AF_T}, v{t1}")
    a(f"v_and_b32 v{t0}, 15, v0")
    a(f"v_lshl_add_u32 v{t1}, v{t0}, 4, v{t1}")
    a(f"v_lshrrev_b32 v{t0}, 5, v0")
    a(f"v_lshl_add_u32 v{t0}, v{t0}, 8, v{t1}")
    a.lg_all()
    for i in range(13): a(f"v_add_f32 v{OA+i}, v{OA+i}, v{SA+i}")
    chk = SB + 1
    a(f"v_mul_f32 v{chk}, 0, v{OA}")
    for i in range(1, 12): a(f"v_fma_f32 v{chk}, v{OA+i}, 0, v{chk}")
    a(f"v_add_f32 v{chk}, v{chk}, v{OA+12}")
    a(f"s_mov_b32 s{sT0}, {f32hex(2.0**40)}")
    a(f"v_cmp_le_f32 vcc, {f32hex(2.0**-24)}, v{chk}")
    a(f"v_cmp_ge_f32 s[{sSAVE}:{sSAVE+1}], s{sT0}, v{chk}")
    a("s_nop 1")
    a(f"s_and_b64 vcc, vcc, s[{sSAVE}:{sSAVE+1}]")
    a(f"s_cmp_eq_u64 vcc, -1")
    LF = a.newlabel("fast")
    a(f"s_cbranch_scc1 {LF}")
    att_fallback(a)
    a.label(LF)
    att_finish_store(a)

def att_fallback(a):
    a.c("---- fallback: exact row max, then shifted exponentials")
    NEG = OB; mx = PB + 7
    kb = KB; vb = VB
    save = (list(a.vm), list(a.lg))
    a.vm_all()
    a(f"s_mul_i32 s{sT0}, s{sKH}, 5120")
    if KVL: a(f"s_add_u32 s{sT0}, s{sT0}, {KVL}")
    a(f"v_subrev_u32 v{vKA}, s{sT0}, v{vKA}")
    a(f"v_subrev_u32 v{vKB}, s{sT0}, v{vKB}")
    a(f"v_subrev_u32 v{vVA}, s{sT0}, v{vVA}")
    a(f"s_mul_i32 s{sT2}, s{sH}, 163840")
    a(f"s_add_u32 s{sT2}, s{sT2}, {KV_OFF}")
    a(f"v_mov_b32 v{mx}, 0xff800000")
    L1 = a.newlabel("fb1"); L2 = a.newlabel("fb2")
    a(f"s_mov_b32 s{sT1}, 0")
    a.label(L1)
    a(f"s_add_u32 s{sT0}, s{sT2}, s{sT1}")
    a(f"buffer_load_dwordx2 {vr(kb,2)}, v{vKA}, {srd(S_WS)}, s{sT0} offen sc1")
    a(f"buffer_load_dwordx2 {vr(kb+2,2)}, v{vKA}, {srd(S_WS)}, s{sT0} offen offset:512 sc1")
    a(f"buffer_load_dwordx2 {vr(kb+4,2)}, v{vKB}, {srd(S_WS)}, s{sT0} offen offset:1024 sc1")
    a("s_waitcnt vmcnt(0)")
    a(qk8(0, SA, QA))
    a("s_nop 9")
    a(qk16(0, SA, QA))
    a("s_nop 11")
    for i in range(8): a(f"v_max3_f32 v{mx}, v{mx}, v{SA+2*i}, v{SA+2*i+1}")
    a(f"s_add_u32 s{sT1}, s{sT1}, 2560")
    a(f"s_cmp_lt_u32 s{sT1}, 163840")
    a(f"s_cbranch_scc1 {L1}")
    a(f"v_mov_b32 v{mx-1}, v{mx}")
    a("s_nop 1")
    a(f"v_permlane32_swap_b32 v{mx}, v{mx-1}")
    a("s_nop 1")
    a(f"v_max_f32 v{mx}, v{mx}, v{mx-1}")
    for i in range(16):
        a(f"v_sub_f32 v{NEG+i}, 0, v{mx}")
        a(f"v_mov_b32 v{OA+i}, 0")
    a(f"s_mov_b32 s{sT1}, 0")
    a.label(L2)
    a(f"s_add_u32 s{sT0}, s{sT2}, s{sT1}")
    a(f"buffer_load_dwordx2 {vr(kb,2)}, v{vKA}, {srd(S_WS)}, s{sT0} offen sc1")
    a(f"buffer_load_dwordx2 {vr(kb+2,2)}, v{vKA}, {srd(S_WS)}, s{sT0} offen offset:512 sc1")
    a(f"buffer_load_dwordx2 {vr(kb+4,2)}, v{vKB}, {srd(S_WS)}, s{sT0} offen offset:1024 sc1")
    a(f"s_mov_b64 exec, s[{sEXV}:{sEXV+1}]")
    a(f"buffer_load_dwordx4 {vr(vb,4)}, v{vVA}, {srd(S_WS)}, s{sT0} offen offset:1280 sc1")
    a(f"buffer_load_dwordx4 {vr(vb+4,4)}, v{vVA}, {srd(S_WS)}, s{sT0} offen offset:1920 sc1")
    a("s_mov_b64 exec, -1")
    a("s_waitcnt vmcnt(0)")
    a(f"v_mfma_f32_32x32x8_bf16 {vr(SA,16)}, {vr(kb+4,2)}, {vr(QA+4,2)}, {vr(NEG,16)}")
    a("s_nop 9")
    a(qk16(0, SA, QA))
    a("s_nop 11")
    for i in range(16): a(f"v_exp_f32 v{SA+i}, v{SA+i}")
    a("s_nop 0")
    for i in range(8): a(f"v_cvt_pk_bf16_f32 v{PB+i}, v{SA+2*i}, v{SA+2*i+1}")
    a("s_nop 1")
    a(pv(0, OA, 0, 0))
    a(pv(0, OA, 1, 1))
    a(f"s_add_u32 s{sT1}, s{sT1}, 2560")
    a(f"s_cmp_lt_u32 s{sT1}, 163840")
    a(f"s_cbranch_scc1 {L2}")
    a("s_nop 11")
    a.vm, a.lg = save

def attention(a):
    att_setup(a)
    for c in range(3): att_dma(a, c)
    att_qload(a)
    att_setup2(a)
    attention_main(a)
    att_epilogue(a)

AC1, AC2, TW = 8, 28, 48
vWL, vWH, vG, vTT0, vTT1 = 1, 2, 3, 6, 7
vB2 = 96
sRB, sCG, sWG, sAG = 92, 93, 94, 95
TSLOT = [40960, 81920, 122880, 0]
def HR(s): return 120 + 4*s if s < 34 else 88 + 4*(s-34)

def tail_setup(a):
    a.c("---- tail setup")
    a(f"s_lshr_b32 s{sRB}, s{sXCD}, 1")
    a(f"s_lshl_b32 s{sRB}, s{sRB}, 3")
    a(f"s_add_u32 s{sRB}, s{sRB}, s{sLO}")
    a(f"s_and_b32 s{sCG}, s{sXCD}, 1")
    a(f"s_lshl_b32 s{sCG}, s{sCG}, 2")
    a(f"s_add_u32 s{sCG}, s{sCG}, s{sHI}")
    a(f"s_lshr_b32 s{sKH}, s{sWAVE}, 2")
    a(f"s_and_b32 s{sT0}, s{sWAVE}, 3")
    a(f"s_mul_i32 s{sWG}, s{sCG}, 68")
    a(f"s_mul_i32 s{sT1}, s{sKH}, 36")
    a(f"s_add_u32 s{sWG}, s{sWG}, s{sT1}")
    a(f"s_add_u32 s{sWG}, s{sWG}, s{sT0}")
    a(f"s_mul_i32 s{sWG}, s{sWG}, 5120")
    a(f"s_add_u32 s{sWG}, s{sWG}, {WF_OFF}")
    a(f"s_lshl_b32 s{sAG}, s{sRB}, 2")
    a(f"s_add_u32 s{sAG}, s{sAG}, s{sT0}")
    a(f"s_mul_i32 s{sAG}, s{sAG}, {AF_T}")
    a(f"s_lshl_b32 s{sT1}, s{sT1}, 10")
    a(f"s_add_u32 s{sAG}, s{sAG}, s{sT1}")
    a(f"s_add_u32 s{sAG}, s{sAG}, {AF_OFF}")
    a(f"v_lshlrev_b32 v{vD4}, 4, v0")

def tail_dma(a, u):
    L = None
    if u == 8:
        L = a.newlabel("nod")
        a(f"s_cmp_eq_u32 s{sKH}, 1")
        a(f"s_cbranch_scc1 {L}")
    a(f"s_mul_i32 s{sT1}, s{sWAVE}, 5120")
    a(f"s_add_u32 m0, s{sT1}, {TSLOT[u%4]}")
    a(f"s_add_u32 s{sT0}, s{sWG}, {u*20480}")
    for e in range(4):
        off = f" offset:{e*1024}" if e else ""
        a.vmem(f"buffer_load_dwordx4 v{vD4}, {srd(S_WS)}, s{sT0} offen{off} sc1 lds", f"w{u}", definite=(u != 8))
    a(f"s_add_u32 m0, s{sT1}, {TSLOT[u%4]+4096}")
    a(f"s_add_u32 s{sT0}, s{sT0}, 4096")
    a.vmem(f"buffer_load_dwordx4 v{vD4}, {srd(S_WS)}, s{sT0} offen sc1 lds", f"w{u}", definite=(u != 8))
    if L: a.label(L)

def tail_aload(a, s, definite=True):
    a(f"s_add_u32 s{sT0}, s{sAG}, {(s//4)*4096}")
    off = f" offset:{(s%4)*1024}" if s % 4 else ""
    a.vmem(f"buffer_load_dwordx4 {vr(HR(s),4)}, v{vD4}, {srd(S_WS)}, s{sT0} offen{off} sc1", f"a{s}", definite=definite)

def tail_small_loads(a):
    mk_srd(a, S_M1, P_B2, 1280)
    a(f"v_lshrrev_b32 v{vTT0}, 4, v0")
    a(f"v_lshlrev_b32 v{vTT1}, 3, v{vTT0}")
    a(f"v_lshlrev_b32 v{vTT0}, 4, v{vTT0}")
    a(f"s_mul_i32 s{sT0}, s{sCG}, 160")
    a.vmem(f"buffer_load_dwordx4 {vr(vB2,4)}, v{vTT0}, {srd(S_M1)}, s{sT0} offen", "b2")
    a.vmem(f"buffer_load_dwordx4 {vr(vB2+4,4)}, v{vTT0}, {srd(S_M1)}, s{sT0} offen offset:64", "b2")
    a.vmem(f"buffer_load_dwordx2 {vr(vB2+8,2)}, v{vTT1}, {srd(S_M1)}, s{sT0} offen offset:128", "b2")
    a(f"s_and_b32 s{sT0}, s{sWAVE}, 3")
    a(f"s_lshl_b32 s{sT1}, s{sRB}, 2")
    a(f"s_add_u32 s{sT0}, s{sT0}, s{sT1}")
    a(f"s_lshl_b32 s{sT0}, s{sT0}, 6")
    a(f"s_add_u32 s{sT0}, s{sT0}, {G_OFF}")
    a(f"v_and_b32 v{vG}, 15, v0")
    a(f"v_lshlrev_b32 v{vG}, 2, v{vG}")
    a.vmem(f"buffer_load_dword v{vG}, v{vG}, {srd(S_WS)}, s{sT0} offen sc1", "g")

def tail_reads(s):
    u = s // 4
    base = TSLOT[u % 4]
    reg = vWL if base < 81920 else vWH
    base = base if base < 81920 else base - 81920
    return [f"ds_read_b128 {vr(TW+(s%2)*20+4*T,4)}, v{reg} offset:{base+(s%4)*5120+T*1024}" for T in range(5)]
def tail_mfmas(s):
    acc = AC1 if s < 12 else AC2
    out = []
    for T in range(5):
        d = vr(acc+4*T, 4)
        cin = "0" if s in (0, 12) else d
        out.append(f"v_mfma_f32_16x16x32_bf16 {d}, {vr(TW+(s%2)*20+4*T,4)}, {vr(HR(s),4)}, {cin}")
    return out

def tail_main(a, issued, hookO=None):
    a(f"s_mul_i32 s{sT0}, s{sKH}, 20480")
    a(f"v_add_u32 v{vWL}, s{sT0}, v{vD4}")
    a(f"v_add_u32 v{vWH}, 81920, v{vWL}")
    LB = a.newlabel("tailB")
    for s in range(37):
        if s % 4 == 0 and s < 36:
            u = s // 4
            a.wait_vm(f"w{u}", lg0=True)
            a("s_barrier")
            if u + 3 < 9 and u + 3 >= issued: tail_dma(a, u + 3)
        else:
            a.lg_all()
        if s == 33:
            pass
        rd = tail_reads(s) if s < 36 else []
        mf = tail_mfmas(s-1) if s > 0 else []
        if s == 32:
            L = a.newlabel("tA")
            a(f"s_cmp_eq_u32 s{sKH}, 0")
            a(f"s_cbranch_scc1 {L}")
            st = (list(a.vm), list(a.lg))
            a.wait_vm(f"a{s-1}")
            for m in mf: a(m)
            a(f"s_branch {LB}")
            a.vm, a.lg = st
            a.label(L)
        if s > 0: a.wait_vm(f"a{s-1}")
        for i in range(5):
            if i < len(mf): a(mf[i])
            if i < len(rd): a.ds(rd[i], f"t{s}")
        if hookO and s == 8: hookO()
    a("s_nop 7")
    for i in range(20): a(f"v_add_f32 v{AC1+i}, v{AC1+i}, v{AC2+i}")
    a(f"s_lshl_b32 s{sT0}, s{sWAVE}, 1")
    a(f"s_mul_i32 s{sT0}, s{sWAVE}, 5120")
    a(f"v_add_u32 v{vTT0}, s{sT0}, v{vD4}")
    for T in range(5): a.ds(f"ds_write_b128 v{vTT0}, {vr(AC1+4*T,4)} offset:{TSLOT[1]-81920+65536-65536+0 if False else 0 + T*1024 + 0}", "x")
    a.lg_all()
    a("s_barrier")
    a("s_endpgm")
    a.label(LB)
    a.c("---- B waves: combine and store")
    a.vm_all()
    a(f"s_and_b32 s{sT0}, s{sWAVE}, 3")
    a(f"s_mul_i32 s{sT1}, s{sT0}, 5120")
    a(f"v_add_u32 v{vTT0}, s{sT1}, v{vD4}")
    a(f"s_lshl_b32 s{sT1}, s{sRB}, 2")
    a(f"s_add_u32 s{sT0}, s{sT0}, s{sT1}")
    a(f"s_mul_i32 s{sT0}, s{sT0}, {16*1280}")
    a(f"s_mul_i32 s{sT1}, s{sCG}, 160")
    a(f"s_add_u32 s{sT0}, s{sT0}, s{sT1}")
    a(f"v_and_b32 v{vWL}, 15, v0")
    a(f"v_mul_u32_u24 v{vWL}, 1280, v{vWL}")
    a(f"v_lshrrev_b32 v{vWH}, 4, v0")
    a(f"v_lshl_add_u32 v{vTT1}, v{vWH}, 3, v{vWL}")
    a(f"v_lshl_add_u32 v{vWL}, v{vWH}, 4, v{vWL}")
    omg = vWH
    a(f"v_sub_f32 v{omg}, 1.0, v{vG}")
    a(f"v_cvt_pk_bf16_f32 v{omg}, v{omg}, v{omg}")
    a(f"v_and_b32 v{omg}, 0xffff0000, v{omg}")
    for T in range(5):
        for r in range(4):
            src = vB2 + 2*T + r//2
            tmp = TW + T*4 + r
            if r % 2 == 0: a(f"v_lshlrev_b32 v{tmp}, 16, v{src}")
            else: a(f"v_and_b32 v{tmp}, 0xffff0000, v{src}")
            a(f"v_add_f32 v{AC1+4*T+r}, v{AC1+4*T+r}, v{tmp}")
            a(f"v_mul_f32 v{AC2+4*T+r}, v{vG}, v{AC2+4*T+r}")
    a("s_barrier")
    for T in range(5): a.ds(f"ds_read_b128 {vr(TW+4*T,4)}, v{vTT0} offset:{T*1024}", f"x{T}")
    for T in range(5):
        a.wait_lg(f"x{T}")
        for r in range(4):
            a(f"v_add_f32 v{AC1+4*T+r}, v{AC1+4*T+r}, v{TW+4*T+r}")
        for r in range(4):
            a(f"v_fma_f32 v{AC2+4*T+r}, v{omg}, v{AC1+4*T+r}, v{AC2+4*T+r}")
        o = TW + 20 + 2*T
        a(f"v_cvt_pk_bf16_f32 v{o}, v{AC2+4*T}, v{AC2+4*T+1}")
        a(f"v_cvt_pk_bf16_f32 v{o+1}, v{AC2+4*T+2}, v{AC2+4*T+3}")
        if T == 1: a(f"buffer_store_dwordx4 {vr(TW+20,4)}, v{vWL}, {srd(S_OUT)}, s{sT0} offen")
        if T == 3: a(f"buffer_store_dwordx4 {vr(TW+24,4)}, v{vWL}, {srd(S_OUT)}, s{sT0} offen offset:64")
        if T == 4: a(f"buffer_store_dwordx2 {vr(TW+28,2)}, v{vTT1}, {srd(S_OUT)}, s{sT0} offen offset:128")

def tail3k(a):
    tail_setup(a)
    tail_dma(a, 0)
    for s in range(12): tail_aload(a, s)
    tail_dma(a, 1)
    tail_small_loads(a)
    for s in range(12, 32): tail_aload(a, s)
    tail_dma(a, 2)
    L = a.newlabel("noa")
    a(f"s_cmp_eq_u32 s{sKH}, 1")
    a(f"s_cbranch_scc1 {L}")
    for s in range(32, 36): tail_aload(a, s, definite=False)
    a.label(L)
    tail_main(a, 3)

HEADER = open("cdna_kernels/" + NAME + ".s.ref").read().split("; Override launch")[0]

def build3k(fn):
    a = Asm()
    a('.amdgcn_target "amdgcn-amd-amdhsa--gfx950"')
    kernel_wrap(a, "p1_kernel", phase1)
    kernel_wrap(a, "att_kernel", attention)
    kernel_wrap(a, "tail_kernel", tail3k)
    errs = check_hazards(a.lines)
    for e in errs: print("HAZARD", e)
    hdr = HEADER
    for k in ("p1", "att", "tail"):
        hdr += f"; @launch kernel={k}_kernel grid=(256,1,1) block=(512,1,1) lds=163840\n"
    open(fn, "w").write(hdr + a.text())

if __name__ == "__main__":
    build3k(sys.argv[1] if len(sys.argv) > 1 else "k3.s")
```

```python
import re

class Asm:
    def __init__(self):
        self.lines = []
        self.vm = []
        self.lg = []
        self.uid = 0
    def __call__(self, s):
        for ln in s.split("\n"):
            ln = ln.strip()
            if ln:
                self.lines.append(ln)
    def c(self, s):
        self.lines.append("; " + s)
    def label(self, name):
        self.lines.append(name + ":")
    def newlabel(self, base):
        self.uid += 1
        return f"L_{base}_{self.uid}"
    def vmem(self, s, tag, definite=True):
        self(s)
        self.vm.append((tag, definite))
    def _vm_n(self, tags):
        if isinstance(tags, str): tags = [tags]
        last = -1
        for i, (t, d) in enumerate(self.vm):
            if t in tags: last = i
        if last < 0: return None
        return sum(1 for (t, d) in self.vm[last+1:] if d), last
    def wait_vm(self, tags, lg0=False):
        r = self._vm_n(tags)
        parts = []
        if r is not None:
            n, last = r
            assert n <= 63, n
            parts.append(f"vmcnt({n})")
            self.vm = self.vm[last+1:]
        if lg0:
            parts.append("lgkmcnt(0)")
            self.lg = []
        if parts:
            self("s_waitcnt " + " ".join(parts))
    def vm_all(self):
        self("s_waitcnt vmcnt(0)")
        self.vm = []
    def ds(self, s, tag):
        self(s)
        self.lg.append(tag)
    def wait_lg(self, tags):
        if isinstance(tags, str): tags = [tags]
        last = -1
        for i, t in enumerate(self.lg):
            if t in tags: last = i
        if last < 0: return
        n = len(self.lg) - last - 1
        if n > 15:
            n = 15
            last = len(self.lg) - 16
        self(f"s_waitcnt lgkmcnt({n})")
        self.lg = self.lg[last+1:]
    def lg_all(self):
        self("s_waitcnt lgkmcnt(0)")
        self.lg = []
    stamps = False
    stampreg = 17
    nstamp = 0
    def stamp(self, name=""):
        if not self.stamps: return
        self.c(f"stamp {self.nstamp} {name}")
        self("s_memtime s[98:99]")
        self("s_waitcnt lgkmcnt(0)")
        self.lg = []
        self(f"v_writelane_b32 v{self.stampreg}, s98, {self.nstamp}")
        self.stampnames.append(name)
        self.nstamp += 1
    def stamp_move(self, reg):
        if not self.stamps: return
        self(f"v_mov_b32 v{reg}, v{self.stampreg}")
        self.stampreg = reg
    def rstamp(self, idx):
        if not self.stamps: return
        self("s_memrealtime s[98:99]")
        self("s_waitcnt lgkmcnt(0)")
        self.lg = []
        self(f"v_writelane_b32 v{self.stampreg}, s98, {idx}")
    def stamp_flush(self, srd, base):
        if not self.stamps: return
        self.rstamp(63)
        self("s_lshl_b32 s98, s2, 3")
        self("s_add_u32 s98, s98, s48")
        self("s_lshl_b32 s98, s98, 8")
        self(f"s_add_u32 s98, s98, {base}")
        self("v_lshlrev_b32 v0, 2, v0")
        self(f"buffer_store_dword v{self.stampreg}, v0, {srd}, s98 offen")
    def text(self):
        out = []
        for ln in self.lines:
            if ln.endswith(":") or ln.startswith(".") or ln.startswith(";"):
                out.append(ln)
            else:
                out.append("    " + ln)
        return "\n".join(out) + "\n"

_reg = re.compile(r"\b([vsa])(\d+)\b|\b([vsa])\[(\d+):(\d+)\]|\b(vcc|exec|m0|scc)\b")
def regs_of(tok):
    out = set()
    for m in _reg.finditer(tok):
        if m.group(1): out.add(m.group(1) + m.group(2))
        elif m.group(3):
            for i in range(int(m.group(4)), int(m.group(5)) + 1): out.add(m.group(3) + str(i))
        else: out.add(m.group(6))
    return out
TRANS = ("v_exp_f32","v_log_f32","v_rcp_f32","v_rsq_f32","v_sqrt_f32","v_sin_f32","v_cos_f32","v_rcp_iflag_f32","v_exp_f16")
def split_ops(rest):
    ops=[];d=0;cur=""
    for ch in rest:
        if ch=="[": d+=1
        if ch=="]": d-=1
        if ch=="," and d==0: ops.append(cur.strip()); cur=""
        else: cur+=ch
    if cur.strip(): ops.append(cur.strip())
    return ops
def parse(ln):
    ln = ln.split(";")[0].strip()
    if not ln or ln.endswith(":") or ln.startswith("."): return None
    p = ln.split(None,1)
    op = p[0]; rest = p[1] if len(p)>1 else ""
    ops = split_ops(rest)
    I = dict(op=op, text=ln, dst=set(), src=set(), kind="other", srcC=set(), srcAB=set(), data=set())
    if op.startswith("v_mfma"):
        I["kind"]="mfma"; I["dst"]=regs_of(ops[0]); I["srcAB"]=regs_of(ops[1])|regs_of(ops[2]); I["srcC"]=regs_of(ops[3]); I["src"]=I["srcAB"]|I["srcC"]
        I["passes"] = 4 if "16x16" in op else 8
        if "_2b" in op: I["passes"]=16
    elif op.startswith("v_"):
        I["kind"]="valu"
        if op.startswith("v_cmp"):
            I["dst"]=regs_of(ops[0]);
            if op.startswith("v_cmpx"): I["dst"]|={"exec"}
            for o in ops[1:]: I["src"]|=regs_of(o)
        elif op.startswith("v_permlane") and "swap" in op:
            I["dst"]=regs_of(ops[0])|regs_of(ops[1]); I["src"]=set(I["dst"]); I["perm"]=True
        elif op.startswith(("v_add_co","v_sub_co","v_addc_co","v_subb_co")):
            I["dst"]=regs_of(ops[0])|regs_of(ops[1])
            for o in ops[2:]: I["src"]|=regs_of(o)
        else:
            I["dst"]=regs_of(ops[0])
            for o in ops[1:]: I["src"]|=regs_of(o)
            if op.startswith(("v_fmac","v_dot2c","v_pk_fmac")): I["src"]|=I["dst"]
            if op.startswith("v_cndmask") and len(ops)==3: I["src"]|={"vcc"}
        if "dpp" in ln or "row_" in ln or "quad_perm" in ln: I["dpp"]=True; I["src"]|=I["dst"]
        if op.replace("_e32","").replace("_e64","") in TRANS: I["trans"]=True
        if op.startswith(("v_readfirstlane","v_readlane")): I["rdlane"]=True
    elif op.startswith(("buffer_","global_")):
        I["kind"]="vmem"
        isstore = "store" in op or ("atomic" in op)
        islds = re.search(r"\blds\b", ln) is not None
        if op.startswith("buffer_inv") or op.startswith("buffer_wbl2"): return I
        if islds:
            for o in ops: I["src"]|=regs_of(o)
            I["src"]|={"m0"}; I["dma"]=True
        elif isstore:
            for o in ops: I["src"]|=regs_of(o)
            if op.startswith("buffer_"): I["data"]=regs_of(ops[0])
            else: I["data"]=regs_of(ops[1])
            if "x3" in op or "x4" in op: I["wide"]=True
        else:
            I["dst"]=regs_of(ops[0])
            for o in ops[1:]: I["src"]|=regs_of(o)
    elif op.startswith("ds_"):
        I["kind"]="ds"
        if "read" in op or "permute" in op or "swizzle" in op:
            I["dst"]=regs_of(ops[0])
            for o in ops[1:]: I["src"]|=regs_of(o)
        else:
            for o in ops: I["src"]|=regs_of(o)
    elif op.startswith("s_"):
        I["kind"]="salu"
        if op=="s_nop": I["nop"]=int(ops[0],0)+1
        elif op.startswith(("s_waitcnt","s_barrier","s_branch","s_cbranch","s_endpgm","s_setprio","s_sleep","s_cmp")):
            for o in ops: I["src"]|=regs_of(o)
        else:
            if ops: I["dst"]=regs_of(ops[0])
            for o in ops[1:]: I["src"]|=regs_of(o)
    return I

def check_hazards(lines):
    ins=[]
    for idx,ln in enumerate(lines):
        I=parse(ln)
        if I: I["line"]=idx; ins.append(I)
    errs=[]
    for i,B in enumerate(ins):
        dist=0
        for j in range(i-1, max(-1,i-24), -1):
            A=ins[j]
            need=0; why=""
            vd={r for r in A["dst"] if r[0] in "va" and r not in("vcc",)}
            sd={r for r in A["dst"] if r[0]=="s" or r in("vcc","exec","m0")}
            if A["kind"]=="valu":
                if B["kind"]=="mfma" and vd & B["src"]: need,why=2,"valu->mfma"
                if B["kind"]=="mfma" and "exec" in A["dst"]: need,why=4,"valu exec->mfma"
                if A.get("trans") and B["kind"] in("valu",) and not B.get("trans") and vd & B["src"]: need,why=max(need,1),"trans->valu"
                if A.get("trans") and B["kind"]=="valu" and B.get("trans") and vd & B["src"]: need,why=max(need,1),"trans->trans(conservative)"
                if B.get("perm") and vd & B["src"]: need,why=max(need,2),"valu->permlane"
                if B.get("dpp") and vd & B["src"]: need,why=max(need,2),"valu->dpp"
                if B.get("rdlane") and vd & B["src"]: need,why=max(need,1),"valu->readlane"
                if B["kind"]=="vmem" and (sd & B["src"]): need,why=max(need,5),"valu sgpr->vmem"
                if B["kind"]=="valu" and (sd & B["src"]): need,why=max(need,2),"valu sgpr->valu"
                if B["kind"]=="salu" and (sd & B["src"]): need,why=max(need,1),"valu sgpr->salu(cons)"
                if "exec" in A["dst"] and B.get("dpp"): need,why=max(need,5),"valu exec->dpp"
                if "exec" in A["dst"] and (B.get("rdlane") or B.get("perm")): need,why=max(need,4),"valu exec->lane"
            if A["kind"]=="mfma":
                p=A["passes"]
                rd={4:8,8:12,16:20}[p]
                if B["kind"] in("valu","vmem","ds") and (vd & (B["src"]|B["dst"])): need,why=rd,"mfma->valu/mem"
                if B["kind"]=="mfma":
                    if vd & B["srcAB"]: need,why=rd,"mfma->mfma AB"
                    elif vd & B["srcC"]:
                        if not (A["dst"]==B["srcC"] and A["op"]==B["op"]): need,why=max(need,{4:6,8:10,16:18}[p]),"mfma->mfma C overlap"
                    elif vd & B["dst"]: need,why=max(need,{4:6,8:10,16:18}[p]),"mfma->mfma WAW(cons)"
                if B["kind"]=="valu" and (A["srcC"] & B["dst"]): need,why=max(need,{4:3,8:7,16:15}[p]),"mfma C WAR"
            if A["kind"]=="salu" and "m0" in A["dst"] and B.get("dma"): need,why=max(need,1),"m0->dma"
            if A["kind"]=="vmem" and A.get("wide") and (A["data"] & B["dst"]) and B["kind"] in("valu","mfma"): need,why=max(need,2),"store data WAR"
            if need>dist:
                errs.append(f"line {B['line']}: '{B['text']}' needs {need} ws after '{A['text']}' (has {dist}) [{why}]")
            dist += A.get("nop",1)
    return errs
```

```python
import sys, math, struct, json
from emit import Asm, check_hazards

NAME = "gated_mix__softmax_full_mha__dense_activation_squared_relu__prompt"
QF_OFF = 0
KV_OFF = 2621440
KV_T = 2560
KV_L = 3072
KV_H = 64 * KV_T
AF_OFF = KV_OFF + 32 * KV_H
AF_T = 68 * 1024
WF_OFF = AF_OFF + 128 * AF_T
G_OFF = WF_OFF + 8 * 68 * 5120
FLAG_OFF = G_OFF + 8192
STAMP_OFF = FLAG_OFF + 16384
WS_USED = STAMP_OFF + 3 * 2048 * 256
QSCALE = (20 ** -0.5) * math.log2(math.e)
def f32hex(x): return "0x%08x" % struct.unpack("<I", struct.pack("<f", x))[0]

OPT = dict(fine=False, prio=True, pf=True)

S_X, S_WQ, S_W1, S_WS, S_OUT, S_M1, S_M2 = 8, 12, 16, 20, 24, 28, 32
P_WO, P_B1, P_W2, P_B2, P_GW, P_DBG = 36, 38, 40, 42, 44, 46
sWAVE, sM, sJ, sT0, sT1, sT2, sT3, sT4, sT5 = 48, 49, 50, 51, 52, 53, 54, 55, 56
sLDSW, sOffX, sOffW, sScale, sXCD, sLO, sHI = 57, 58, 59, 60, 61, 62, 63
sEXV, sSAVE = 64, 66
sH, sQB, sKVG, sKH, sKVM = 68, 69, 70, 71, 72
sRB, sCG, sWG, sAG, sTWM = 73, 74, 75, 76, 77
sDM, sW1M, sW1G, sEPI, sPPC, sPD0, sPD1, sPFX, sPFW, sDM2 = 78, 79, 80, 81, 82, 83, 84, 85, 86, 87
sSPIN = 96
S_DBG = 92
def srd(b): return f"s[{b}:{b+3}]"
def vr(b, n=1): return f"v{b}" if n == 1 else f"v[{b}:{b+n-1}]"

def mk_srd(a, base, ptr, size):
    a(f"s_mov_b32 s{base}, s{ptr}")
    a(f"s_mov_b32 s{base+1}, s{ptr+1}")
    a(f"s_mov_b32 s{base+2}, {size}")
    a(f"s_mov_b32 s{base+3}, 0x00020000")

def emit_list(a, lst):
    for it in lst:
        if it[0] == "s": a(it[1])
        elif it[0] == "v": a.vmem(it[1], it[2], definite=(it[3] if len(it) > 3 else True))
        elif it[0] == "d": a.ds(it[1], it[2])
        elif it[0] == "f": it[1]()
def take(pend):
    k = 1
    while k < len(pend) and pend[k-1][0] == "s": k += 1
    out = pend[:k]; del pend[:k]
    return out

def prologue(a):
    a("s_cmp_ge_u32 s2, 256")
    a("s_cbranch_scc1 L_exit")
    a("s_load_dwordx16 s[68:83], s[0:1], 0")
    a("s_load_dwordx8 s[84:91], s[0:1], 64")
    a(f"v_lshrrev_b32 v1, 6, v0")
    a(f"s_and_b32 s{sXCD}, s2, 7")
    a(f"v_readfirstlane_b32 s{sWAVE}, v1")
    a(f"s_lshr_b32 s{sLO}, s2, 3")
    a(f"s_and_b32 s{sLO}, s{sLO}, 7")
    a(f"s_lshr_b32 s{sHI}, s2, 6")
    a(f"v_and_b32 v0, 63, v0")
    a(f"s_mov_b32 s{sSPIN}, 0")
    a(f"s_and_b32 s{sM}, s{sXCD}, 1")
    a(f"s_lshl_b32 s{sM}, s{sM}, 3")
    a(f"s_add_u32 s{sM}, s{sM}, s{sLO}")
    a(f"s_lshr_b32 s{sJ}, s{sXCD}, 1")
    a(f"s_lshl_b32 s{sJ}, s{sJ}, 2")
    a(f"s_add_u32 s{sJ}, s{sJ}, s{sHI}")
    p1_setup(a)
    a("s_waitcnt lgkmcnt(0)")
    mk_srd(a, S_X, 68, 2621440)
    mk_srd(a, S_WQ, 70, 2457600)
    mk_srd(a, S_M1, 84, 1280)
    mk_srd(a, S_W1, 76, 1966080)
    mk_srd(a, S_WS, 90, WS_USED)
    mk_srd(a, S_OUT, 86, 2621440)
    mk_srd(a, S_DBG, 88, 256)
    for dst, src in ((P_WO, 72), (P_B1, 78), (P_W2, 80), (P_B2, 82)):
        a(f"s_mov_b64 s[{dst}:{dst+1}], s[{src}:{src+1}]")

def wave0(a, body, w=0):
    L = a.newlabel("w0")
    a(f"s_cmp_lg_u32 s{sWAVE}, {w}")
    a(f"s_cbranch_scc1 {L}")
    body()
    a.label(L)

def flag_offsets(a, t):
    a(f"s_lshl_b32 s{sT0}, s{sJ}, 7")
    a(f"s_lshl_b32 s{sT1}, s{sM}, 2")
    a(f"s_add_u32 s{sT0}, s{sT0}, s{sT1}")
    a(f"v_mov_b32 v{t}, s{sT0}")
    a(f"s_lshl_b32 s{sT0}, s{sM}, 7")
    a(f"s_lshl_b32 s{sT1}, s{sJ}, 2")
    a(f"s_add_u32 s{sT0}, s{sT0}, s{sT1}")
    a(f"s_add_u32 s{sT0}, s{sT0}, 2048")
    a(f"v_writelane_b32 v{t}, s{sT0}, 1")
    a(f"s_lshl_b32 s{sT0}, s{sLO}, 7")
    a(f"s_lshl_b32 s{sT1}, s{sXCD}, 4")
    a(f"s_add_u32 s{sT0}, s{sT0}, s{sT1}")
    a(f"s_lshl_b32 s{sT1}, s{sHI}, 2")
    a(f"s_add_u32 s{sT0}, s{sT0}, s{sT1}")
    a(f"s_add_u32 s{sT0}, s{sT0}, 4096")
    a(f"v_writelane_b32 v{t}, s{sT0}, 2")

def flags_clear(a, t):
    def body():
        flag_offsets(a, t)
        a(f"v_mov_b32 v{t+1}, 0")
        a(f"s_mov_b32 s{sT0}, {FLAG_OFF}")
        a("s_mov_b64 exec, 7")
        a.vmem(f"buffer_store_dword v{t+1}, v{t}, {srd(S_WS)}, s{sT0} offen sc1", "clr", definite=False)
        a("s_mov_b64 exec, -1")
    wave0(a, body)

def flags_count_in(a, t):
    def body():
        a(f"s_and_b32 s{sT0}, s2, 63")
        a(f"s_lshl_b32 s{sT0}, s{sT0}, 2")
        a(f"v_mov_b32 v{t}, s{sT0}")
        a(f"v_mov_b32 v{t+1}, 1")
        a("s_mov_b64 exec, 1")
        a.vmem(f"buffer_atomic_add v{t+1}, v{t}, {srd(S_DBG)}, 0 offen sc1", "cnt", definite=False)
        a("s_mov_b64 exec, -1")
    wave0(a, body)

def flag_set(a, which, t):
    def body():
        flag_offsets(a, t)
        a(f"v_mov_b32 v{t+1}, 1")
        a(f"s_mov_b32 s{sT0}, {FLAG_OFF}")
        a(f"s_mov_b64 exec, {1 << which}")
        a.vmem(f"buffer_store_dword v{t+1}, v{t}, {srd(S_WS)}, s{sT0} offen sc1", "flag", definite=False)
        a("s_mov_b64 exec, -1")
    wave0(a, body)

def poll(a, kind, t, d, stage):
    def addr():
        if kind == "init":
            a(f"v_lshlrev_b32 v{t}, 2, v0")
        elif kind == "C":
            a(f"v_and_b32 v{t}, 31, v0")
            a(f"v_lshlrev_b32 v{t}, 2, v{t}")
            a(f"s_lshr_b32 s{sT5}, s{sRB}, 2")
            a(f"s_lshl_b32 s{sT5}, s{sT5}, 7")
            a(f"s_add_u32 s{sT5}, s{sT5}, {FLAG_OFF + 4096}")
        else:
            a(f"v_lshrrev_b32 v{t}, 2, v0")
            if kind == "A": a(f"v_min_u32 v{t}, 14, v{t}")
            a(f"v_lshlrev_b32 v{t}, 7, v{t}")
            a(f"v_and_b32 v{d}, 3, v0")
            a(f"v_lshl_add_u32 v{t}, v{d}, 4, v{t}")
            a(f"s_mov_b32 s{sT5}, {FLAG_OFF + (2048 if kind == 'B' else 0)}")
    def load():
        if kind == "init": return f"buffer_load_dword v{d}, v{t}, {srd(S_DBG)}, 0 offen sc1"
        if kind == "C": return f"buffer_load_dword v{d}, v{t}, {srd(S_WS)}, s{sT5} offen sc1"
        return f"buffer_load_dwordx4 {vr(d,4)}, v{t}, {srd(S_WS)}, s{sT5} offen sc1"
    def issue():
        addr()
        a.vmem(load(), "poll" + kind, definite=False)
    def check():
        L = a.newlabel("spin"); LD = a.newlabel("got")
        st = list(a.vm)
        a.wait_vm("poll" + kind)
        a.label(L)
        if kind in ("A", "B"):
            a(f"v_and_b32 v{d}, v{d}, v{d+1}")
            a(f"v_and_b32 v{d+2}, v{d+2}, v{d+3}")
            a(f"v_and_b32 v{d}, v{d}, v{d+2}")
        a(f"v_cmp_eq_u32 vcc, {4 if kind == 'init' else 1}, v{d}")
        a("s_nop 1")
        a("s_cmp_eq_u64 vcc, -1")
        a(f"s_cbranch_scc1 {LD}")
        a(f"s_add_u32 s{sSPIN}, s{sSPIN}, 1")
        a(f"s_cmp_gt_u32 s{sSPIN}, 0x100000")
        a(f"s_cbranch_scc1 {LD}")
        a("s_sleep 2")
        addr()
        a(load())
        a("s_waitcnt vmcnt(0)")
        a(f"s_branch {L}")
        a.label(LD)
        a.vm = [e for e in st if e[0] != "poll" + kind]
    wave0(a, issue if stage == "issue" else check)

XR, ACC, WF = 96, 64, 32
vX0, vX1, vW0, vW1, vU0, vU1, vU2 = 1, 2, 3, 4, 5, 6, 7
vXA, vTA, vTB, vB1, vEA, vPP, vPF = 8, 10, 14, 18, 24, 28, 30
PK = [44, 60, 92, 76]
PP_LDS = 131072

def p1_setup(a):
    t0, t1, t2, t3 = 32, 33, 34, 35
    a(f"s_lshl_b32 s{sLDSW}, s{sWAVE}, 12")
    a(f"s_mul_i32 s{sOffX}, s{sM}, {128*1280}")
    a(f"s_lshl_b32 s{sOffW}, s{sJ}, 8")
    a(f"v_lshrrev_b32 v{t0}, 3, v0")
    a(f"s_lshl_b32 s{sT0}, s{sWAVE}, 4")
    a(f"v_add_u32 v{t0}, s{sT0}, v{t0}")
    a(f"v_mul_u32_u24 v{t0}, 1280, v{t0}")
    a(f"v_and_b32 v{t1}, 7, v0")
    a(f"v_lshrrev_b32 v{t2}, 4, v0")
    a(f"v_xor_b32 v{t1}, v{t1}, v{t2}")
    a(f"v_lshl_add_u32 v{vX0}, v{t1}, 4, v{t0}")
    a(f"v_xor_b32 v{t1}, 4, v{t1}")
    a(f"v_lshl_add_u32 v{vX1}, v{t1}, 4, v{t0}")
    a(f"v_add_u32 v{vX1}, {8*1280-1024}, v{vX1}")
    a(f"s_lshl_b32 s{sT0}, s{sWAVE}, 3")
    a(f"v_add_u32 v{t0}, s{sT0}, v{t2}")
    a(f"v_mul_u32_u24 v{t0}, 3840, v{t0}")
    a(f"s_and_b32 s{sT0}, s{sWAVE}, 1")
    a(f"s_lshl_b32 s{sT0}, s{sT0}, 2")
    a(f"v_or_b32 v{t1}, s{sT0}, v{t2}")
    a(f"v_bfe_u32 v{t3}, v0, 1, 3")
    a(f"v_xor_b32 v{t1}, v{t1}, v{t3}")
    a(f"v_lshlrev_b32 v{t1}, 5, v{t1}")
    a(f"v_and_b32 v{t3}, 1, v0")
    a(f"v_lshl_add_u32 v{t1}, v{t3}, 4, v{t1}")
    a(f"v_add_u32 v{vW0}, v{t0}, v{t1}")
    a(f"v_add_u32 v{vW1}, {4*3840-1024}, v{vW0}")
    a(f"v_lshlrev_b32 v36, 4, v0")
    a(f"v_lshlrev_b32 v37, 2, v0")

def p1_dma_list(c, mode="q"):
    slot = (c % 4) * 32768
    if c < 10:
        out = [("s", f"s_add_u32 m0, s{sLDSW}, {slot}"),
               ("s", f"s_add_u32 s{sDM}, s{sOffX}, {c*128}"),
               ("v", f"buffer_load_dwordx4 v{vX0}, {srd(S_X)}, s{sDM} offen lds", f"c{c}"),
               ("v", f"buffer_load_dwordx4 v{vX1}, {srd(S_X)}, s{sDM} offen offset:1024 lds", f"c{c}")]
        if mode != "x":
            out += [("s", f"s_add_u32 m0, s{sLDSW}, {slot+2048}"),
                    ("s", f"s_add_u32 s{sDM}, s{sOffW}, {c*64*3840}"),
                    ("v", f"buffer_load_dwordx4 v{vW0}, {srd(S_WQ)}, s{sDM} offen lds", f"c{c}"),
                    ("v", f"buffer_load_dwordx4 v{vW1}, {srd(S_WQ)}, s{sDM} offen offset:1024 lds", f"c{c}")]
        return out
    cc = c - 10
    out = [("s", f"s_add_u32 m0, s{sW1M}, {slot}"),
           ("s", f"s_add_u32 s{sDM}, s{sW1G}, {cc*128*3072}")]
    for e, v in enumerate((vU0, vU1, vU2)):
        off = f" offset:{e*1024}" if e else ""
        out.append(("v", f"buffer_load_dwordx4 v{v}, {srd(S_W1)}, s{sDM} offen{off} lds", f"c{c}"))
    return out

vPX, vPW, vP1 = 248, 249, 250
def pf_setup(a):
    t0, t1 = 32, 33
    a(f"s_lshr_b32 s{sT0}, s2, 3")
    a(f"s_lshl_b32 s{sT0}, s{sT0}, 3")
    a(f"s_add_u32 s{sT0}, s{sT0}, s{sWAVE}")
    a(f"s_and_b32 s{sT1}, s{sXCD}, 1")
    a(f"s_lshl_b32 s{sT1}, s{sT1}, 8")
    a(f"s_add_u32 s{sT1}, s{sT1}, s{sT0}")
    a(f"s_mul_i32 s{sPFX}, s{sT1}, {4*1280}")
    a(f"v_and_b32 v{t0}, 3, v0")
    a(f"v_mul_u32_u24 v{t0}, 1280, v{t0}")
    a(f"v_lshrrev_b32 v{t1}, 2, v0")
    a(f"v_min_u32 v{t1}, 2, v{t1}")
    a(f"v_lshl_add_u32 v{vPX}, v{t1}, 7, v{t0}")
    a(f"s_lshr_b32 s{sT1}, s{sT0}, 2")
    a(f"s_mul_i32 s{sPFW}, s{sT1}, 3840")
    a(f"s_and_b32 s{sT1}, s{sT0}, 3")
    a(f"s_lshl_b32 s{sT1}, s{sT1}, 8")
    a(f"s_add_u32 s{sPFW}, s{sPFW}, s{sT1}")
    a(f"s_lshr_b32 s{sT2}, s{sXCD}, 1")
    a(f"s_lshl_b32 s{sT1}, s{sT2}, 10")
    a(f"s_add_u32 s{sPFW}, s{sPFW}, s{sT1}")
    a(f"v_lshrrev_b32 v{t0}, 1, v0")
    a(f"v_min_u32 v{t0}, 2, v{t0}")
    a(f"v_mul_u32_u24 v{t0}, {64*3840}, v{t0}")
    a(f"v_and_b32 v{t1}, 1, v0")
    a(f"v_lshl_add_u32 v{vPW}, v{t1}, 7, v{t0}")
    a(f"s_mul_i32 s{sT1}, s{sT0}, {3*3072}")
    a(f"s_mul_i32 s{sT2}, s{sT2}, 768")
    a(f"s_add_u32 s{sT1}, s{sT1}, s{sT2}")
    a(f"v_lshrrev_b32 v{t0}, 3, v0")
    a(f"v_min_u32 v{t0}, 2, v{t0}")
    a(f"v_mul_u32_u24 v{t0}, 3072, v{t0}")
    a(f"v_and_b32 v{t1}, 7, v0")
    a(f"v_min_u32 v{t1}, 5, v{t1}")
    a(f"v_lshl_add_u32 v{vP1}, v{t1}, 7, v{t0}")
    a(f"v_add_u32 v{vP1}, s{sT1}, v{vP1}")
def pf_list(c0):
    return [("v", f"buffer_load_dword v252, v{vPX}, {srd(S_X)}, s{sPFX} offen offset:{c0*128}", "pf"),
            ("s", f"s_add_u32 s{sDM2}, s{sPFW}, {c0*64*3840}"),
            ("v", f"buffer_load_dword v253, v{vPW}, {srd(S_WQ)}, s{sDM2} offen", "pf")]
def pf_w1(): return [("v", f"buffer_load_dword v254, v{vP1}, {srd(S_W1)}, 0 offen", "pf")]

def p1_setup2(a):
    t0, t1, t2, t3, t4, t5 = 32, 33, 34, 35, 38, 39
    a(f"s_mul_i32 s{sW1M}, s{sWAVE}, 3072")
    a(f"s_mul_i32 s{sW1G}, s{sJ}, 192")
    a(f"s_and_b32 s{sT0}, s{sWAVE}, 3")
    a(f"s_lshl_b32 s{sT0}, s{sT0}, 13")
    a(f"v_bfe_u32 v{t0}, v0, 3, 1")
    a(f"v_lshlrev_b32 v{t0}, 10, v{t0}")
    a(f"v_and_b32 v{t1}, 7, v0")
    a(f"v_lshl_add_u32 v{t0}, v{t1}, 7, v{t0}")
    a(f"v_add_u32 v{t0}, s{sT0}, v{t0}")
    a(f"v_lshrrev_b32 v{t1}, 4, v0")
    a(f"v_bfe_u32 v{t2}, v0, 1, 3")
    a(f"v_xor_b32 v{t2}, v{t1}, v{t2}")
    a(f"v_lshl_add_u32 v{vXA}, v{t2}, 4, v{t0}")
    a(f"v_xor_b32 v{vXA+1}, 64, v{vXA}")
    a(f"v_bfe_u32 v{t2}, v0, 2, 2")
    a(f"v_lshlrev_b32 v{t0}, 12, v{t1}")
    a(f"v_lshl_add_u32 v{t0}, v{t2}, 8, v{t0}")
    a(f"v_and_b32 v{t3}, 3, v0")
    a(f"v_lshl_add_u32 v{t0}, v{t3}, 3, v{t0}")
    a(f"v_bfe_u32 v{t4}, v0, 4, 1")
    a(f"v_lshl_add_u32 v{t5}, v{t4}, 2, v{t2}")
    a(f"s_lshr_b32 s{sT0}, s{sWAVE}, 2")
    a(f"s_lshl_b32 s{sT1}, s{sT0}, 2")
    a(f"v_xor_b32 v{t5}, s{sT1}, v{t5}")
    for T in range(4):
        a(f"v_xor_b32 v{vTA+T}, {T}, v{t5}")
        a(f"v_lshl_add_u32 v{vTA+T}, v{vTA+T}, 5, v{t0}")
    a(f"v_lshrrev_b32 v{t0}, 5, v0")
    a(f"v_lshlrev_b32 v{t0}, 4, v{t0}")
    a(f"v_lshl_add_u32 v{t0}, v{t4}, 2, v{t0}")
    a(f"v_add_u32 v{t0}, v{t0}, v{t2}")
    a(f"v_mul_u32_u24 v{t0}, 192, v{t0}")
    a(f"v_lshl_add_u32 v{t0}, v{t3}, 3, v{t0}")
    a(f"s_mul_i32 s{sT1}, s{sT0}, 3")
    for T in range(3):
        a(f"s_add_u32 s{sT2}, s{sT1}, {T}")
        a(f"v_xor_b32 v{vTB+T}, s{sT2}, v{t4}")
        a(f"v_lshl_add_u32 v{vTB+T}, v{vTB+T}, 5, v{t0}")
    mk_srd(a, S_M2, P_B1, 3072)
    a(f"s_mul_i32 s{sT2}, s{sT0}, 96")
    a(f"s_add_u32 s{sT1}, s{sW1G}, s{sT2}")
    a(f"v_lshlrev_b32 v{t1}, 3, v{t1}")
    for T in range(3):
        a.vmem(f"buffer_load_dwordx2 {vr(vB1+2*T,2)}, v{t1}, {srd(S_M2)}, s{sT1} offen offset:{32*T}", "b1")
    for e, v in enumerate((vU0, vU1, vU2)):
        a(f"v_add_u32 v{t0}, {e*64}, v0")
        a(f"v_mul_u32_u24 v{t1}, 5462, v{t0}")
        a(f"v_lshrrev_b32 v{t1}, 16, v{t1}")
        a(f"v_mul_u32_u24 v{t2}, 12, v{t1}")
        a(f"v_sub_u32 v{t2}, v{t0}, v{t2}")
        a(f"v_bfe_u32 v{t3}, v{t1}, 2, 1")
        a(f"v_bfe_u32 v{t4}, v{t1}, 3, 1")
        a(f"v_and_b32 v{t5}, 3, v{t1}")
        a(f"v_lshl_add_u32 v{t5}, v{t3}, 3, v{t5}")
        a(f"v_lshl_add_u32 v{t5}, v{t4}, 2, v{t5}")
        a(f"s_lshl_b32 s{sT0}, s{sWAVE}, 4")
        a(f"v_add_u32 v{t5}, s{sT0}, v{t5}")
        a(f"v_mul_u32_u24 v{t5}, 3072, v{t5}")
        a(f"v_lshlrev_b32 v{t3}, 1, v{t3}")
        a(f"v_xor_b32 v{t2}, v{t2}, v{t3}")
        a(f"v_lshl_add_u32 v{v}, v{t2}, 4, v{t5}")
        if e: a(f"v_subrev_u32 v{v}, {e*1024}, v{v}")

def epi_setup(a):
    t0, t1, t2, t3, t4 = 32, 33, 34, 35, 38
    LV = a.newlabel("ev"); LE = a.newlabel("ee")
    a(f"s_and_b32 s{sT1}, s{sWAVE}, 3")
    a(f"s_lshl_b32 s{sT3}, s{sM}, 2")
    a(f"s_add_u32 s{sT3}, s{sT1}, s{sT3}")
    a(f"s_cmp_ge_u32 s{sJ}, 10")
    a(f"s_cbranch_scc1 {LV}")
    a(f"s_cmp_ge_u32 s{sJ}, 5")
    a(f"s_cselect_b32 s{sT0}, 5, 0")
    a(f"s_cselect_b32 s{sScale}, 1.0, {f32hex(QSCALE)}")
    a(f"s_cselect_b32 s{sT1}, 1, 0")
    a(f"s_cselect_b32 s{sT2}, {KV_OFF}, {QF_OFF}")
    a(f"s_lshl_b32 s{sT4}, 81920, s{sT1}")
    a(f"s_lshl_b32 s{sT5}, 1280, s{sT1}")
    a(f"s_mul_i32 s{sEPI}, s{sT5}, s{sT3}")
    a(f"s_add_u32 s{sEPI}, s{sEPI}, s{sT2}")
    a(f"s_sub_u32 s{sT0}, s{sJ}, s{sT0}")
    a(f"s_lshl_b32 s{sT0}, s{sT0}, 5")
    a(f"s_lshr_b32 s{sT1}, s{sWAVE}, 2")
    a(f"s_lshl_b32 s{sT1}, s{sT1}, 4")
    a(f"s_add_u32 s{sT0}, s{sT0}, s{sT1}")
    a(f"v_and_b32 v{t3}, 9, v0")
    a(f"v_bfe_u32 v{t0}, v0, 1, 1")
    a(f"v_lshl_add_u32 v{t3}, v{t0}, 2, v{t3}")
    a(f"v_bfe_u32 v{t0}, v0, 2, 1")
    a(f"v_lshl_add_u32 v{t3}, v{t0}, 1, v{t3}")
    a(f"v_lshlrev_b32 v{t3}, 4, v{t3}")
    a(f"v_lshrrev_b32 v{t0}, 4, v0")
    a(f"v_add_u32 v{t0}, s{sT0}, v{t0}")
    a(f"s_mov_b32 s{sT3}, 0x43120")
    for T in range(4):
        adr = vEA + T
        a(f"v_add_u32 v{t1}, {4*T}, v{t0}")
        a(f"v_mul_u32_u24 v{t2}, 205, v{t1}")
        a(f"v_lshrrev_b32 v{t2}, 10, v{t2}")
        a(f"v_mul_u32_u24 v{adr}, 5, v{t2}")
        a(f"v_sub_u32 v{t1}, v{t1}, v{adr}")
        a(f"v_lshlrev_b32 v{t1}, 2, v{t1}")
        a(f"v_bfe_u32 v{t1}, s{sT3}, v{t1}, 4")
        a(f"v_mul_lo_u32 v{adr}, v{t2}, s{sT4}")
        a(f"v_lshl_add_u32 v{adr}, v{t1}, 8, v{adr}")
        a(f"v_add_u32 v{adr}, v{adr}, v{t3}")
    a(f"s_branch {LE}")
    a.label(LV)
    a(f"s_sub_u32 s{sT0}, s{sJ}, 10")
    a(f"s_lshl_b32 s{sT0}, s{sT0}, 7")
    a(f"s_lshr_b32 s{sT1}, s{sWAVE}, 2")
    a(f"s_lshl_b32 s{sT1}, s{sT1}, 6")
    a(f"s_add_u32 s{sT0}, s{sT0}, s{sT1}")
    a(f"s_mul_i32 s{sEPI}, s{sT3}, {KV_T}")
    a(f"s_add_u32 s{sEPI}, s{sEPI}, {KV_OFF + 1280}")
    a(f"s_mov_b32 s{sT4}, {KV_H}")
    a(f"v_lshrrev_b32 v{t3}, 4, v0")
    a(f"v_mul_u32_u24 v{t3}, 320, v{t3}")
    a(f"v_and_b32 v{t0}, 15, v0")
    a(f"v_add_u32 v{t0}, s{sT0}, v{t0}")
    for T in range(4):
        adr = vEA + T
        a(f"v_add_u32 v{t1}, {16*T}, v{t0}")
        a(f"v_mul_u32_u24 v{t2}, 3277, v{t1}")
        a(f"v_lshrrev_b32 v{t2}, 16, v{t2}")
        a(f"v_mul_u32_u24 v{adr}, 20, v{t2}")
        a(f"v_sub_u32 v{t1}, v{t1}, v{adr}")
        a(f"v_mul_lo_u32 v{adr}, v{t2}, s{sT4}")
        a(f"v_and_b32 v{t2}, 0x13, v{t1}")
        a(f"v_bfe_u32 v{t4}, v{t1}, 2, 1")
        a(f"v_lshl_add_u32 v{t2}, v{t4}, 3, v{t2}")
        a(f"v_bfe_u32 v{t4}, v{t1}, 3, 1")
        a(f"v_lshl_add_u32 v{t2}, v{t4}, 2, v{t2}")
        a(f"v_lshl_add_u32 v{adr}, v{t2}, 4, v{adr}")
        a(f"v_add_u32 v{adr}, v{adr}, v{t3}")
    a.label(LE)

def pp_setup(a, base, tt):
    t0, t1, t2, t3, t4 = tt
    L = a.newlabel("pp")
    a(f"s_lshr_b32 s{sT4}, s{sT3}, 2")
    a(f"s_and_b32 s{sT5}, s{sT3}, 3")
    a(f"s_mul_i32 s{sPPC}, s{sT5}, 320")
    a(f"s_cmp_ge_u32 s{sT4}, 48")
    a(f"s_cselect_b32 s{S_M2}, s{P_WO}, s{P_W2}")
    a(f"s_cselect_b32 s{S_M2+1}, s{P_WO+1}, s{P_W2+1}")
    a(f"s_mov_b32 s{S_M2+2}, 1966080")
    a(f"s_cselect_b32 s{S_M2+2}, 819200, s{S_M2+2}")
    a(f"s_mov_b32 s{S_M2+3}, 0x00020000")
    for rep in range(2):
        a(f"s_lshl_b32 s{sT0}, s{sWAVE}, 6")
        a(f"v_add_u32 v{t0}, s{sT0}, v0")
        if rep: a(f"v_add_u32 v{t0}, 512, v{t0}")
        a(f"v_mul_u32_u24 v{t1}, 3277, v{t0}")
        a(f"v_lshrrev_b32 v{t1}, 16, v{t1}")
        a(f"v_mul_u32_u24 v{t2}, 20, v{t1}")
        a(f"v_sub_u32 v{t2}, v{t0}, v{t2}")
        a(f"s_cmp_ge_u32 s{sT4}, 48")
        a(f"s_cbranch_scc1 {L}_wo{rep}")
        a(f"s_lshl_b32 s{sT0}, s{sT4}, 5")
        a(f"v_add_u32 v{t1}, s{sT0}, v{t1}")
        a(f"s_branch {L}_go{rep}")
        a.label(f"{L}_wo{rep}")
        a(f"v_lshrrev_b32 v{t3}, 3, v{t1}")
        a(f"s_cmp_ge_u32 s{sT4}, 64")
        a(f"s_cbranch_scc1 {L}_rem{rep}")
        a(f"s_sub_u32 s{sT0}, s{sT4}, 48")
        a(f"s_lshl_b32 s{sT0}, s{sT0}, 2")
        a(f"v_add_u32 v{t3}, s{sT0}, v{t3}")
        a(f"v_lshrrev_b32 v{t4}, 1, v{t3}")
        a(f"v_mul_u32_u24 v{t4}, 20, v{t4}")
        a(f"v_and_b32 v{t3}, 1, v{t3}")
        a(f"v_lshl_add_u32 v{t4}, v{t3}, 3, v{t4}")
        a(f"v_and_b32 v{t1}, 7, v{t1}")
        a(f"v_add_u32 v{t1}, v{t4}, v{t1}")
        a(f"s_branch {L}_go{rep}")
        a.label(f"{L}_rem{rep}")
        a(f"s_sub_u32 s{sT0}, s{sT4}, 64")
        a(f"s_lshl_b32 s{sT0}, s{sT0}, 2")
        a(f"v_add_u32 v{t3}, s{sT0}, v{t3}")
        a(f"v_bfe_u32 v{t4}, v{t1}, 2, 1")
        a(f"v_lshl_add_u32 v{t4}, v{t3}, 1, v{t4}")
        a(f"v_mul_u32_u24 v{t4}, 20, v{t4}")
        a(f"v_and_b32 v{t1}, 3, v{t1}")
        a(f"v_add3_u32 v{t1}, v{t4}, v{t1}, 16")
        a.label(f"{L}_go{rep}")
        a(f"v_mul_u32_u24 v{t1}, 1280, v{t1}")
        a(f"v_lshl_add_u32 v{vPP+rep}, v{t2}, 4, v{t1}")
    a(f"s_cmp_ge_u32 s{sT4}, 24")
    a(f"s_cselect_b32 s{sT0}, 10, 0")
    a(f"s_cmp_ge_u32 s{sT4}, 48")
    a(f"s_cselect_b32 s{sT0}, -24, s{sT0}")
    a(f"s_cmp_ge_u32 s{sT4}, 58")
    a(f"s_cselect_b32 s{sT0}, 0, s{sT0}")
    a(f"s_add_u32 s{sT4}, s{sT4}, s{sT0}")
    a(f"s_mul_i32 s{sT5}, s{sT5}, 136")
    a(f"s_add_u32 s{sT4}, s{sT4}, s{sT5}")
    a(f"v_lshrrev_b32 v{t1}, 4, v0")
    a(f"v_bfe_u32 v{t2}, v0, 2, 2")
    a(f"v_lshl_add_u32 v{t1}, v{t1}, 3, v{t2}")
    a(f"v_mul_u32_u24 v{t1}, 320, v{t1}")
    a(f"v_and_b32 v{t0}, 3, v0")
    for rep, sd in enumerate((sPD0, sPD1)):
        a(f"s_add_u32 s{sT0}, s{sWAVE}, {8*rep}")
        a(f"s_cmp_ge_u32 s{sT0}, 5")
        a(f"s_cselect_b32 s{sT1}, 1, 0")
        a(f"s_mul_i32 s{sT2}, s{sT1}, 5")
        a(f"s_sub_u32 s{sT0}, s{sT0}, s{sT2}")
        a(f"s_lshr_b32 s{sT2}, s{sT0}, 1")
        a(f"s_lshl_b32 s{sT2}, s{sT2}, 6")
        a(f"s_and_b32 s{sT5}, s{sT0}, 1")
        a(f"s_lshl_b32 s{sT5}, s{sT5}, 3")
        a(f"s_add_u32 s{sT2}, s{sT2}, s{sT5}")
        a(f"s_mul_i32 s{sT5}, s{sT1}, 160")
        a(f"s_add_u32 s{sT2}, s{sT2}, s{sT5}")
        a(f"s_add_u32 s{sT2}, s{sT2}, {base}")
        a(f"s_cmp_eq_u32 s{sT0}, 4")
        a(f"s_cselect_b32 s{sT5}, 3, 4")
        a(f"v_lshlrev_b32 v{t2}, s{sT5}, v{t0}")
        a(f"v_add3_u32 v{vPF+rep}, v{t2}, v{t1}, s{sT2}")
        a(f"s_mul_i32 s{sT1}, s{sT1}, 68")
        a(f"s_add_u32 s{sT1}, s{sT1}, s{sT4}")
        a(f"s_mul_i32 s{sT1}, s{sT1}, 5120")
        a(f"s_lshl_b32 s{sT0}, s{sT0}, 10")
        a(f"s_add_u32 s{sT1}, s{sT1}, s{sT0}")
        a(f"s_add_u32 s{sd}, s{sT1}, {WF_OFF}")

def lt2(a, body):
    L = a.newlabel("lt2")
    a(f"s_cmp_ge_u32 s{sWAVE}, 2")
    a(f"s_cbranch_scc1 {L}")
    body()
    a.label(L)

def pp_dma(a, base):
    a(f"s_lshl_b32 s{sT0}, s{sWAVE}, 10")
    a(f"s_add_u32 m0, s{sT0}, {base}")
    a("s_nop 0")
    a.vmem(f"buffer_load_dwordx4 v{vPP}, {srd(S_M2)}, s{sPPC} offen lds", "pp")
    def second():
        a(f"s_add_u32 m0, s{sT0}, {base + 8192}")
        a("s_nop 0")
        a.vmem(f"buffer_load_dwordx4 v{vPP+1}, {srd(S_M2)}, s{sPPC} offen lds", "pp", definite=False)
    lt2(a, second)

def pp_finish(a, tmp, l16):
    a(f"v_lshlrev_b32 v{l16}, 4, v0")
    def one(rep):
        a(f"ds_read_b64_tr_b16 {vr(tmp,2)}, v{vPF+rep}")
        a(f"ds_read_b64_tr_b16 {vr(tmp+2,2)}, v{vPF+rep} offset:1280")
        a.lg_all()
        a.vmem(f"buffer_store_dwordx4 {vr(tmp,4)}, v{l16}, {srd(S_WS)}, s{(sPD0, sPD1)[rep]} offen sc1", "st1", definite=(rep == 0))
    one(0)
    lt2(a, lambda: one(1))

def gate_loads(a):
    a(f"s_lshl_b32 s{sT0}, s2, 3")
    a(f"s_add_u32 s{sT0}, s{sT0}, s{sWAVE}")
    a(f"s_mul_i32 s{sT0}, s{sT0}, 1280")
    a.vmem(f"buffer_load_dwordx4 v[64:67], v36, {srd(S_X)}, s{sT0} offen", "gate")
    a.vmem(f"buffer_load_dword v68, v37, {srd(S_X)}, s{sT0} offen offset:1024", "gate")
    a.vmem(f"buffer_load_dwordx4 v[72:75], v36, {srd(S_M1)}, 0 offen", "gate")
    a.vmem(f"buffer_load_dword v69, v37, {srd(S_M1)}, 0 offen offset:1024", "gate")

def gate_finish(a):
    a.c("---- gate")
    a.wait_vm("gate")
    acc = 70
    a(f"v_mov_b32 v{acc}, 0")
    xs = [64, 65, 66, 67, 68]; gs = [72, 73, 74, 75, 69]
    t0, t1, t2, t3 = 32, 33, 34, 35
    for x, g in zip(xs, gs):
        a(f"v_lshlrev_b32 v{t0}, 16, v{x}")
        a(f"v_lshlrev_b32 v{t1}, 16, v{g}")
        a(f"v_and_b32 v{t2}, 0xffff0000, v{x}")
        a(f"v_and_b32 v{t3}, 0xffff0000, v{g}")
        a(f"v_mul_f32 v{t0}, v{t0}, v{t1}")
        a(f"v_mul_f32 v{t2}, v{t2}, v{t3}")
        a(f"v_cvt_pk_bf16_f32 v{t0}, v{t0}, v{t2}")
        a(f"v_lshlrev_b32 v{t1}, 16, v{t0}")
        a(f"v_and_b32 v{t2}, 0xffff0000, v{t0}")
        a(f"v_add_f32 v{acc}, v{acc}, v{t1}")
        a(f"v_add_f32 v{acc}, v{acc}, v{t2}")
    for ctrl in ("row_shr:1 row_mask:0xf bank_mask:0xf bound_ctrl:0", "row_shr:2 row_mask:0xf bank_mask:0xf bound_ctrl:0",
                 "row_shr:4 row_mask:0xf bank_mask:0xf bound_ctrl:0", "row_shr:8 row_mask:0xf bank_mask:0xf bound_ctrl:0",
                 "row_bcast:15 row_mask:0xa bank_mask:0xf", "row_bcast:31 row_mask:0xc bank_mask:0xf"):
        a("s_nop 1")
        a(f"v_add_f32_dpp v{acc}, v{acc}, v{acc} {ctrl}")
    a("s_nop 1")
    a(f"v_cvt_pk_bf16_f32 v{acc}, v{acc}, v{acc}")
    a(f"v_and_b32 v{acc}, 0xffff0000, v{acc}")
    a(f"v_mul_f32 v{acc}, {f32hex(-math.log2(math.e))}, v{acc}")
    a(f"v_exp_f32 v{acc}, v{acc}")
    a("s_nop 0")
    a(f"v_add_f32 v{acc}, 1.0, v{acc}")
    a(f"v_rcp_f32 v{acc}, v{acc}")
    a("s_nop 0")
    a(f"v_cvt_pk_bf16_f32 v{acc}, v{acc}, v{acc}")
    a(f"v_and_b32 v{acc}, 0xffff0000, v{acc}")
    a(f"s_lshl_b32 s{sT0}, s2, 3")
    a(f"s_add_u32 s{sT0}, s{sT0}, s{sWAVE}")
    a(f"s_lshl_b32 s{sT0}, s{sT0}, 2")
    a(f"s_add_u32 s{sT0}, s{sT0}, {G_OFF}")
    a(f"v_mov_b32 v{t0}, 0")
    a(f"s_mov_b32 exec_lo, 0")
    a(f"s_mov_b32 exec_hi, 0x80000000")
    a.vmem(f"buffer_store_dword v{acc}, v{t0}, {srd(S_WS)}, s{sT0} offen sc1", "st1")
    a("s_mov_b64 exec, -1")

def p1_reads(s, mode):
    out = []
    buf = WF + (s % 2) * 16
    if s < 20:
        c, ks = s // 2, s % 2
        base = (c % 2) * 32768
        for b in range(2):
            out.append(("x", f"ds_read_b128 {vr(XR+(s*2+b)*4,4)}, v{vXA+ks} offset:{base + b*4096}"))
        if mode != "x":
            for T in range(4):
                for r2 in range(2):
                    out.append((T, f"ds_read_b64_tr_b16 {vr(buf+T*4+r2*2,2)}, v{vTA+T} offset:{base + 2048 + ks*16384 + r2*1024}"))
    else:
        sf = s - 20
        c, ks = 10 + sf // 4, sf % 4
        base = (c % 2) * 32768
        for T in range(3):
            for r2 in range(2):
                out.append((T, f"ds_read_b64_tr_b16 {vr(buf+T*4+r2*2,2)}, v{vTB+T} offset:{base + ks*6144 + r2*1536}"))
    return out

def p1_mfma(s, T, b, mode):
    buf = WF + (s % 2) * 16
    d = vr(ACC + (b*4+T)*4, 4)
    w = vr(buf + T*4, 4); x = vr(XR + ((s % 20)*2+b)*4, 4)
    cin = "0" if s == 0 else d
    if mode == "v" and s < 20: return f"v_mfma_f32_16x16x32_bf16 {d}, {x}, {w}, {cin}"
    return f"v_mfma_f32_16x16x32_bf16 {d}, {w}, {x}, {cin}"

def p1_stage(a, s, mode, pre=None, post=None, budget=None):
    if s < 20: start = (s % 2 == 0); c = s // 2
    elif s < 40: start = ((s - 20) % 4 == 0); c = 10 + (s - 20) // 4
    else: start = False; c = None
    if start:
        emit_list(a, a.pend); a.pend = []
        if pre: pre()
        a.wait_vm(f"c{c}")
        a("s_barrier")
        if OPT["fine"] or c in (0, 1, 5, 10, 11, 14): a.stamp(f"p1 chunk{c}")
        if 2 <= c and c + 2 < 15: a.pend += p1_dma_list(c + 2, mode)
        if post: a.pend += post()
        if c > 0 and c % 2 == 0:
            regs = ([vXA, vXA+1] + [vTA+T for T in range(4)] if c < 10 else []) + [vTB+T for T in range(3)]
            for r in regs: a(f"v_xor_b32 v{r}, 0x10000, v{r}")
    rd = p1_reads(s, mode) if s < 40 else []
    nT = 0 if (s == 0 or (mode == "x" and s <= 20)) else (4 if s - 1 < 20 else 3)
    if budget is None: budget = 2 if s <= 20 else 1
    if mode == "x" and 0 < s <= 20: a.wait_lg(f"r{s-1}x")
    xr = [r for g, r in rd if g == "x"]
    for r in xr: a.ds(r, f"r{s}x")
    for T in range(4):
        if T < nT:
            a.wait_lg([f"r{s-1}x", f"r{s-1}t{T}"])
            a(p1_mfma(s-1, T, 0, mode))
        tr = [r for g, r in rd if g == T]
        for r in tr[:1]: a.ds(r, f"r{s}t{T}")
        if T < nT: a(p1_mfma(s-1, T, 1, mode))
        for r in tr[1:]: a.ds(r, f"r{s}t{T}")
        if T >= 1 and a.pend and budget:
            emit_list(a, take(a.pend)); budget -= 1

def qkv_pack(a, mode):
    for T in (0, 1, 3, 2):
        o = PK[T]
        if mode == "q":
            for b in range(2):
                for r in range(4):
                    x = ACC + (b*4+T)*4 + r
                    a(f"v_mul_f32 v{x}, s{sScale}, v{x}")
            for b in range(2):
                x = ACC + (b*4+T)*4
                a(f"v_cvt_pk_bf16_f32 v{o+2*b}, v{x}, v{x+1}")
                a(f"v_cvt_pk_bf16_f32 v{o+2*b+1}, v{x+2}, v{x+3}")
        else:
            for r in range(4):
                a(f"v_cvt_pk_bf16_f32 v{o+r}, v{ACC + T*4 + r}, v{ACC + (4+T)*4 + r}")
        a.vmem(f"buffer_store_dwordx4 {vr(o,4)}, v{vEA+T}, {srd(S_WS)}, s{sEPI} offen sc1", "stq", definite=False)

def ffn1_init(a):
    a.wait_vm("b1")
    for T in range(3):
        for r in range(4):
            src = vB1 + 2*T + r//2
            d0 = ACC + T*4 + r; d1 = ACC + (4+T)*4 + r
            if r % 2 == 0: a(f"v_lshlrev_b32 v{d0}, 16, v{src}")
            else: a(f"v_and_b32 v{d0}, 0xffff0000, v{src}")
            a(f"v_mov_b32 v{d1}, v{d0}")

def ffn1_epilogue(a):
    a.c("---- FFN1 epilogue")
    t0, t1 = 24, 25
    a(f"s_and_b32 s{sT0}, s{sWAVE}, 3")
    a(f"s_lshl_b32 s{sT0}, s{sT0}, 1")
    a(f"s_lshl_b32 s{sT1}, s{sM}, 3")
    a(f"s_add_u32 s{sT0}, s{sT0}, s{sT1}")
    a(f"s_mul_i32 s{sT0}, s{sT0}, {AF_T}")
    a(f"s_lshr_b32 s{sT1}, s{sWAVE}, 2")
    a(f"s_mul_i32 s{sT1}, s{sT1}, 1536")
    a(f"s_mul_i32 s{sT2}, s{sJ}, 3072")
    a(f"s_add_u32 s{sT0}, s{sT0}, s{sT1}")
    a(f"s_add_u32 s{sT0}, s{sT0}, s{sT2}")
    a(f"s_cmp_ge_u32 s{sJ}, 8")
    a(f"s_cselect_b32 s{sT1}, 10240, 0")
    a(f"s_add_u32 s{sT0}, s{sT0}, s{sT1}")
    a(f"s_add_u32 s{sT0}, s{sT0}, {AF_OFF}")
    a(f"v_bfe_u32 v{t0}, v0, 4, 1")
    a(f"v_mul_u32_u24 v{t0}, {AF_T}, v{t0}")
    a(f"v_lshrrev_b32 v{t1}, 5, v0")
    a(f"v_lshl_add_u32 v{t0}, v{t1}, 8, v{t0}")
    a(f"v_and_b32 v{t1}, 15, v0")
    a(f"v_lshl_add_u32 v{t0}, v{t1}, 4, v{t0}")
    for T in range(3):
        o = WF + T*4
        for b in range(2):
            for r in range(4):
                x = ACC + (b*4+T)*4 + r
                a(f"v_max_f32 v{x}, 0, v{x}")
        for b in range(2):
            for r in range(4):
                x = ACC + (b*4+T)*4 + r
                a(f"v_mul_f32 v{x}, v{x}, v{x}")
        for b in range(2):
            x = ACC + (b*4+T)*4
            a(f"v_cvt_pk_bf16_f32 v{o+2*b}, v{x}, v{x+1}")
            a(f"v_cvt_pk_bf16_f32 v{o+2*b+1}, v{x+2}, v{x+3}")
        a("s_nop 1")
        a(f"v_permlane16_swap_b32 v{o}, v{o+2}")
        a(f"v_permlane16_swap_b32 v{o+1}, v{o+3}")
        a.vmem(f"buffer_store_dwordx4 {vr(o,4)}, v{t0}, {srd(S_WS)}, s{sT0} offen offset:{512*T} sc1", "st1")

def phase1(a):
    a.stamp("start")
    a.pend = []
    gate_loads(a)
    flags_clear(a, 38)
    for c in range(4): emit_list(a, p1_dma_list(c))
    if OPT["pf"]:
        pf_setup(a)
        emit_list(a, pf_list(4))
    p1_setup2(a)
    epi_setup(a)
    gate_finish(a)
    a(f"s_mov_b32 s{sT3}, s2")
    pp_setup(a, PP_LDS, (32, 33, 34, 35, 38))
    a.stamp("setup done")
    LV = a.newlabel("vpass"); LX = a.newlabel("xpass"); LJ = a.newlabel("join")
    a(f"s_cmp_eq_u32 s{sJ}, 15")
    a(f"s_cbranch_scc1 {LX}")
    a(f"s_cmp_ge_u32 s{sJ}, 10")
    a(f"s_cbranch_scc1 {LV}")
    save = (list(a.vm), list(a.lg), a.nstamp, len(a.stampnames))
    ends = []
    for mode, lab in (("q", None), ("v", LV), ("x", LX)):
        a.vm, a.lg, a.nstamp = list(save[0]), list(save[1]), save[2]; del a.stampnames[save[3]:]
        if lab: a.label(lab)
        for s in range(21):
            post = None
            if s == 0: post = lambda: [("f", lambda: flags_count_in(a, 38 if mode == "x" else 92))] + (pf_list(7) if OPT["pf"] else [])
            if s == 4 and OPT["pf"]: post = pf_w1
            if s == 10: post = lambda: [("f", lambda: pp_dma(a, PP_LDS))]
            p1_stage(a, s, mode, post=post, budget=(3 if s in (0, 4, 10) else None))
            if s == 0: emit_list(a, a.pend); a.pend = []
        emit_list(a, a.pend); a.pend = []
        if mode != "x":
            a("s_nop 5")
            qkv_pack(a, mode)
            a(f"s_branch {LJ}")
        ends.append((list(a.vm), list(a.lg)))
    a.label(LJ)
    common = set.intersection(*[set(t for t, d in e[0] if d) for e in ends])
    a.vm = [(t, d and t in common) for t, d in ends[0][0]]
    a.lg = list(ends[0][1])
    assert [t for t in ends[2][1] if not t.endswith("x")] == [t for t in a.lg if not t.endswith("x")][-len([t for t in ends[2][1] if not t.endswith("x")]):], (ends[2][1], a.lg)
    a.stamp("p1 qkv done")
    a("s_nop 3")
    ffn1_init(a)
    for s in range(21, 41):
        pre = post = None
        if s == 24: post = lambda: [("f", lambda: (pp_finish(a, 76, 24), second_unit(a, 0)))]
        if s == 28: post = lambda: [("f", lambda: poll(a, "init", 26, 92, "issue"))]
        if s == 32:
            pre = lambda: (a.wait_vm("stq"), poll(a, "init", 26, 92, "check"))
            post = lambda: [("f", lambda: flag_set_A(a))]
        if s == 36: post = lambda: [("f", lambda: second_unit(a, 1))]
        if s == 38: a.pend.append(("f", lambda: poll(a, "A", 26, 92, "issue")))
        if s == 40:
            emit_list(a, a.pend); a.pend = []
            att_setup(a)
            poll(a, "A", 26, 92, "check")
            a("s_barrier")
            a.stamp("p1 A seen")
            for c in range(2): att_dma(a, c)
            att_qload(a)
        p1_stage(a, s, "q", pre, post, budget=2)
    a("s_nop 7")
    a.stamp("p1 ffn1 mfma done")
    ffn1_epilogue(a)
    a.stamp("p1 end")

def flag_set_A(a):
    L = a.newlabel("noA")
    a(f"s_cmp_eq_u32 s{sJ}, 15")
    a(f"s_cbranch_scc1 {L}")
    flag_set(a, 0, 92)
    a.label(L)

def second_unit(a, part):
    L = a.newlabel("su")
    a(f"s_cmp_lg_u32 s{sJ}, 15")
    a(f"s_cbranch_scc1 {L}")
    st = list(a.vm); lg = list(a.lg)
    if part == 0:
        a(f"s_add_u32 s{sT3}, s{sM}, 256")
        pp_setup(a, PP_LDS + 10240, (92, 93, 94, 95, 44))
        pp_dma(a, PP_LDS + 10240)
        a.vm = st + [("pp2", False), ("pp2", False)]
    else:
        pp_finish(a, 76, 24)
        a.vm = st + [("st1", False), ("st1", False)]
    a.lg = lg
    a.label(L)

SA, SB, OA, OB, PB, VB, KB, QA, QB = 8, 24, 40, 56, 72, 80, 96, 108, 114
vKA, vKB, vVA, vD4, vD1, vAT0, vAT1 = 1, 2, 3, 4, 5, 6, 7
vVB = vAT1
KVL = 0
KVR = 3
KV_C = 4 * KV_T
XCH = 12288

def att_dma_list(c):
    slot = KVL + (c % KVR) * 4 * KV_L
    return [("s", f"s_add_u32 m0, s{sKVM}, {slot}"),
            ("s", f"s_add_u32 s{sT0}, s{sKVG}, {c*KV_C}"),
            ("v", f"buffer_load_dwordx4 v{vD4}, {srd(S_WS)}, s{sT0} offen sc1 lds", f"kv{c}"),
            ("v", f"buffer_load_dword v{vD1}, {srd(S_WS)}, s{sT0} offen offset:1024 sc1 lds", f"kv{c}")]
def att_dma(a, c): emit_list(a, att_dma_list(c))

def att_setup(a):
    a.c("---- attention setup")
    a(f"s_lshl_b32 s{sH}, s{sXCD}, 2")
    a(f"s_add_u32 s{sH}, s{sH}, s{sHI}")
    a(f"s_mov_b32 s{sQB}, s{sLO}")
    a(f"s_lshr_b32 s{sKVM}, s{sWAVE}, 1")
    a(f"s_lshl_b32 s{sKVM}, s{sKVM}, 9")
    a(f"s_mul_i32 s{sT0}, s{sWAVE}, 1280")
    a(f"s_add_u32 s{sKVM}, s{sKVM}, s{sT0}")
    a(f"s_mul_i32 s{sKVG}, s{sH}, {KV_H}")
    a(f"s_add_u32 s{sKVG}, s{sKVG}, s{sT0}")
    a(f"s_add_u32 s{sKVG}, s{sKVG}, {KV_OFF}")
    a(f"s_lshr_b32 s{sKH}, s{sWAVE}, 2")
    a(f"v_lshlrev_b32 v{vD4}, 4, v0")
    a(f"v_lshlrev_b32 v{vD1}, 2, v0")
    a(f"s_mov_b32 s{sEXV}, 0x000fffff")
    a(f"s_mov_b32 s{sEXV+1}, 0x000fffff")

def att_qload(a):
    t0, t1 = vAT0, vAT1
    a(f"v_and_b32 v{t0}, 9, v0")
    a(f"v_bfe_u32 v{t1}, v0, 1, 1")
    a(f"v_lshl_add_u32 v{t0}, v{t1}, 2, v{t0}")
    a(f"v_bfe_u32 v{t1}, v0, 2, 1")
    a(f"v_lshl_add_u32 v{t0}, v{t1}, 1, v{t0}")
    a(f"v_lshlrev_b32 v{t0}, 4, v{t0}")
    a(f"v_bfe_u32 v{t1}, v0, 4, 1")
    a(f"v_lshl_add_u32 v{t0}, v{t1}, 3, v{t0}")
    a(f"v_lshrrev_b32 v{t1}, 5, v0")
    a(f"v_lshl_add_u32 v{t1}, v{t1}, 8, v{t0}")
    a(f"s_and_b32 s{sT0}, s{sWAVE}, 3")
    a(f"s_lshl_b32 s{sT0}, s{sT0}, 1")
    a(f"s_lshl_b32 s{sT1}, s{sQB}, 3")
    a(f"s_add_u32 s{sT0}, s{sT0}, s{sT1}")
    a(f"s_add_u32 s{sT1}, s{sT0}, s{sKH}")
    a(f"s_xor_b32 s{sT2}, s{sT1}, 1")
    a(f"s_mul_i32 s{sT3}, s{sH}, 81920")
    for T, Q in ((sT1, QA), (sT2, QB)):
        a(f"s_mul_i32 s{T}, s{T}, 1280")
        a(f"s_add_u32 s{T}, s{T}, s{sT3}")
        if QF_OFF: a(f"s_add_u32 s{T}, s{T}, {QF_OFF}")
        a.vmem(f"buffer_load_dwordx2 {vr(Q,2)}, v{t1}, {srd(S_WS)}, s{T} offen sc1", "q")
        a.vmem(f"buffer_load_dwordx2 {vr(Q+2,2)}, v{t1}, {srd(S_WS)}, s{T} offen offset:512 sc1", "q")
        a.vmem(f"buffer_load_dwordx2 {vr(Q+4,2)}, v{t0}, {srd(S_WS)}, s{T} offen offset:1024 sc1", "q")

def att_setup2(a):
    a(f"s_mul_i32 s{sT0}, s{sKH}, {2*KV_L}")
    if KVL: a(f"s_add_u32 s{sT0}, s{sT0}, {KVL}")
    a(f"v_and_b32 v{vKB}, 31, v0")
    a(f"v_lshrrev_b32 v{vKA}, 5, v0")
    a(f"v_mul_u32_u24 v{PB}, 320, v{vKA}")
    a(f"v_lshl_add_u32 v{vVA}, v{vKB}, 4, v{PB}")
    a(f"v_add_u32 v{vVB}, 640, v{vVA}")
    a(f"v_cmp_gt_u32 vcc, 20, v{vKB}")
    a(f"v_mov_b32 v{PB}, 1280")
    a(f"v_lshlrev_b32 v{vKB}, 3, v{vKB}")
    a(f"v_cndmask_b32 v{vVA}, v{PB}, v{vVA}, vcc")
    a(f"v_cndmask_b32 v{vVB}, v{PB}, v{vVB}, vcc")
    a(f"v_add_u32 v{vVA}, s{sT0}, v{vVA}")
    a(f"v_add_u32 v{vVB}, s{sT0}, v{vVB}")
    a(f"v_add_u32 v{vKB}, s{sT0}, v{vKB}")
    a(f"v_lshl_add_u32 v{vKA}, v{vKA}, 8, v{vKB}")
    for r in range(4): a(f"v_mov_b32 v{PB+4+r}, 0x3f803f80")
    a(f"v_min_u32 v{PB}, 11, v0")
    a(f"v_mul_u32_u24 v{PB}, {KV_L}, v{PB}")
    a.ds(f"ds_write_b128 v{PB}, {vr(PB+4,4)} offset:{KVL+2560}", "ones")
    for r in range(16):
        a(f"v_mov_b32 v{OA+r}, 0")
        a(f"v_mov_b32 v{OB+r}, 0")

def k_reads(t):
    c, e = t >> 1, t & 1
    tp = (c % KVR) * 4 + e
    kb = KB + (t % 2) * 6
    return [("d", f"ds_read2st64_b64 {vr(kb,4)}, v{vKA} offset0:{6*tp} offset1:{6*tp+1}", f"k{t}"),
            ("d", f"ds_read_b64 {vr(kb+4,2)}, v{vKB} offset:{tp*KV_L+1024}", f"k{t}")]
def v_reads(t):
    c, e = t >> 1, t & 1
    tp = (c % KVR) * 4 + e
    vb = VB + (t % 2) * 8
    return [("d", f"ds_read_b128 {vr(vb+4*kk,4)}, v{(vVA, vVB)[kk]} offset:{tp*KV_L+1280}", f"v{t}") for kk in range(2)]
def qk8(t, S, Q):
    kb = KB + (t % 2) * 6
    return f"v_mfma_f32_32x32x8_bf16 {vr(S,16)}, {vr(kb+4,2)}, {vr(Q+4,2)}, 0"
def qk16(t, S, Q):
    kb = KB + (t % 2) * 6
    return f"v_mfma_f32_32x32x16_bf16 {vr(S,16)}, {vr(kb,4)}, {vr(Q,4)}, {vr(S,16)}"
def pv(t, O, kk, pbuf):
    vb = VB + (t % 2) * 8 + 4 * kk
    return f"v_mfma_f32_32x32x16_bf16 {vr(O,16)}, {vr(vb,4)}, {vr(PB+4*pbuf,4)}, {vr(O,16)}"

def att_group(a, S, pbuf, m1, m2, s1, s2):
    p = PB + 4 * pbuf
    if m1: a(m1)
    emit_list(a, s1)
    for r in range(4): a(f"v_exp_f32 v{S+r}, v{S+r}")
    a(f"v_cvt_pk_bf16_f32 v{p}, v{S}, v{S+1}")
    a(f"v_cvt_pk_bf16_f32 v{p+1}, v{S+2}, v{S+3}")
    if m2: a(m2)
    emit_list(a, s2)
    for r in range(4, 8): a(f"v_exp_f32 v{S+r}, v{S+r}")
    a(f"v_cvt_pk_bf16_f32 v{p+2}, v{S+4}, v{S+5}")
    a(f"v_cvt_pk_bf16_f32 v{p+3}, v{S+6}, v{S+7}")

def attention_main(a, extra=None, pre=None):
    NT = 32
    def bar(c):
        def f():
            if pre: pre(c)
            a.wait_vm(f"kv{c}", lg0=True)
            a("s_barrier")
            if c in (0, 1, 15) or OPT["fine"]: a.stamp(f"att chunk{c}")
        return ("f", f)
    emit_list(a, [bar(0)])
    att_dma(a, 2)
    emit_list(a, k_reads(0) + v_reads(0) + k_reads(1))
    a.wait_vm("q")
    a("s_mov_b32 exec_lo, 0")
    for Q in (QA, QB):
        a(f"v_mov_b32 v{Q+4}, 0")
        a(f"v_mov_b32 v{Q+5}, 0")
    a("s_mov_b32 exec_lo, -1")
    a.wait_lg("k0")
    a("s_nop 0")
    a(qk8(0, SA, QA))
    a("s_nop 9")
    a(qk16(0, SA, QA))
    a("s_nop 11")
    pend = []
    for t in range(NT):
        sl = {k: [] for k in ("g0", "a", "b", "c", "g2", "d", "e", "f")}
        if t + 1 < NT:
            vv = v_reads(t + 1)
            sl["a"].append(vv[0]); sl["c"].append(vv[1])
        sl["b"].append(("f", (lambda tt: lambda: a.wait_lg([f"v{tt}", f"k{tt+1}"]))(t)))
        if t + 2 < NT:
            kk = k_reads(t + 2)
            if t % 2 == 0:
                c = t // 2 + 1
                sl["e"].append(bar(c))
                if c + 2 < 16: pend += att_dma_list(c + 2)
                if extra: pend += extra(c)
            sl["e"].append(kk[0]); sl["f"].append(kk[1])
        if OPT["prio"]:
            if t % 2 == 1:
                sl["g0"].append(("s", "s_setprio 3")); sl["g2"].append(("s", "s_setprio 2"))
            else:
                sl["g0"].append(("s", "s_setprio 1")); sl["g2"].append(("s", "s_setprio 0"))
        order = ["f"] if t % 2 == 0 else ["g0", "a", "b", "c", "g2", "d", "e", "f"]
        while pend and order:
            k = order.pop(0)
            nops = sum(1 for it in pend if it[0] != "s")
            sl[k] += take(pend)
            if t % 2 == 1 and nops > len(order) + 1 and pend: sl[k] += take(pend)
        assert not (t % 2 == 1 and pend), pend
        last = (t == NT - 1)
        att_group(a, SA, 0, qk8(t, SB, QB), pv(t-1, OB, 1, 1) if t > 0 else None, sl["g0"], sl["a"])
        att_group(a, SA+8, 1, qk16(t, SB, QB), pv(t, OA, 0, 0), sl["b"], sl["c"])
        att_group(a, SB, 0, None if last else qk8(t+1, SA, QA), pv(t, OA, 1, 1), sl["g2"], sl["d"])
        att_group(a, SB+8, 1, None if last else qk16(t+1, SA, QA), pv(t, OB, 0, 0), sl["e"], sl["f"])
    a("s_nop 1")
    a(pv(NT-1, OB, 1, 1))
    if OPT["prio"]: a("s_setprio 0")

def att_finish_store(a):
    r = SB
    a(f"v_rcp_f32 v{r}, v{OA+12}")
    a("s_nop 0")
    for i in range(12): a(f"v_mul_f32 v{OA+i}, v{r}, v{OA+i}")
    for i in range(6): a(f"v_cvt_pk_bf16_f32 v{SA+i}, v{OA+2*i}, v{OA+2*i+1}")
    a.vmem(f"buffer_store_dwordx4 {vr(SA,4)}, v{vAT0}, {srd(S_WS)}, s{sT4} offen sc1", "sto")
    a("s_mov_b32 exec_hi, 0")
    a.vmem(f"buffer_store_dwordx2 {vr(SA+4,2)}, v{vAT1}, {srd(S_WS)}, s{sT5} offen sc1", "sto")
    a("s_mov_b32 exec_hi, -1")

def att_epilogue(a):
    a.c("---- attention epilogue")
    t0, t1 = vAT0, vAT1
    a(f"s_mul_i32 s{sT0}, s{sWAVE}, 3328")
    a(f"s_add_u32 s{sT0}, s{sT0}, {XCH}")
    a(f"v_add_u32 v{t0}, s{sT0}, v{vD4}")
    a(f"v_lshlrev_b32 v{PB}, 2, v0")
    a(f"v_add_u32 v{PB+1}, s{sT0}, v{PB}")
    a(f"s_xor_b32 s{sT1}, s{sWAVE}, 4")
    a(f"s_mul_i32 s{sT1}, s{sT1}, 3328")
    a(f"s_add_u32 s{sT1}, s{sT1}, {XCH}")
    a(f"v_add_u32 v{t1}, s{sT1}, v{vD4}")
    a(f"v_add_u32 v{PB+2}, s{sT1}, v{PB}")
    a("s_nop 3")
    for i in range(3): a.ds(f"ds_write_b128 v{t0}, {vr(OB+4*i,4)} offset:{1024*i}", "x")
    a.ds(f"ds_write_b32 v{PB+1}, v{OB+12} offset:3072", "x")
    a.lg_all()
    a("s_barrier")
    for i in range(3): a.ds(f"ds_read_b128 {vr(SA+4*i,4)}, v{t1} offset:{1024*i}", "x")
    a.ds(f"ds_read_b32 v{SA+12}, v{PB+2} offset:3072", "x")
    a(f"s_and_b32 s{sT0}, s{sWAVE}, 3")
    a(f"s_lshl_b32 s{sT0}, s{sT0}, 1")
    a(f"s_lshl_b32 s{sT1}, s{sQB}, 3")
    a(f"s_add_u32 s{sT0}, s{sT0}, s{sT1}")
    a(f"s_add_u32 s{sT0}, s{sT0}, s{sKH}")
    a(f"s_mul_i32 s{sT0}, s{sT0}, {2*AF_T}")
    a(f"s_add_u32 s{sT0}, s{sT0}, {AF_OFF}")
    a(f"s_lshl_b32 s{sT4}, s{sH}, 9")
    a(f"s_add_u32 s{sT4}, s{sT4}, s{sT0}")
    a(f"s_cmp_ge_u32 s{sH}, 20")
    a(f"s_cselect_b32 s{sT1}, 24576, 0")
    a(f"s_add_u32 s{sT4}, s{sT4}, s{sT1}")
    a(f"s_add_u32 s{sT4}, s{sT4}, {24*1024}")
    a(f"s_lshr_b32 s{sT5}, s{sH}, 1")
    a(f"s_lshl_b32 s{sT5}, s{sT5}, 8")
    a(f"s_and_b32 s{sT1}, s{sH}, 1")
    a(f"s_lshl_b32 s{sT1}, s{sT1}, 3")
    a(f"s_add_u32 s{sT5}, s{sT5}, s{sT1}")
    a(f"s_add_u32 s{sT5}, s{sT5}, s{sT0}")
    a(f"s_add_u32 s{sT5}, s{sT5}, {64*1024}")
    a(f"v_bfe_u32 v{t1}, v0, 4, 1")
    a(f"v_mul_u32_u24 v{t1}, {AF_T}, v{t1}")
    a(f"v_and_b32 v{t0}, 15, v0")
    a(f"v_lshl_add_u32 v{t1}, v{t0}, 4, v{t1}")
    a(f"v_lshrrev_b32 v{t0}, 5, v0")
    a(f"v_lshl_add_u32 v{t0}, v{t0}, 8, v{t1}")
    a.lg_all()
    for i in range(13): a(f"v_add_f32 v{OA+i}, v{OA+i}, v{SA+i}")
    chk = SB + 1
    a(f"v_mul_f32 v{chk}, 0, v{OA}")
    for i in range(1, 12): a(f"v_fma_f32 v{chk}, v{OA+i}, 0, v{chk}")
    a(f"v_add_f32 v{chk}, v{chk}, v{OA+12}")
    a(f"s_mov_b32 s{sT0}, {f32hex(2.0**40)}")
    a(f"v_cmp_le_f32 vcc, {f32hex(2.0**-24)}, v{chk}")
    a(f"v_cmp_ge_f32 s[{sSAVE}:{sSAVE+1}], s{sT0}, v{chk}")
    a("s_nop 1")
    a(f"s_and_b64 vcc, vcc, s[{sSAVE}:{sSAVE+1}]")
    a(f"s_cmp_eq_u64 vcc, -1")
    LF = a.newlabel("fast")
    a(f"s_cbranch_scc1 {LF}")
    att_fallback(a)
    a.label(LF)
    att_finish_store(a)

def att_fallback(a):
    a.c("---- fallback: exact row max, then shifted exponentials")
    NEG = OB; mx = PB + 7
    kb = KB; vb = VB
    save = (list(a.vm), list(a.lg))
    a.vm_all()
    for r in range(8): a(f"v_mov_b32 v{VB+r}, 0x3f803f80")
    a(f"s_mul_i32 s{sT0}, s{sKH}, {2*KV_L}")
    if KVL: a(f"s_add_u32 s{sT0}, s{sT0}, {KVL}")
    a(f"v_subrev_u32 v{vKA}, s{sT0}, v{vKA}")
    a(f"v_subrev_u32 v{vKB}, s{sT0}, v{vKB}")
    a(f"v_subrev_u32 v{vVA}, s{sT0}, v{vVA}")
    a(f"s_mul_i32 s{sT2}, s{sH}, {KV_H}")
    a(f"s_add_u32 s{sT2}, s{sT2}, {KV_OFF}")
    a(f"v_mov_b32 v{mx}, 0xff800000")
    L1 = a.newlabel("fb1"); L2 = a.newlabel("fb2")
    a(f"s_mov_b32 s{sT1}, 0")
    a.label(L1)
    a(f"s_add_u32 s{sT0}, s{sT2}, s{sT1}")
    a(f"buffer_load_dwordx2 {vr(kb,2)}, v{vKA}, {srd(S_WS)}, s{sT0} offen sc1")
    a(f"buffer_load_dwordx2 {vr(kb+2,2)}, v{vKA}, {srd(S_WS)}, s{sT0} offen offset:512 sc1")
    a(f"buffer_load_dwordx2 {vr(kb+4,2)}, v{vKB}, {srd(S_WS)}, s{sT0} offen offset:1024 sc1")
    a("s_waitcnt vmcnt(0)")
    a(qk8(0, SA, QA))
    a("s_nop 9")
    a(qk16(0, SA, QA))
    a("s_nop 11")
    for i in range(8): a(f"v_max3_f32 v{mx}, v{mx}, v{SA+2*i}, v{SA+2*i+1}")
    a(f"s_add_u32 s{sT1}, s{sT1}, {KV_T}")
    a(f"s_cmp_lt_u32 s{sT1}, {KV_H}")
    a(f"s_cbranch_scc1 {L1}")
    a(f"v_mov_b32 v{mx-1}, v{mx}")
    a("s_nop 1")
    a(f"v_permlane32_swap_b32 v{mx}, v{mx-1}")
    a("s_nop 1")
    a(f"v_max_f32 v{mx}, v{mx}, v{mx-1}")
    for i in range(16):
        a(f"v_sub_f32 v{NEG+i}, 0, v{mx}")
        a(f"v_mov_b32 v{OA+i}, 0")
    a(f"s_mov_b32 s{sT1}, 0")
    a.label(L2)
    a(f"s_add_u32 s{sT0}, s{sT2}, s{sT1}")
    a(f"buffer_load_dwordx2 {vr(kb,2)}, v{vKA}, {srd(S_WS)}, s{sT0} offen sc1")
    a(f"buffer_load_dwordx2 {vr(kb+2,2)}, v{vKA}, {srd(S_WS)}, s{sT0} offen offset:512 sc1")
    a(f"buffer_load_dwordx2 {vr(kb+4,2)}, v{vKB}, {srd(S_WS)}, s{sT0} offen offset:1024 sc1")
    a(f"s_mov_b64 exec, s[{sEXV}:{sEXV+1}]")
    a(f"buffer_load_dwordx4 {vr(vb,4)}, v{vVA}, {srd(S_WS)}, s{sT0} offen offset:1280 sc1")
    a(f"buffer_load_dwordx4 {vr(vb+4,4)}, v{vVA}, {srd(S_WS)}, s{sT0} offen offset:1920 sc1")
    a("s_mov_b64 exec, -1")
    a("s_waitcnt vmcnt(0)")
    a(f"v_mfma_f32_32x32x8_bf16 {vr(SA,16)}, {vr(kb+4,2)}, {vr(QA+4,2)}, {vr(NEG,16)}")
    a("s_nop 9")
    a(qk16(0, SA, QA))
    a("s_nop 11")
    for i in range(16): a(f"v_exp_f32 v{SA+i}, v{SA+i}")
    a("s_nop 0")
    for i in range(8): a(f"v_cvt_pk_bf16_f32 v{PB+i}, v{SA+2*i}, v{SA+2*i+1}")
    a("s_nop 1")
    a(pv(0, OA, 0, 0))
    a(pv(0, OA, 1, 1))
    a(f"s_add_u32 s{sT1}, s{sT1}, {KV_T}")
    a(f"s_cmp_lt_u32 s{sT1}, {KV_H}")
    a(f"s_cbranch_scc1 {L2}")
    a("s_nop 11")
    a.vm, a.lg = save

AC1, AC2, TW = 8, 28, 48
vWL, vWH, vG, vTT0, vTT1 = 1, 2, 3, 6, 7
vB2 = 88
TSLOT = [40960, 81920, 122880, 0]
NS = 34
def HR(s): return 120 + 4*s

def tail_setup(a):
    a.c("---- tail setup")
    a(f"s_lshr_b32 s{sRB}, s{sXCD}, 1")
    a(f"s_lshl_b32 s{sRB}, s{sRB}, 3")
    a(f"s_add_u32 s{sRB}, s{sRB}, s{sLO}")
    a(f"s_and_b32 s{sCG}, s{sXCD}, 1")
    a(f"s_lshl_b32 s{sCG}, s{sCG}, 2")
    a(f"s_add_u32 s{sCG}, s{sCG}, s{sHI}")
    a(f"s_lshr_b32 s{sKH}, s{sWAVE}, 2")
    a(f"s_and_b32 s{sT0}, s{sWAVE}, 3")
    a(f"s_mul_i32 s{sWG}, s{sCG}, 68")
    a(f"s_mul_i32 s{sT1}, s{sKH}, {NS}")
    a(f"s_add_u32 s{sWG}, s{sWG}, s{sT1}")
    a(f"s_add_u32 s{sWG}, s{sWG}, s{sT0}")
    a(f"s_mul_i32 s{sWG}, s{sWG}, 5120")
    a(f"s_add_u32 s{sWG}, s{sWG}, {WF_OFF}")
    a(f"s_lshl_b32 s{sAG}, s{sRB}, 2")
    a(f"s_add_u32 s{sAG}, s{sAG}, s{sT0}")
    a(f"s_mul_i32 s{sAG}, s{sAG}, {AF_T}")
    a(f"s_lshl_b32 s{sT1}, s{sT1}, 10")
    a(f"s_add_u32 s{sAG}, s{sAG}, s{sT1}")
    a(f"s_add_u32 s{sAG}, s{sAG}, {AF_OFF}")
    a(f"s_mul_i32 s{sTWM}, s{sWAVE}, 5120")

def tail_dma_list(u, sreg=None):
    sr = sreg if sreg is not None else sT0
    d = (u != 8)
    out = [("s", f"s_add_u32 m0, s{sTWM}, {TSLOT[u%4]}"), ("s", f"s_add_u32 s{sr}, s{sWG}, {u*20480}")]
    for e in range(4):
        off = f" offset:{e*1024}" if e else ""
        out.append(("v", f"buffer_load_dwordx4 v{vD4}, {srd(S_WS)}, s{sr} offen{off} sc1 lds", f"w{u}", d))
    out += [("s", f"s_add_u32 m0, s{sTWM}, {TSLOT[u%4]+4096}"), ("s", f"s_add_u32 s{sr}, s{sWG}, {u*20480+4096}")]
    out.append(("v", f"buffer_load_dwordx4 v{vD4}, {srd(S_WS)}, s{sr} offen sc1 lds", f"w{u}", d))
    return out
def tail_dma(a, u):
    L = None
    if u == 8:
        L = a.newlabel("nod")
        a(f"s_bitcmp1_b32 s{sWAVE}, 1")
        a(f"s_cbranch_scc1 {L}")
    emit_list(a, tail_dma_list(u))
    if L: a.label(L)

def tail_aload_list(s0, n, sreg=None):
    sr = sreg if sreg is not None else sT0
    out = [("s", f"s_add_u32 s{sr}, s{sAG}, {(s0//4)*4096}")]
    for s in range(s0, s0+n):
        assert s // 4 == s0 // 4
        off = f" offset:{(s%4)*1024}" if s % 4 else ""
        out.append(("v", f"buffer_load_dwordx4 {vr(HR(s),4)}, v{vD4}, {srd(S_WS)}, s{sr} offen{off} sc1", f"a{s}"))
    return out

def tail_small_loads(a):
    mk_srd(a, S_M1, P_B2, 1280)
    a(f"v_lshrrev_b32 v{vTT0}, 4, v0")
    a(f"v_lshlrev_b32 v{vTT1}, 3, v{vTT0}")
    a(f"v_lshlrev_b32 v{vTT0}, 4, v{vTT0}")
    a(f"s_mul_i32 s{sT0}, s{sCG}, 160")
    a.vmem(f"buffer_load_dwordx4 {vr(vB2,4)}, v{vTT0}, {srd(S_M1)}, s{sT0} offen", "b2")
    a.vmem(f"buffer_load_dwordx4 {vr(vB2+4,4)}, v{vTT0}, {srd(S_M1)}, s{sT0} offen offset:64", "b2")
    a.vmem(f"buffer_load_dwordx2 {vr(vB2+8,2)}, v{vTT1}, {srd(S_M1)}, s{sT0} offen offset:128", "b2")
    a(f"s_and_b32 s{sT0}, s{sWAVE}, 3")
    a(f"s_lshl_b32 s{sT1}, s{sRB}, 2")
    a(f"s_add_u32 s{sT0}, s{sT0}, s{sT1}")
    a(f"s_lshl_b32 s{sT0}, s{sT0}, 6")
    a(f"s_add_u32 s{sT0}, s{sT0}, {G_OFF}")
    a(f"v_and_b32 v{vG}, 15, v0")
    a(f"v_lshlrev_b32 v{vG}, 2, v{vG}")
    a.vmem(f"buffer_load_dword v{vG}, v{vG}, {srd(S_WS)}, s{sT0} offen sc1", "g")

def tail_reads(s):
    u = s // 4
    base = TSLOT[u % 4]
    reg = vWL if base < 81920 else vWH
    base = base if base < 81920 else base - 81920
    return [f"ds_read_b128 {vr(TW+(s%2)*20+4*T,4)}, v{reg} offset:{base+(s%4)*5120+T*1024}" for T in range(5)]
def tail_mfmas(s):
    acc = AC1 if s < 24 else AC2
    out = []
    for T in range(5):
        d = vr(acc+4*T, 4)
        cin = "0" if s in (0, 24) else d
        out.append(f"v_mfma_f32_16x16x32_bf16 {d}, {vr(TW+(s%2)*20+4*T,4)}, {vr(HR(s),4)}, {cin}")
    return out

def tail_main(a, issued, pre=None, post=None):
    pre = pre or {}; post = post or {}
    a(f"s_mul_i32 s{sT0}, s{sKH}, 20480")
    a(f"v_add_u32 v{vWL}, s{sT0}, v{vD4}")
    a(f"v_add_u32 v{vWH}, 81920, v{vWL}")
    pend = []
    for s in range(NS + 1):
        if s % 4 == 0 and s < NS:
            u = s // 4
            if u in pre: pre[u]()
            a.wait_vm(f"w{u}", lg0=True)
            a("s_barrier")
            a.stamp(f"tail chunk{u}")
            if u in post: pend += post[u]()
            if u + 3 < 9 and u + 3 >= issued:
                if u + 3 == 8: pend.append(("f", lambda: tail_dma(a, 8)))
                else: pend += tail_dma_list(u + 3)
        else:
            a.lg_all()
        rd = tail_reads(s) if s < NS else []
        mf = tail_mfmas(s-1) if s > 0 else []
        if s > 0: a.wait_vm(f"a{s-1}")
        for i in range(5):
            if i < len(mf): a(mf[i])
            for r in rd[2*i:2*i+2]: a.ds(r, f"t{s}")
            if i >= 3 and pend:
                n = 1
                while n < len(pend) and pend[n-1][0] == "s": n += 1
                emit_list(a, pend[:n]); pend = pend[n:]
    assert not pend
    a.c("---- mix, exchange, store")
    a.wait_vm(["g", "b2"])
    omg = vWH
    a(f"v_sub_f32 v{omg}, 1.0, v{vG}")
    a(f"v_cvt_pk_bf16_f32 v{omg}, v{omg}, v{omg}")
    a(f"v_and_b32 v{omg}, 0xffff0000, v{omg}")
    a(f"s_mul_i32 s{sT1}, s{sWAVE}, 3072")
    a(f"v_add_u32 v{vTT0}, s{sT1}, v{vD4}")
    a(f"s_xor_b32 s{sT1}, s{sWAVE}, 4")
    a(f"s_mul_i32 s{sT1}, s{sT1}, 3072")
    a(f"v_add_u32 v{vTT1}, s{sT1}, v{vD4}")
    for i in range(20): a(f"v_mul_f32 v{AC1+i}, v{omg}, v{AC1+i}")
    for i in range(20): a(f"v_fma_f32 v{AC1+i}, v{vG}, v{AC2+i}, v{AC1+i}")
    XB = 40960 + 40960
    a(f"s_and_b32 s{sT0}, s{sWAVE}, 3")
    a(f"s_lshl_b32 s{sT1}, s{sRB}, 2")
    a(f"s_add_u32 s{sT0}, s{sT0}, s{sT1}")
    a(f"s_mul_i32 s{sT0}, s{sT0}, {16*1280}")
    a(f"s_mul_i32 s{sT1}, s{sCG}, 160")
    a(f"s_add_u32 s{sT0}, s{sT0}, s{sT1}")
    a(f"v_add_u32 v{vTT0}, {XB}, v{vTT0}")
    a(f"v_add_u32 v{vTT1}, {XB}, v{vTT1}")
    LB = a.newlabel("mixB"); LE = a.newlabel("mixE")
    a(f"s_cmp_eq_u32 s{sKH}, 1")
    a(f"s_cbranch_scc1 {LB}")
    for own, send in (((0, 1), (2, 3, 4)), ((2, 3, 4), (0, 1))):
        for k, T in enumerate(send): a.ds(f"ds_write_b128 v{vTT0}, {vr(AC1+4*T,4)} offset:{k*1024}", "x")
        a(f"v_and_b32 v{vWL}, 15, v0")
        a(f"v_mul_u32_u24 v{vWL}, 1280, v{vWL}")
        a(f"v_lshrrev_b32 v{vD4}, 4, v0")
        a(f"v_lshl_add_u32 v{vG}, v{vD4}, 3, v{vWL}")
        a(f"v_lshl_add_u32 v{vWL}, v{vD4}, 4, v{vWL}")
        for T in own:
            for r in range(4):
                src = vB2 + 2*T + r//2
                tmp = TW + T*4 + r
                if r % 2 == 0: a(f"v_lshlrev_b32 v{tmp}, 16, v{src}")
                else: a(f"v_and_b32 v{tmp}, 0xffff0000, v{src}")
                a(f"v_fma_f32 v{AC1+4*T+r}, v{omg}, v{tmp}, v{AC1+4*T+r}")
        a.lg_all()
        a("s_barrier")
        for k, T in enumerate(own): a.ds(f"ds_read_b128 {vr(TW+4*T,4)}, v{vTT1} offset:{k*1024}", f"x{T}")
        for T in own:
            a.wait_lg(f"x{T}")
            for r in range(4): a(f"v_add_f32 v{AC1+4*T+r}, v{AC1+4*T+r}, v{TW+4*T+r}")
            o = TW + 20 + 2*T
            a(f"v_cvt_pk_bf16_f32 v{o}, v{AC1+4*T}, v{AC1+4*T+1}")
            a(f"v_cvt_pk_bf16_f32 v{o+1}, v{AC1+4*T+2}, v{AC1+4*T+3}")
            if T == 1: a(f"buffer_store_dwordx4 {vr(TW+20,4)}, v{vWL}, {srd(S_OUT)}, s{sT0} offen")
            if T == 3: a(f"buffer_store_dwordx4 {vr(TW+24,4)}, v{vWL}, {srd(S_OUT)}, s{sT0} offen offset:64")
            if T == 4: a(f"buffer_store_dwordx2 {vr(TW+28,2)}, v{vG}, {srd(S_OUT)}, s{sT0} offen offset:128")
        if own == (0, 1):
            a(f"s_branch {LE}")
            a.label(LB)
    a.label(LE)
    a.stamp("tail end")


def att_extra(a):
    pieces = []
    for u in range(3):
        for e in range(5):
            pieces.append([("s", f"s_add_u32 m0, s{sTWM}, {TSLOT[u] + e*1024}"),
                           ("s", f"s_add_u32 s{sDM2}, s{sWG}, {u*20480 + e*1024}"),
                           ("v", f"buffer_load_dwordx4 v{vD4}, {srd(S_WS)}, s{sDM2} offen sc1 lds", f"w{u}")])
    def extra(c):
        out = []
        if c == 2: out.append(("f", lambda: flag_set(a, 1, 120)))
        if c == 3: out.append(("f", lambda: poll(a, "B", 120, 122, "issue")))
        if 4 <= c < 16:
            i = c - 4
            out += tail_aload_list(2*i, 2, sDM)
            n = 2 if i < 3 else 1
            for _ in range(n): out += pieces.pop(0)
            if c == 8: out.append(("f", lambda: tail_warm(a)))
        return out
    def pre(c):
        if c == 2: a.wait_vm("st1")
        if c == 4: poll(a, "B", 120, 122, "check")
    return extra, pre

def tail_warm(a):
    t = vAT0
    a(f"s_lshl_b32 s{sT0}, s{sLO}, 3")
    a(f"s_add_u32 s{sT0}, s{sT0}, s{sWAVE}")
    a(f"s_and_b32 s{sT1}, s{sT0}, 31")
    a(f"s_mul_i32 s{sT1}, s{sT1}, {28*128}")
    a(f"s_lshr_b32 s{sT0}, s{sT0}, 5")
    a(f"s_mul_i32 s{sT0}, s{sT0}, {NS*5120}")
    a(f"s_add_u32 s{sT0}, s{sT0}, s{sT1}")
    a(f"s_mul_i32 s{sT1}, s{sCG}, {68*5120}")
    a(f"s_add_u32 s{sT0}, s{sT0}, s{sT1}")
    a(f"s_add_u32 s{sT0}, s{sT0}, {WF_OFF + 12*5120}")
    a(f"v_min_u32 v{t}, 27, v0")
    a(f"v_lshlrev_b32 v{t}, 7, v{t}")
    a.vmem(f"buffer_load_dword v{t}, v{t}, {srd(S_WS)}, s{sT0} offen sc1", "warm")

def mega(a):
    phase1(a)
    a.stamp_move(255)
    tail_setup(a)
    att_setup2(a)
    extra, pre = att_extra(a)
    attention_main(a, extra, pre)
    a.stamp("att main done")
    att_epilogue(a)
    a.stamp("att end")
    a.stamp_move(110)
    tail_small_loads(a)
    pre = {1: lambda: a.wait_vm("sto"), 3: lambda: poll(a, "C", 98, 100, "check")}
    post = {1: lambda: [("f", lambda: flag_set(a, 2, 98))],
            2: lambda: [("f", lambda: poll(a, "C", 98, 100, "issue"))],
            3: lambda: tail_aload_list(24, 4, sDM) + tail_aload_list(28, 4, sDM) + tail_aload_list(32, 2, sDM)}
    tail_main(a, 3, pre, post)

HEADER = open("cdna_kernels/" + NAME + ".s.ref").read().split("; Override launch")[0]

def build(fn, stamps=False):
    a = Asm()
    a.stamps = stamps
    name = NAME + "_kernel"
    a.stampreg = 17; a.nstamp = 0; a.stampnames = []; a.stampbase = STAMP_OFF
    a('.amdgcn_target "amdgcn-amd-amdhsa--gfx950"')
    a(".text")
    a(f".globl {name}")
    a(".p2align 8")
    a(f".type {name},@function")
    a.label(name)
    prologue(a)
    a.rstamp(62)
    mega(a)
    a.stamp_flush(srd(S_WS), a.stampbase)
    a.label("L_exit")
    a("s_endpgm")
    a('.section .rodata,"a"')
    a(".p2align 6")
    a(f".amdhsa_kernel {name}")
    a(".amdhsa_next_free_vgpr 256")
    a(".amdhsa_next_free_sgpr 102")
    a(".amdhsa_accum_offset 256")
    a(".amdhsa_group_segment_fixed_size 0")
    a(".amdhsa_kernarg_size 96")
    a(".amdhsa_user_sgpr_count 2")
    a(".amdhsa_user_sgpr_kernarg_segment_ptr 1")
    a(".amdhsa_system_sgpr_workgroup_id_x 1")
    a(".end_amdhsa_kernel")
    for e in check_hazards(a.lines): print("HAZARD", e)
    if stamps: json.dump({"mega": a.stampnames}, open(fn + ".names", "w"))
    open(fn, "w").write(HEADER + "; @launch grid=(256,1,1) block=(512,1,1) lds=163840\n" + a.text())

if __name__ == "__main__":
    for o in sys.argv[2:]:
        if o.startswith("no"): OPT[o[2:]] = False
        elif "=" in o: k, v = o.split("="); OPT[k] = int(v)
        else: OPT[o] = True
    build(sys.argv[1], stamps=OPT.get("stamps", False))
```

```python
import re

class Asm:
    def __init__(self):
        self.lines = []
        self.vm = []
        self.lg = []
        self.uid = 0
        self.dst = {}
    def __call__(self, s, tag=None):
        for ln in s.split("\n"):
            ln = ln.strip()
            if ln:
                I = parse(ln)
                if I:
                    live = {}
                    for t in [e[0] for e in self.vm] + list(self.lg):
                        for r in self.dst.get(t, ()): live[r] = t
                    hit = [(r, live[r]) for r in (I["src"] | I["dst"]) if r in live and live[r] != tag]
                    if hit: print("ASYNC-DST", ln, "touches", sorted(hit)[:4], "at line", len(self.lines))
                    if tag is not None:
                        if not any(e[0] == tag for e in self.vm) and tag not in self.lg: self.dst[tag] = set()
                        self.dst[tag] |= I["dst"]
                self.lines.append(ln)
    def c(self, s):
        self.lines.append("; " + s)
    def label(self, name):
        self.lines.append(name + ":")
    def newlabel(self, base):
        self.uid += 1
        return f"L_{base}_{self.uid}"
    def vmem(self, s, tag, definite=True):
        self(s, tag)
        self.vm.append((tag, definite))
    def _vm_n(self, tags):
        if isinstance(tags, str): tags = [tags]
        last = -1
        for i, (t, d) in enumerate(self.vm):
            if t in tags: last = i
        if last < 0: return None
        return (sum(1 for (t, d) in self.vm[last+1:] if d is True),
                sum(1 for (t, d) in self.vm[last+1:] if d is True or d == "w0"), last)
    inw0 = False
    def wait_vm(self, tags, lg0=False):
        r = self._vm_n(tags)
        lg = " lgkmcnt(0)" if lg0 else ""
        if lg0: self.lg = []
        if r is None:
            if lg0: self("s_waitcnt lgkmcnt(0)")
            return
        n, n0, last = r
        assert n0 <= 63, n0
        self.vm = self.vm[last+1:]
        if self.inw0:
            self(f"s_waitcnt vmcnt({n0}){lg}")
        elif n0 == n:
            self(f"s_waitcnt vmcnt({n}){lg}")
        else:
            L0 = self.newlabel("wv"); L1 = self.newlabel("wv")
            self("s_cmp_eq_u32 s48, 0")
            self(f"s_cbranch_scc1 {L0}")
            self(f"s_waitcnt vmcnt({n})")
            self.label(L0)
            self(f"s_waitcnt vmcnt({n0}){lg}")
    def vm_all(self):
        self("s_waitcnt vmcnt(0)")
        self.vm = []
    def ds(self, s, tag):
        self(s, tag)
        self.lg.append(tag)
    def wait_lg(self, tags):
        if isinstance(tags, str): tags = [tags]
        last = -1
        for i, t in enumerate(self.lg):
            if t in tags: last = i
        if last < 0: return
        n = len(self.lg) - last - 1
        if n > 15:
            n = 15
            last = len(self.lg) - 16
        self(f"s_waitcnt lgkmcnt({n})")
        self.lg = self.lg[last+1:]
    def lg_all(self):
        self("s_waitcnt lgkmcnt(0)")
        self.lg = []
    stamps = False
    stampreg = 17
    nstamp = 0
    def stamp(self, name=""):
        if not self.stamps: return
        self.c(f"stamp {self.nstamp} {name}")
        self("s_memtime s[98:99]")
        self("s_waitcnt lgkmcnt(0)")
        self.lg = []
        self(f"v_writelane_b32 v{self.stampreg}, s98, {self.nstamp}")
        self.stampnames.append(name)
        self.nstamp += 1
    def stamp_move(self, reg):
        if not self.stamps: return
        self(f"v_mov_b32 v{reg}, v{self.stampreg}")
        self.stampreg = reg
    def rstamp(self, idx):
        if not self.stamps: return
        self("s_memrealtime s[98:99]")
        self("s_waitcnt lgkmcnt(0)")
        self.lg = []
        self(f"v_writelane_b32 v{self.stampreg}, s98, {idx}")
    def stamp_flush(self, srd, base):
        if not self.stamps: return
        self.rstamp(63)
        self("s_lshl_b32 s98, s2, 3")
        self("s_add_u32 s98, s98, s48")
        self("s_lshl_b32 s98, s98, 8")
        self(f"s_add_u32 s98, s98, {base}")
        self("v_lshlrev_b32 v0, 2, v0")
        self(f"buffer_store_dword v{self.stampreg}, v0, {srd}, s98 offen")
    def text(self):
        out = []
        for ln in self.lines:
            if ln.endswith(":") or ln.startswith(".") or ln.startswith(";"):
                out.append(ln)
            else:
                out.append("    " + ln)
        return "\n".join(out) + "\n"

_reg = re.compile(r"\b([vsa])(\d+)\b|\b([vsa])\[(\d+):(\d+)\]|\b(vcc|exec|m0|scc)\b")
def regs_of(tok):
    out = set()
    for m in _reg.finditer(tok):
        if m.group(1): out.add(m.group(1) + m.group(2))
        elif m.group(3):
            for i in range(int(m.group(4)), int(m.group(5)) + 1): out.add(m.group(3) + str(i))
        else: out.add(m.group(6))
    return out
TRANS = ("v_exp_f32","v_log_f32","v_rcp_f32","v_rsq_f32","v_sqrt_f32","v_sin_f32","v_cos_f32","v_rcp_iflag_f32","v_exp_f16")
def split_ops(rest):
    ops=[];d=0;cur=""
    for ch in rest:
        if ch=="[": d+=1
        if ch=="]": d-=1
        if ch=="," and d==0: ops.append(cur.strip()); cur=""
        else: cur+=ch
    if cur.strip(): ops.append(cur.strip())
    return ops
def parse(ln):
    ln = ln.split(";")[0].strip()
    if not ln or ln.endswith(":") or ln.startswith("."): return None
    p = ln.split(None,1)
    op = p[0]; rest = p[1] if len(p)>1 else ""
    ops = split_ops(rest)
    I = dict(op=op, text=ln, dst=set(), src=set(), kind="other", srcC=set(), srcAB=set(), data=set())
    if op.startswith("v_mfma"):
        I["kind"]="mfma"; I["dst"]=regs_of(ops[0]); I["srcAB"]=regs_of(ops[1])|regs_of(ops[2]); I["srcC"]=regs_of(ops[3]); I["src"]=I["srcAB"]|I["srcC"]
        I["passes"] = 4 if "16x16" in op else 8
        if "_2b" in op: I["passes"]=16
    elif op.startswith("v_"):
        I["kind"]="valu"
        if op.startswith("v_cmp"):
            I["dst"]=regs_of(ops[0]);
            if op.startswith("v_cmpx"): I["dst"]|={"exec"}
            for o in ops[1:]: I["src"]|=regs_of(o)
        elif op.startswith("v_permlane") and "swap" in op:
            I["dst"]=regs_of(ops[0])|regs_of(ops[1]); I["src"]=set(I["dst"]); I["perm"]=True
        elif op.startswith(("v_add_co","v_sub_co","v_addc_co","v_subb_co")):
            I["dst"]=regs_of(ops[0])|regs_of(ops[1])
            for o in ops[2:]: I["src"]|=regs_of(o)
        else:
            I["dst"]=regs_of(ops[0])
            for o in ops[1:]: I["src"]|=regs_of(o)
            if op.startswith(("v_fmac","v_dot2c","v_pk_fmac")): I["src"]|=I["dst"]
            if op.startswith("v_cndmask") and len(ops)==3: I["src"]|={"vcc"}
        if "dpp" in ln or "row_" in ln or "quad_perm" in ln: I["dpp"]=True; I["src"]|=I["dst"]
        if op.replace("_e32","").replace("_e64","") in TRANS: I["trans"]=True
        if op.startswith(("v_readfirstlane","v_readlane")): I["rdlane"]=True
    elif op.startswith(("buffer_","global_")):
        I["kind"]="vmem"
        isstore = "store" in op or ("atomic" in op)
        islds = re.search(r"\blds\b", ln) is not None
        if op.startswith("buffer_inv") or op.startswith("buffer_wbl2"): return I
        if islds:
            for o in ops: I["src"]|=regs_of(o)
            I["src"]|={"m0"}; I["dma"]=True
        elif isstore:
            for o in ops: I["src"]|=regs_of(o)
            if op.startswith("buffer_"): I["data"]=regs_of(ops[0])
            else: I["data"]=regs_of(ops[1])
            if "x3" in op or "x4" in op: I["wide"]=True
        else:
            I["dst"]=regs_of(ops[0])
            for o in ops[1:]: I["src"]|=regs_of(o)
    elif op.startswith("ds_"):
        I["kind"]="ds"
        if "read" in op or "permute" in op or "swizzle" in op:
            I["dst"]=regs_of(ops[0])
            for o in ops[1:]: I["src"]|=regs_of(o)
        else:
            for o in ops: I["src"]|=regs_of(o)
    elif op.startswith("s_"):
        I["kind"]="salu"
        if op=="s_nop": I["nop"]=int(ops[0],0)+1
        elif op.startswith(("s_waitcnt","s_barrier","s_branch","s_cbranch","s_endpgm","s_setprio","s_sleep","s_cmp")):
            for o in ops: I["src"]|=regs_of(o)
        else:
            if ops: I["dst"]=regs_of(ops[0])
            for o in ops[1:]: I["src"]|=regs_of(o)
    return I

def check_hazards(lines):
    ins=[]
    for idx,ln in enumerate(lines):
        I=parse(ln)
        if I: I["line"]=idx; ins.append(I)
    errs=[]
    for i,B in enumerate(ins):
        dist=0
        for j in range(i-1, max(-1,i-24), -1):
            A=ins[j]
            need=0; why=""
            vd={r for r in A["dst"] if r[0] in "va" and r not in("vcc",)}
            sd={r for r in A["dst"] if r[0]=="s" or r in("vcc","exec","m0")}
            if A["kind"]=="valu":
                if B["kind"]=="mfma" and vd & B["src"]: need,why=2,"valu->mfma"
                if B["kind"]=="mfma" and "exec" in A["dst"]: need,why=4,"valu exec->mfma"
                if A.get("trans") and B["kind"] in("valu",) and not B.get("trans") and vd & B["src"]: need,why=max(need,1),"trans->valu"
                if A.get("trans") and B["kind"]=="valu" and B.get("trans") and vd & B["src"]: need,why=max(need,1),"trans->trans(conservative)"
                if B.get("perm") and vd & B["src"]: need,why=max(need,2),"valu->permlane"
                if B.get("dpp") and vd & B["src"]: need,why=max(need,2),"valu->dpp"
                if B.get("rdlane") and vd & B["src"]: need,why=max(need,1),"valu->readlane"
                if B["kind"]=="vmem" and (sd & B["src"]): need,why=max(need,5),"valu sgpr->vmem"
                if B["kind"]=="valu" and (sd & B["src"]): need,why=max(need,2),"valu sgpr->valu"
                if B["kind"]=="salu" and (sd & B["src"]): need,why=max(need,1),"valu sgpr->salu(cons)"
                if "exec" in A["dst"] and B.get("dpp"): need,why=max(need,5),"valu exec->dpp"
                if "exec" in A["dst"] and (B.get("rdlane") or B.get("perm")): need,why=max(need,4),"valu exec->lane"
            if A["kind"]=="mfma":
                p=A["passes"]
                rd={4:8,8:12,16:20}[p]
                if B["kind"] in("valu","vmem","ds") and (vd & (B["src"]|B["dst"])): need,why=rd,"mfma->valu/mem"
                if B["kind"]=="mfma":
                    if vd & B["srcAB"]: need,why=rd,"mfma->mfma AB"
                    elif vd & B["srcC"]:
                        if not (A["dst"]==B["srcC"] and A["op"]==B["op"]): need,why=max(need,{4:6,8:10,16:18}[p]),"mfma->mfma C overlap"
                    elif vd & B["dst"]: need,why=max(need,{4:6,8:10,16:18}[p]),"mfma->mfma WAW(cons)"
                if B["kind"]=="valu" and (A["srcC"] & B["dst"]): need,why=max(need,{4:3,8:7,16:15}[p]),"mfma C WAR"
            if A["kind"]=="salu" and "m0" in A["dst"] and B.get("dma"): need,why=max(need,1),"m0->dma"
            if A["kind"]=="vmem" and A.get("wide") and (A["data"] & B["dst"]) and B["kind"] in("valu","mfma"): need,why=max(need,2),"store data WAR"
            if need>dist:
                errs.append(f"line {B['line']}: '{B['text']}' needs {need} ws after '{A['text']}' (has {dist}) [{why}]")
            dist += A.get("nop",1)
    return errs
```

```python
import sys, math, struct, json
from emit import Asm, check_hazards

NAME = "gated_mix__softmax_full_mha__dense_activation_squared_relu__prompt"
QF_OFF = 0
KV_OFF = 2621440
KV_T = 2560
KV_L = 3072
KV_H = 64 * KV_T
AF_OFF = KV_OFF + 32 * KV_H
AF_T = 68 * 1024
WF_OFF = AF_OFF + 128 * AF_T
G_OFF = WF_OFF + 8 * 68 * 5120
FLAG_OFF = G_OFF + 8192
STAMP_OFF = FLAG_OFF + 3 * 32768
WS_USED = STAMP_OFF + 3 * 2048 * 256
QSCALE = (20 ** -0.5) * math.log2(math.e)
def f32hex(x): return "0x%08x" % struct.unpack("<I", struct.pack("<f", x))[0]

OPT = dict(fine=False, prio=True, pf=True, spread=True, abar=12, pf2=4, rot=True, hlate=False, c1late=True, apoll=36)

S_X, S_WQ, S_W1, S_WS, S_OUT, S_M1, S_M2 = 8, 12, 16, 20, 24, 28, 32
P_WO, P_B1, P_W2, P_B2, P_GW, P_DBG = 36, 38, 40, 42, 44, 46
sWAVE, sM, sJ, sT0, sT1, sT2, sT3, sT4, sT5 = 48, 49, 50, 51, 52, 53, 54, 55, 56
sLDSW, sOffX, sOffW, sScale, sXCD, sLO, sHI = 57, 58, 59, 60, 61, 62, 63
sEXV, sSAVE = 64, 66
sH, sQB, sKVG, sKH, sKVM = 68, 69, 70, 71, 72
sRB, sCG, sWG, sAG, sTWM = 73, 74, 75, 76, 77
sDM, sW1M, sW1G, sEPI, sPPC, sPD0, sPD1, sPFX, sPFW, sDM2 = 78, 79, 80, 81, 82, 83, 84, 85, 86, 87
sSPIN = 96
sCK, sCK1, sROT = 88, 89, 90
S_DBG = 92
def srd(b): return f"s[{b}:{b+3}]"
def vr(b, n=1): return f"v{b}" if n == 1 else f"v[{b}:{b+n-1}]"

def mk_srd(a, base, ptr, size):
    a(f"s_mov_b32 s{base}, s{ptr}")
    a(f"s_mov_b32 s{base+1}, s{ptr+1}")
    a(f"s_mov_b32 s{base+2}, {size}")
    a(f"s_mov_b32 s{base+3}, 0x00020000")

def emit_list(a, lst):
    for it in lst:
        if it[0] == "s": a(it[1])
        elif it[0] == "v": a.vmem(it[1], it[2], definite=(it[3] if len(it) > 3 else True))
        elif it[0] == "d": a.ds(it[1], it[2])
        elif it[0] == "f": it[1]()
def take(pend):
    k = 1
    while k < len(pend) and pend[k-1][0] == "s": k += 1
    out = pend[:k]; del pend[:k]
    return out

def wait_st(a, tag):
    if OPT.get("strict"): a.vm_all()
    else: a.wait_vm(tag)

def prologue(a):
    a("s_cmp_ge_u32 s2, 256")
    a("s_cbranch_scc1 L_exit")
    a("s_load_dwordx16 s[68:83], s[0:1], 0")
    a("s_load_dwordx8 s[84:91], s[0:1], 64")
    a(f"v_lshrrev_b32 v1, 6, v0")
    a(f"s_and_b32 s{sXCD}, s2, 7")
    a(f"v_readfirstlane_b32 s{sWAVE}, v1")
    a(f"s_lshr_b32 s{sLO}, s2, 3")
    a(f"s_and_b32 s{sLO}, s{sLO}, 7")
    a(f"s_lshr_b32 s{sHI}, s2, 6")
    a(f"v_and_b32 v0, 63, v0")
    a(f"s_mov_b32 s{sSPIN}, 0")
    a(f"s_and_b32 s{sM}, s{sXCD}, 1")
    a(f"s_lshl_b32 s{sM}, s{sM}, 3")
    a(f"s_add_u32 s{sM}, s{sM}, s{sLO}")
    a(f"s_lshr_b32 s{sJ}, s{sXCD}, 1")
    a(f"s_lshl_b32 s{sJ}, s{sJ}, 2")
    a(f"s_add_u32 s{sJ}, s{sJ}, s{sHI}")
    p1_setup(a)
    a("s_waitcnt lgkmcnt(0)")
    mk_srd(a, S_X, 68, 2621440)
    mk_srd(a, S_WQ, 70, 2457600)
    mk_srd(a, S_M1, 84, 1280)
    mk_srd(a, S_W1, 76, 1966080)
    mk_srd(a, S_WS, 90, WS_USED)
    mk_srd(a, S_OUT, 86, 2621440)
    mk_srd(a, S_DBG, 88, 256)
    for dst, src in ((P_WO, 72), (P_B1, 78), (P_W2, 80), (P_B2, 82)):
        a(f"s_mov_b64 s[{dst}:{dst+1}], s[{src}:{src+1}]")

def wave0(a, body, w=0):
    L = a.newlabel("w0")
    a(f"s_cmp_lg_u32 s{sWAVE}, {w}")
    a(f"s_cbranch_scc1 {L}")
    a.inw0 = True
    body()
    a.inw0 = False
    a.label(L)

def flags_clear(a, t):
    def body():
        a(f"v_lshlrev_b32 v{t}, 15, v0")
        a(f"v_mov_b32 v{t+1}, 0")
        a(f"s_lshl_b32 s{sT0}, s2, 7")
        a(f"s_add_u32 s{sT0}, s{sT0}, {FLAG_OFF}")
        a("s_mov_b64 exec, 7")
        a.vmem(f"buffer_store_dword v{t+1}, v{t}, {srd(S_WS)}, s{sT0} offen sc1", "clr", definite="w0")
        a("s_mov_b64 exec, -1")
    wave0(a, body)

def flags_count_in(a, t):
    def body():
        st = list(a.vm)
        a.wait_vm("clr")
        a.vm = st
        a(f"s_and_b32 s{sT0}, s2, 63")
        a(f"s_lshl_b32 s{sT0}, s{sT0}, 2")
        a(f"v_mov_b32 v{t}, s{sT0}")
        a(f"v_mov_b32 v{t+1}, 1")
        a("s_mov_b64 exec, 1")
        a.vmem(f"buffer_atomic_add v{t+1}, v{t}, {srd(S_DBG)}, 0 offen sc1", "cnt", definite="w0")
        a("s_mov_b64 exec, -1")
    wave0(a, body)

def flag_set(a, which, t):
    def body():
        a(f"v_mov_b32 v{t}, 0")
        a(f"v_mov_b32 v{t+1}, 1")
        a(f"s_lshl_b32 s{sT0}, s2, 7")
        a(f"s_add_u32 s{sT0}, s{sT0}, {FLAG_OFF + which * 32768}")
        a(f"s_mov_b64 exec, 1")
        a.vmem(f"buffer_store_dword v{t+1}, v{t}, {srd(S_WS)}, s{sT0} offen sc1", "flag", definite="w0")
        a("s_mov_b64 exec, -1")
    wave0(a, body)

def poll(a, kind, t, d, stage):
    def addr():
        if kind == "init" :
            a(f"v_lshlrev_b32 v{t}, 2, v0")
        elif kind == "B":
            a(f"v_lshlrev_b32 v{t}, 7, v0")
        elif kind == "C":
            a(f"v_bfe_u32 v{t}, v0, 2, 3")
            a(f"v_and_b32 v{d}, 3, v0")
            a(f"v_lshl_add_u32 v{t}, v{d}, 6, v{t}")
            a(f"v_lshlrev_b32 v{t}, 7, v{t}")
            a(f"s_lshr_b32 s{sT5}, s{sRB}, 2")
            a(f"s_lshl_b32 s{sT5}, s{sT5}, 10")
            a(f"v_add_u32 v{t}, s{sT5}, v{t}")
        else:
            a(f"s_lshl_b32 s{sT3}, s{sXCD}, 2")
            a(f"s_add_u32 s{sT3}, s{sT3}, s{sHI}")
            a(f"s_mul_i32 s{sT3}, s{sT3}, 20")
            a(f"s_add_u32 s{sT4}, s{sT3}, 19")
            a(f"s_lshr_b32 s{sT3}, s{sT3}, 7")
            a(f"s_lshr_b32 s{sT4}, s{sT4}, 7")
            a(f"s_sub_u32 s{sT4}, s{sT4}, s{sT3}")
            for k in range(2):
                if k == 0:
                    a(f"v_bfe_u32 v{d}, v0, 4, 1")
                    a(f"v_mul_u32_u24 v{d}, s{sT4}, v{d}")
                    a(f"v_lshrrev_b32 v{d+1}, 5, v0")
                    a(f"v_mad_u32_u24 v{d}, v{d+1}, 5, v{d}")
                    a(f"v_add3_u32 v{d}, v{d}, s{sT3}, 5")
                    a(f"v_and_b32 v{d+1}, 15, v0")
                else:
                    a(f"v_and_b32 v{d}, 1, v0")
                    a(f"v_mul_u32_u24 v{d}, s{sT4}, v{d}")
                    a(f"v_add_u32 v{d}, s{sT3}, v{d}")
                    a(f"v_bfe_u32 v{d+1}, v0, 1, 1")
                    a(f"s_lshl_b32 s{sT5}, s{sLO}, 1")
                    a(f"v_add_u32 v{d+1}, s{sT5}, v{d+1}")
                a(f"v_lshrrev_b32 v{d+2}, 3, v{d+1}")
                a(f"v_lshrrev_b32 v{d+3}, 2, v{d}")
                a(f"v_lshl_add_u32 v{d+2}, v{d+3}, 1, v{d+2}")
                a(f"v_and_b32 v{d+1}, 7, v{d+1}")
                a(f"v_lshl_add_u32 v{d+2}, v{d+1}, 3, v{d+2}")
                a(f"v_and_b32 v{d}, 3, v{d}")
                a(f"v_lshl_add_u32 v{d+2}, v{d}, 6, v{d+2}")
                a(f"v_lshlrev_b32 v{t+k}, 7, v{d+2}")
    def loads():
        if kind == "init": return [f"buffer_load_dword v{d}, v{t}, {srd(S_DBG)}, 0 offen sc1"]
        out = []
        n = {"A": 2, "B": 4, "C": 1}[kind]
        for k in range(n):
            base = FLAG_OFF + "ABC".index(kind) * 32768 + (k * 8192 if kind == "B" else 0)
            out.append(f"s_mov_b32 s{sT5}, {base}")
            out.append(f"buffer_load_dword v{d+k}, v{t + (k if kind == 'A' else 0)}, {srd(S_WS)}, s{sT5} offen sc1")
        return out
    def issue():
        addr()
        for l in loads():
            if l.startswith("s_"): a(l)
            else: a.vmem(l, "poll" + kind, definite="w0")
    def check():
        L = a.newlabel("spin"); LD = a.newlabel("got")
        st = list(a.vm)
        a.wait_vm("poll" + kind)
        a.label(L)
        if kind in ("A", "B"): a(f"v_and_b32 v{d}, v{d}, v{d+1}")
        if kind == "B":
            a(f"v_and_b32 v{d+2}, v{d+2}, v{d+3}")
            a(f"v_and_b32 v{d}, v{d}, v{d+2}")
        a(f"v_cmp_le_u32 vcc, 4, v{d}" if kind == "init" else f"v_cmp_eq_u32 vcc, 1, v{d}")
        a("s_nop 1")
        a("s_cmp_eq_u64 vcc, -1")
        a(f"s_cbranch_scc1 {LD}")
        a(f"s_add_u32 s{sSPIN}, s{sSPIN}, 1")
        a(f"s_cmp_gt_u32 s{sSPIN}, 0x100000")
        a(f"s_cbranch_scc1 {LD}")
        a("s_sleep 1")
        for l in loads(): a(l)
        a("s_waitcnt vmcnt(0)")
        a(f"s_branch {L}")
        a.label(LD)
        a.vm = [(t_, False if d_ == "w0" else d_) for t_, d_ in st if t_ != "poll" + kind]
    wave0(a, issue if stage == "issue" else check)

XR, ACC, WF = 96, 64, 32
vX0, vX1, vW0, vW1, vU0, vU1, vU2 = 1, 2, 3, 4, 5, 6, 7
vXA, vTA, vTB, vB1, vEA, vPP, vPF = 8, 10, 14, 18, 24, 240, 242
PK = [44, 60, 92, 76]
PP_LDS = 131072

def p1_setup(a):
    t0, t1, t2, t3 = 32, 33, 34, 35
    a(f"s_lshl_b32 s{sLDSW}, s{sWAVE}, 12")
    a(f"s_mul_i32 s{sOffX}, s{sM}, {128*1280}")
    a(f"s_lshl_b32 s{sOffW}, s{sJ}, 8")
    a(f"v_lshrrev_b32 v{t0}, 3, v0")
    a(f"s_lshl_b32 s{sT0}, s{sWAVE}, 4")
    a(f"v_add_u32 v{t0}, s{sT0}, v{t0}")
    a(f"v_mul_u32_u24 v{t0}, 1280, v{t0}")
    a(f"v_and_b32 v{t1}, 7, v0")
    a(f"v_lshrrev_b32 v{t2}, 4, v0")
    a(f"v_xor_b32 v{t1}, v{t1}, v{t2}")
    a(f"v_lshl_add_u32 v{vX0}, v{t1}, 4, v{t0}")
    a(f"v_xor_b32 v{t1}, 4, v{t1}")
    a(f"v_lshl_add_u32 v{vX1}, v{t1}, 4, v{t0}")
    a(f"v_add_u32 v{vX1}, {8*1280-1024}, v{vX1}")
    a(f"s_lshl_b32 s{sT0}, s{sWAVE}, 3")
    a(f"v_add_u32 v{t0}, s{sT0}, v{t2}")
    a(f"v_mul_u32_u24 v{t0}, 3840, v{t0}")
    a(f"s_and_b32 s{sT0}, s{sWAVE}, 1")
    a(f"s_lshl_b32 s{sT0}, s{sT0}, 2")
    a(f"v_or_b32 v{t1}, s{sT0}, v{t2}")
    a(f"v_bfe_u32 v{t3}, v0, 1, 3")
    a(f"v_xor_b32 v{t1}, v{t1}, v{t3}")
    a(f"v_lshlrev_b32 v{t1}, 5, v{t1}")
    a(f"v_and_b32 v{t3}, 1, v0")
    a(f"v_lshl_add_u32 v{t1}, v{t3}, 4, v{t1}")
    a(f"v_add_u32 v{vW0}, v{t0}, v{t1}")
    a(f"v_add_u32 v{vW1}, {4*3840-1024}, v{vW0}")
    a(f"v_mov_b32 v28, 0")
    a(f"v_mov_b32 v29, 0")
    a(f"v_lshlrev_b32 v36, 4, v0")
    a(f"v_lshlrev_b32 v37, 2, v0")

def p1_dma_list(c, mode="q"):
    slot = (c % 4) * 32768
    if c < 10:
        out = [("s", f"s_add_u32 m0, s{sLDSW}, {slot}"),
               ("s", f"s_lshl_b32 s{sDM}, s{sCK}, 7"),
               ("s", f"s_add_u32 s{sDM}, s{sDM}, s{sOffX}"),
               ("v", f"buffer_load_dwordx4 v{vX0}, {srd(S_X)}, s{sDM} offen lds", f"c{c}"),
               ("v", f"buffer_load_dwordx4 v{vX1}, {srd(S_X)}, s{sDM} offen offset:1024 lds", f"c{c}")]
        adv = [("s", f"s_add_u32 s{sCK}, s{sCK}, 1"), ("s", f"s_cmp_eq_u32 s{sCK}, 10"), ("s", f"s_cselect_b32 s{sCK}, 0, s{sCK}")]
        if mode != "x":
            out += [("s", f"s_add_u32 m0, s{sLDSW}, {slot+2048}"),
                    ("s", f"s_mul_i32 s{sDM}, s{sCK}, {64*3840}"),
                    ("s", f"s_add_u32 s{sDM}, s{sDM}, s{sOffW}"),
                    ("v", f"buffer_load_dwordx4 v{vW0}, {srd(S_WQ)}, s{sDM} offen lds", f"c{c}")] + adv + \
                   [("v", f"buffer_load_dwordx4 v{vW1}, {srd(S_WQ)}, s{sDM} offen offset:1024 lds", f"c{c}")]
        else:
            out = out[:4] + adv + out[4:]
        return out
    out = [("s", f"s_add_u32 m0, s{sW1M}, {slot}"),
           ("s", f"s_mul_i32 s{sDM}, s{sCK1}, {64*3072}"),
           ("s", f"s_add_u32 s{sDM}, s{sDM}, s{sW1G}")]
    for e, v in enumerate((vU0, vU1, vU2)):
        off = f" offset:{e*1024}" if e else ""
        out.append(("v", f"buffer_load_dwordx4 v{v}, {srd(S_W1)}, s{sDM} offen{off} lds", f"c{c}"))
        if e == 0: out += [("s", f"s_add_u32 s{sCK1}, s{sCK1}, 2"), ("s", f"s_sub_u32 s{sDM2}, s{sCK1}, 10"), ("s", f"s_min_u32 s{sCK1}, s{sCK1}, s{sDM2}")]
    return out

def rot_setup(a):
    a(f"s_lshr_b32 s{sCK}, s{sXCD}, 1")
    a(f"s_and_b32 s{sT0}, s{sXCD}, 1")
    a(f"s_mul_i32 s{sT0}, s{sT0}, 5")
    a(f"s_add_u32 s{sCK}, s{sCK}, s{sT0}")
    if not OPT["rot"]: a(f"s_mov_b32 s{sCK}, 0")
    a(f"s_mov_b32 s{sROT}, s{sCK}")
    a(f"s_lshr_b32 s{sCK1}, s{sWAVE}, 2")
    a(f"s_add_u32 s{sCK1}, s{sCK1}, s{sCK}")

vPX, vPW, vP1 = 248, 249, 250
def mod10(a, t0, t1):
    a(f"v_subrev_u32 v{t1}, 10, v{t0}")
    a(f"v_min_u32 v{t0}, v{t0}, v{t1}")
def pf_w(a, first, n, dst):
    t0, t1 = 26, 27
    a(f"v_lshrrev_b32 v{t0}, 1, v0")
    a(f"v_min_u32 v{t0}, {n-1}, v{t0}")
    a(f"v_add3_u32 v{t0}, s{sROT}, v{t0}, {first}")
    mod10(a, t0, t1)
    a(f"v_mul_u32_u24 v{t0}, {64*3840}, v{t0}")
    a(f"v_and_b32 v{t1}, 1, v0")
    a(f"v_lshl_add_u32 v{t0}, v{t1}, 7, v{t0}")
    a.vmem(f"buffer_load_dword v{dst}, v{t0}, {srd(S_WQ)}, s{sPFW} offen", "pf")
def pf_x(a, first, n, dst, definite=True):
    t0, t1 = 26, 27
    a(f"v_lshrrev_b32 v{t0}, 2, v0")
    a(f"v_min_u32 v{t0}, {n-1}, v{t0}")
    a(f"v_add3_u32 v{t0}, s{sROT}, v{t0}, {first}")
    mod10(a, t0, t1)
    a(f"v_and_b32 v{t1}, 3, v0")
    a(f"v_mul_u32_u24 v{t1}, 1280, v{t1}")
    a(f"v_lshl_add_u32 v{t0}, v{t0}, 7, v{t1}")
    a.vmem(f"buffer_load_dword v{dst}, v{t0}, {srd(S_X)}, s{sPFX} offen", "pf", definite=definite)
def pf_setup(a):
    t0, t1 = 32, 33
    a(f"s_lshr_b32 s{sT0}, s2, 3")
    a(f"s_lshl_b32 s{sT0}, s{sT0}, 3")
    a(f"s_add_u32 s{sT0}, s{sT0}, s{sWAVE}")
    a(f"s_lshr_b32 s{sT1}, s{sT0}, 2")
    a(f"s_mul_i32 s{sPFW}, s{sT1}, 3840")
    a(f"s_and_b32 s{sT1}, s{sT0}, 3")
    a(f"s_lshl_b32 s{sT1}, s{sT1}, 8")
    a(f"s_add_u32 s{sPFW}, s{sPFW}, s{sT1}")
    a(f"s_lshr_b32 s{sT2}, s{sXCD}, 1")
    a(f"s_lshl_b32 s{sT1}, s{sT2}, 10")
    a(f"s_add_u32 s{sPFW}, s{sPFW}, s{sT1}")
    a(f"s_and_b32 s{sT1}, s{sXCD}, 1")
    a(f"s_lshl_b32 s{sT1}, s{sT1}, 8")
    a(f"s_add_u32 s{sT1}, s{sT1}, s{sT0}")
    a(f"s_mul_i32 s{sPFX}, s{sT1}, {4*1280}")
    if OPT["pf"]:
        pf_w(a, 1, 4, 253)
        L = a.newlabel("pfx")
        a(f"s_cmp_lg_u32 s{sT2}, 3")
        a(f"s_cbranch_scc1 {L}")
        pf_x(a, 1, 6, 252, definite=False)
        a.label(L)
    a(f"s_mul_i32 s{sT1}, s{sT0}, {3*3072}")
    a(f"s_mul_i32 s{sT2}, s{sT2}, 768")
    a(f"s_add_u32 s{sT1}, s{sT1}, s{sT2}")
    a(f"v_lshrrev_b32 v{t0}, 3, v0")
    a(f"v_min_u32 v{t0}, 2, v{t0}")
    a(f"v_mul_u32_u24 v{t0}, 3072, v{t0}")
    a(f"v_and_b32 v{t1}, 7, v0")
    a(f"v_min_u32 v{t1}, 5, v{t1}")
    a(f"v_lshl_add_u32 v{vP1}, v{t1}, 7, v{t0}")
    a(f"v_add_u32 v{vP1}, s{sT1}, v{vP1}")
def pf_w1(): return [("v", f"buffer_load_dword v254, v{vP1}, {srd(S_W1)}, 0 offen", "pf")]

def p1_setup2(a):
    t0, t1, t2, t3, t4, t5 = 32, 33, 34, 35, 38, 39
    a(f"s_mul_i32 s{sW1M}, s{sWAVE}, 3072")
    a(f"s_mul_i32 s{sW1G}, s{sJ}, 192")
    a(f"s_and_b32 s{sT0}, s{sWAVE}, 3")
    a(f"s_lshl_b32 s{sT0}, s{sT0}, 13")
    a(f"v_bfe_u32 v{t0}, v0, 3, 1")
    a(f"v_lshlrev_b32 v{t0}, 10, v{t0}")
    a(f"v_and_b32 v{t1}, 7, v0")
    a(f"v_lshl_add_u32 v{t0}, v{t1}, 7, v{t0}")
    a(f"v_add_u32 v{t0}, s{sT0}, v{t0}")
    a(f"v_lshrrev_b32 v{t1}, 4, v0")
    a(f"v_bfe_u32 v{t2}, v0, 1, 3")
    a(f"v_xor_b32 v{t2}, v{t1}, v{t2}")
    a(f"v_lshl_add_u32 v{vXA}, v{t2}, 4, v{t0}")
    a(f"v_xor_b32 v{vXA+1}, 64, v{vXA}")
    a(f"v_bfe_u32 v{t2}, v0, 2, 2")
    a(f"v_lshlrev_b32 v{t0}, 12, v{t1}")
    a(f"v_lshl_add_u32 v{t0}, v{t2}, 8, v{t0}")
    a(f"v_and_b32 v{t3}, 3, v0")
    a(f"v_lshl_add_u32 v{t0}, v{t3}, 3, v{t0}")
    a(f"v_bfe_u32 v{t4}, v0, 4, 1")
    a(f"v_lshl_add_u32 v{t5}, v{t4}, 2, v{t2}")
    a(f"s_lshr_b32 s{sT0}, s{sWAVE}, 2")
    a(f"s_lshl_b32 s{sT1}, s{sT0}, 2")
    a(f"v_xor_b32 v{t5}, s{sT1}, v{t5}")
    for T in range(4):
        a(f"v_xor_b32 v{vTA+T}, {T}, v{t5}")
        a(f"v_lshl_add_u32 v{vTA+T}, v{vTA+T}, 5, v{t0}")
    a(f"v_lshrrev_b32 v{t0}, 5, v0")
    a(f"v_lshlrev_b32 v{t0}, 4, v{t0}")
    a(f"v_lshl_add_u32 v{t0}, v{t4}, 2, v{t0}")
    a(f"v_add_u32 v{t0}, v{t0}, v{t2}")
    a(f"v_mul_u32_u24 v{t0}, 192, v{t0}")
    a(f"v_lshl_add_u32 v{t0}, v{t3}, 3, v{t0}")
    a(f"v_add_u32 v{t0}, 0x10000, v{t0}")
    a(f"s_mul_i32 s{sT1}, s{sT0}, 3")
    for T in range(3):
        a(f"s_add_u32 s{sT2}, s{sT1}, {T}")
        a(f"v_xor_b32 v{vTB+T}, s{sT2}, v{t4}")
        a(f"v_lshl_add_u32 v{vTB+T}, v{vTB+T}, 5, v{t0}")
    mk_srd(a, S_M2, P_B1, 3072)
    a(f"s_mul_i32 s{sT2}, s{sT0}, 96")
    a(f"s_add_u32 s{sT1}, s{sW1G}, s{sT2}")
    a(f"v_lshlrev_b32 v{t1}, 3, v{t1}")
    for T in range(3):
        a.vmem(f"buffer_load_dwordx2 {vr(vB1+2*T,2)}, v{t1}, {srd(S_M2)}, s{sT1} offen offset:{32*T}", "b1")
    for e, v in enumerate((vU0, vU1, vU2)):
        a(f"v_add_u32 v{t0}, {e*64}, v0")
        a(f"v_mul_u32_u24 v{t1}, 5462, v{t0}")
        a(f"v_lshrrev_b32 v{t1}, 16, v{t1}")
        a(f"v_mul_u32_u24 v{t2}, 12, v{t1}")
        a(f"v_sub_u32 v{t2}, v{t0}, v{t2}")
        a(f"v_bfe_u32 v{t3}, v{t1}, 2, 1")
        a(f"v_bfe_u32 v{t4}, v{t1}, 3, 1")
        a(f"v_and_b32 v{t5}, 3, v{t1}")
        a(f"v_lshl_add_u32 v{t5}, v{t3}, 3, v{t5}")
        a(f"v_lshl_add_u32 v{t5}, v{t4}, 2, v{t5}")
        a(f"s_and_b32 s{sT0}, s{sWAVE}, 3")
        a(f"s_lshl_b32 s{sT0}, s{sT0}, 4")
        a(f"v_add_u32 v{t5}, s{sT0}, v{t5}")
        a(f"v_mul_u32_u24 v{t5}, 3072, v{t5}")
        a(f"v_lshlrev_b32 v{t3}, 1, v{t3}")
        a(f"v_xor_b32 v{t2}, v{t2}, v{t3}")
        a(f"v_lshl_add_u32 v{v}, v{t2}, 4, v{t5}")
        if e: a(f"v_subrev_u32 v{v}, {e*1024}, v{v}")

def epi_setup(a, mode):
    t0, t1, t2, t3, t4 = 240, 241, 242, 243, 244
    a(f"s_and_b32 s{sT1}, s{sWAVE}, 3")
    a(f"s_lshl_b32 s{sT3}, s{sM}, 2")
    a(f"s_add_u32 s{sT3}, s{sT1}, s{sT3}")
    if mode == "v": return epi_setup_v(a)
    a(f"s_cmp_ge_u32 s{sJ}, 5")
    a(f"s_cselect_b32 s{sT0}, 5, 0")
    a(f"s_cselect_b32 s{sScale}, 1.0, {f32hex(QSCALE)}")
    a(f"s_cselect_b32 s{sT1}, 1, 0")
    a(f"s_cselect_b32 s{sT2}, {KV_OFF}, {QF_OFF}")
    a(f"s_lshl_b32 s{sT4}, 81920, s{sT1}")
    a(f"s_lshl_b32 s{sT5}, 1280, s{sT1}")
    a(f"s_mul_i32 s{sEPI}, s{sT5}, s{sT3}")
    a(f"s_add_u32 s{sEPI}, s{sEPI}, s{sT2}")
    a(f"s_sub_u32 s{sT0}, s{sJ}, s{sT0}")
    a(f"s_lshl_b32 s{sT0}, s{sT0}, 5")
    a(f"s_lshr_b32 s{sT1}, s{sWAVE}, 2")
    a(f"s_lshl_b32 s{sT1}, s{sT1}, 4")
    a(f"s_add_u32 s{sT0}, s{sT0}, s{sT1}")
    a(f"v_and_b32 v{t3}, 9, v0")
    a(f"v_bfe_u32 v{t0}, v0, 1, 1")
    a(f"v_lshl_add_u32 v{t3}, v{t0}, 2, v{t3}")
    a(f"v_bfe_u32 v{t0}, v0, 2, 1")
    a(f"v_lshl_add_u32 v{t3}, v{t0}, 1, v{t3}")
    a(f"v_lshlrev_b32 v{t3}, 4, v{t3}")
    a(f"v_lshrrev_b32 v{t0}, 4, v0")
    a(f"v_add_u32 v{t0}, s{sT0}, v{t0}")
    a(f"s_mov_b32 s{sT3}, 0x43120")
    for T in range(4):
        adr = vEA + T
        a(f"v_add_u32 v{t1}, {4*T}, v{t0}")
        a(f"v_mul_u32_u24 v{t2}, 205, v{t1}")
        a(f"v_lshrrev_b32 v{t2}, 10, v{t2}")
        a(f"v_mul_u32_u24 v{adr}, 5, v{t2}")
        a(f"v_sub_u32 v{t1}, v{t1}, v{adr}")
        a(f"v_lshlrev_b32 v{t1}, 2, v{t1}")
        a(f"v_bfe_u32 v{t1}, s{sT3}, v{t1}, 4")
        a(f"v_mul_lo_u32 v{adr}, v{t2}, s{sT4}")
        a(f"v_lshl_add_u32 v{adr}, v{t1}, 8, v{adr}")
        a(f"v_add_u32 v{adr}, v{adr}, v{t3}")

def epi_setup_v(a):
    t0, t1, t2, t3, t4 = 240, 241, 242, 243, 244
    a(f"s_sub_u32 s{sT0}, s{sJ}, 10")
    a(f"s_lshl_b32 s{sT0}, s{sT0}, 7")
    a(f"s_lshr_b32 s{sT1}, s{sWAVE}, 2")
    a(f"s_lshl_b32 s{sT1}, s{sT1}, 6")
    a(f"s_add_u32 s{sT0}, s{sT0}, s{sT1}")
    a(f"s_mul_i32 s{sEPI}, s{sT3}, {KV_T}")
    a(f"s_add_u32 s{sEPI}, s{sEPI}, {KV_OFF + 1280}")
    a(f"s_mov_b32 s{sT4}, {KV_H}")
    a(f"v_lshrrev_b32 v{t3}, 4, v0")
    a(f"v_mul_u32_u24 v{t3}, 320, v{t3}")
    a(f"v_and_b32 v{t0}, 15, v0")
    a(f"v_add_u32 v{t0}, s{sT0}, v{t0}")
    for T in range(4):
        adr = vEA + T
        a(f"v_add_u32 v{t1}, {16*T}, v{t0}")
        a(f"v_mul_u32_u24 v{t2}, 3277, v{t1}")
        a(f"v_lshrrev_b32 v{t2}, 16, v{t2}")
        a(f"v_mul_u32_u24 v{adr}, 20, v{t2}")
        a(f"v_sub_u32 v{t1}, v{t1}, v{adr}")
        a(f"v_mul_lo_u32 v{adr}, v{t2}, s{sT4}")
        a(f"v_and_b32 v{t2}, 0x13, v{t1}")
        a(f"v_bfe_u32 v{t4}, v{t1}, 2, 1")
        a(f"v_lshl_add_u32 v{t2}, v{t4}, 3, v{t2}")
        a(f"v_bfe_u32 v{t4}, v{t1}, 3, 1")
        a(f"v_lshl_add_u32 v{t2}, v{t4}, 2, v{t2}")
        a(f"v_lshl_add_u32 v{adr}, v{t2}, 4, v{adr}")
        a(f"v_add_u32 v{adr}, v{adr}, v{t3}")

def pp_setup(a, base, tt):
    t0, t1, t2, t3, t4 = tt
    L = a.newlabel("pp")
    a(f"s_lshr_b32 s{sT4}, s{sT3}, 2")
    a(f"s_and_b32 s{sT5}, s{sT3}, 3")
    a(f"s_mul_i32 s{sPPC}, s{sT5}, 320")
    a(f"s_cmp_ge_u32 s{sT4}, 48")
    a(f"s_cselect_b32 s{S_M2}, s{P_WO}, s{P_W2}")
    a(f"s_cselect_b32 s{S_M2+1}, s{P_WO+1}, s{P_W2+1}")
    a(f"s_mov_b32 s{S_M2+2}, 1966080")
    a(f"s_cselect_b32 s{S_M2+2}, 819200, s{S_M2+2}")
    a(f"s_mov_b32 s{S_M2+3}, 0x00020000")
    for rep in range(2):
        a(f"s_lshl_b32 s{sT0}, s{sWAVE}, 6")
        a(f"v_add_u32 v{t0}, s{sT0}, v0")
        if rep: a(f"v_add_u32 v{t0}, 512, v{t0}")
        a(f"v_mul_u32_u24 v{t1}, 3277, v{t0}")
        a(f"v_lshrrev_b32 v{t1}, 16, v{t1}")
        a(f"v_mul_u32_u24 v{t2}, 20, v{t1}")
        a(f"v_sub_u32 v{t2}, v{t0}, v{t2}")
        a(f"s_cmp_ge_u32 s{sT4}, 48")
        a(f"s_cbranch_scc1 {L}_wo{rep}")
        a(f"s_lshl_b32 s{sT0}, s{sT4}, 5")
        a(f"v_add_u32 v{t1}, s{sT0}, v{t1}")
        a(f"s_branch {L}_go{rep}")
        a.label(f"{L}_wo{rep}")
        a(f"v_lshrrev_b32 v{t3}, 3, v{t1}")
        a(f"s_cmp_ge_u32 s{sT4}, 64")
        a(f"s_cbranch_scc1 {L}_rem{rep}")
        a(f"s_sub_u32 s{sT0}, s{sT4}, 48")
        a(f"s_lshl_b32 s{sT0}, s{sT0}, 2")
        a(f"v_add_u32 v{t3}, s{sT0}, v{t3}")
        a(f"v_lshrrev_b32 v{t4}, 1, v{t3}")
        a(f"v_mul_u32_u24 v{t4}, 20, v{t4}")
        a(f"v_and_b32 v{t3}, 1, v{t3}")
        a(f"v_lshl_add_u32 v{t4}, v{t3}, 3, v{t4}")
        a(f"v_and_b32 v{t1}, 7, v{t1}")
        a(f"v_add_u32 v{t1}, v{t4}, v{t1}")
        a(f"s_branch {L}_go{rep}")
        a.label(f"{L}_rem{rep}")
        a(f"s_sub_u32 s{sT0}, s{sT4}, 64")
        a(f"s_lshl_b32 s{sT0}, s{sT0}, 2")
        a(f"v_add_u32 v{t3}, s{sT0}, v{t3}")
        a(f"v_bfe_u32 v{t4}, v{t1}, 2, 1")
        a(f"v_lshl_add_u32 v{t4}, v{t3}, 1, v{t4}")
        a(f"v_mul_u32_u24 v{t4}, 20, v{t4}")
        a(f"v_and_b32 v{t1}, 3, v{t1}")
        a(f"v_add3_u32 v{t1}, v{t4}, v{t1}, 16")
        a.label(f"{L}_go{rep}")
        a(f"v_mul_u32_u24 v{t1}, 1280, v{t1}")
        a(f"v_lshl_add_u32 v{vPP+rep}, v{t2}, 4, v{t1}")
    a(f"s_cmp_ge_u32 s{sT4}, 24")
    a(f"s_cselect_b32 s{sT0}, 10, 0")
    a(f"s_cmp_ge_u32 s{sT4}, 48")
    a(f"s_cselect_b32 s{sT0}, -24, s{sT0}")
    a(f"s_cmp_ge_u32 s{sT4}, 58")
    a(f"s_cselect_b32 s{sT0}, 0, s{sT0}")
    a(f"s_add_u32 s{sT4}, s{sT4}, s{sT0}")
    a(f"s_mul_i32 s{sT5}, s{sT5}, 136")
    a(f"s_add_u32 s{sT4}, s{sT4}, s{sT5}")
    a(f"v_lshrrev_b32 v{t1}, 4, v0")
    a(f"v_bfe_u32 v{t2}, v0, 2, 2")
    a(f"v_lshl_add_u32 v{t1}, v{t1}, 3, v{t2}")
    a(f"v_mul_u32_u24 v{t1}, 320, v{t1}")
    a(f"v_and_b32 v{t0}, 3, v0")
    for rep, sd in enumerate((sPD0, sPD1)):
        a(f"s_add_u32 s{sT0}, s{sWAVE}, {8*rep}")
        a(f"s_cmp_ge_u32 s{sT0}, 5")
        a(f"s_cselect_b32 s{sT1}, 1, 0")
        a(f"s_mul_i32 s{sT2}, s{sT1}, 5")
        a(f"s_sub_u32 s{sT0}, s{sT0}, s{sT2}")
        a(f"s_lshr_b32 s{sT2}, s{sT0}, 1")
        a(f"s_lshl_b32 s{sT2}, s{sT2}, 6")
        a(f"s_and_b32 s{sT5}, s{sT0}, 1")
        a(f"s_lshl_b32 s{sT5}, s{sT5}, 3")
        a(f"s_add_u32 s{sT2}, s{sT2}, s{sT5}")
        a(f"s_mul_i32 s{sT5}, s{sT1}, 160")
        a(f"s_add_u32 s{sT2}, s{sT2}, s{sT5}")
        a(f"s_add_u32 s{sT2}, s{sT2}, {base}")
        a(f"s_cmp_eq_u32 s{sT0}, 4")
        a(f"s_cselect_b32 s{sT5}, 3, 4")
        a(f"v_lshlrev_b32 v{t2}, s{sT5}, v{t0}")
        a(f"v_add3_u32 v{vPF+rep}, v{t2}, v{t1}, s{sT2}")
        a(f"s_mul_i32 s{sT1}, s{sT1}, 68")
        a(f"s_add_u32 s{sT1}, s{sT1}, s{sT4}")
        a(f"s_mul_i32 s{sT1}, s{sT1}, 5120")
        a(f"s_lshl_b32 s{sT0}, s{sT0}, 10")
        a(f"s_add_u32 s{sT1}, s{sT1}, s{sT0}")
        a(f"s_add_u32 s{sd}, s{sT1}, {WF_OFF}")

def lt2(a, body):
    L = a.newlabel("lt2")
    a(f"s_cmp_ge_u32 s{sWAVE}, 2")
    a(f"s_cbranch_scc1 {L}")
    body()
    a.label(L)

def pp_dma(a, base):
    a(f"s_lshl_b32 s{sT0}, s{sWAVE}, 10")
    a(f"s_add_u32 m0, s{sT0}, {base}")
    a("s_nop 0")
    a.vmem(f"buffer_load_dwordx4 v{vPP}, {srd(S_M2)}, s{sPPC} offen lds", "pp")
    def second():
        a(f"s_add_u32 m0, s{sT0}, {base + 8192}")
        a("s_nop 0")
        a.vmem(f"buffer_load_dwordx4 v{vPP+1}, {srd(S_M2)}, s{sPPC} offen lds", "pp", definite=False)
    lt2(a, second)

def pp_finish(a, tmp, l16):
    a(f"v_lshlrev_b32 v{l16}, 4, v0")
    def one(rep):
        a(f"ds_read_b64_tr_b16 {vr(tmp,2)}, v{vPF+rep}")
        a(f"ds_read_b64_tr_b16 {vr(tmp+2,2)}, v{vPF+rep} offset:1280")
        a.lg_all()
        a.vmem(f"buffer_store_dwordx4 {vr(tmp,4)}, v{l16}, {srd(S_WS)}, s{(sPD0, sPD1)[rep]} offen sc1", "st1", definite=(rep == 0))
    one(0)
    lt2(a, lambda: one(1))

GW_LDS = 151552
vGW = vTA
def gate_start(a):
    for rep in range(2):
        a(f"s_mov_b32 m0, {GW_LDS + rep*1280}")
        a(f"v_lshrrev_b32 v{vGW}, 4, v0")
        a.vmem(f"buffer_load_dwordx4 v36, {srd(S_M1)}, 0 offen lds", "gw")
        a.vmem(f"buffer_load_dword v37, {srd(S_M1)}, 0 offen offset:1024 lds", "gw")
    a(f"s_lshl_b32 s{sT0}, s{sROT}, 7")
    a(f"s_add_u32 s{sT0}, s{sT0}, {GW_LDS}")
    a(f"v_lshlrev_b32 v{vGW}, 4, v{vGW}")
    a(f"v_add_u32 v{vGW}, s{sT0}, v{vGW}")

def gate_finish(a):
    a.c("---- gate")
    acc = ACC
    a(f"s_mov_b32 vcc_lo, 0xffff0000")
    a(f"s_mov_b32 vcc_hi, 0")
    a("s_nop 4")
    a(f"v_cndmask_b32 v{acc}, v{ACC}, v{ACC+16}, vcc")
    a(f"v_cvt_pk_bf16_f32 v{acc}, v{acc}, v{acc}")
    a(f"v_and_b32 v{acc}, 0xffff0000, v{acc}")
    a(f"v_mul_f32 v{acc}, {f32hex(-math.log2(math.e))}, v{acc}")
    a(f"v_exp_f32 v{acc}, v{acc}")
    a("s_nop 0")
    a(f"v_add_f32 v{acc}, 1.0, v{acc}")
    a(f"v_rcp_f32 v{acc}, v{acc}")
    a("s_nop 0")
    a(f"v_cvt_pk_bf16_f32 v{acc}, v{acc}, v{acc}")
    a(f"v_and_b32 v76, 0xffff0000, v{acc}")
    a(f"s_and_b32 s{sT0}, s{sWAVE}, 3")
    a(f"s_lshl_b32 s{sT1}, s{sM}, 2")
    a(f"s_add_u32 s{sT0}, s{sT0}, s{sT1}")
    a(f"s_lshl_b32 s{sT0}, s{sT0}, 7")
    a(f"s_add_u32 s{sT0}, s{sT0}, {G_OFF}")
    a(f"v_lshlrev_b32 v77, 2, v0")
    a(f"s_mov_b32 exec_hi, 0")
    a.vmem(f"buffer_store_dword v76, v77, {srd(S_WS)}, s{sT0} offen sc1", "st1", definite=False)
    a("s_mov_b32 exec_hi, -1")

def p1_reads(s, mode):
    out = []
    buf = WF + (s % 2) * 16
    if s < 20:
        c, ks = s // 2, s % 2
        base = (c % 2) * 32768
        for b in range(2):
            out.append(("x", f"ds_read_b128 {vr(XR+(s*2+b)*4,4)}, v{vXA+ks} offset:{base + b*4096}"))
        if mode != "x":
            for T in range(4):
                for r2 in range(2):
                    out.append((T, f"ds_read_b64_tr_b16 {vr(buf+T*4+r2*2,2)}, v{vTA+T} offset:{base + 2048 + ks*16384 + r2*1024}"))
        else:
            out.append((0, f"ds_read_b128 {vr(buf,4)}, v{vGW} offset:{s*64}"))
    else:
        sf = s - 20
        c, ks = 10 + sf // 4, sf % 4
        base = (c % 2) * 32768
        for T in range(3):
            for r2 in range(2):
                out.append((T, f"ds_read_b64_tr_b16 {vr(buf+T*4+r2*2,2)}, v{vTB+T} offset:{base + ks*6144 + r2*1536}"))
    return out

def p1_mfma(s, T, b, mode):
    buf = WF + (s % 2) * 16
    d = vr(ACC + (b*4+T)*4, 4)
    w = vr(buf + T*4, 4); x = vr(XR + ((s % 20)*2+b)*4, 4)
    cin = "0" if s == 0 else d
    if mode == "v" and s < 20: return f"v_mfma_f32_16x16x32_bf16 {d}, {x}, {w}, {cin}"
    return f"v_mfma_f32_16x16x32_bf16 {d}, {w}, {x}, {cin}"

def p1_stage(a, s, mode, pre=None, post=None, budget=None):
    if s < 20: start = (s % 2 == 0); c = s // 2
    elif s < 40: start = ((s - 20) % 4 == 0); c = 10 + (s - 20) // 4
    else: start = False; c = None
    if start:
        emit_list(a, a.pend); a.pend = []
        if pre: pre()
        a.wait_vm(f"c{c}")
        a("s_barrier")
        if OPT["fine"] or c in (0, 1, 5, 10, 11, 14): a.stamp(f"p1 chunk{c}")
        if post and c == 0: a.pend += post()
        if c + 2 < 15: a.pend += p1_dma_list(c + 2, mode)
        if post and c: a.pend += post()
    rd = p1_reads(s, mode) if s < 40 else []
    nT = 0 if s == 0 else ((1 if mode == "x" else 4) if s - 1 < 20 else 3)
    if budget is None: budget = 2 if s <= 20 else 1
    xr = [r for g, r in rd if g == "x"]
    nxt = s + 1
    flip = (nxt < 20 and nxt % 4 == 0) or (20 < nxt < 40 and (nxt - 20) % 8 == 0)
    for r in xr: a.ds(r, f"r{s}x")
    if flip and s < 20:
        a(f"v_xor_b32 v{vXA}, 0x10000, v{vXA}")
        a(f"v_xor_b32 v{vXA+1}, 0x10000, v{vXA+1}")
    for T in range(4):
        if T < nT:
            a.wait_lg([f"r{s-1}x", f"r{s-1}t{T}"])
            a(p1_mfma(s-1, T, 0, mode))
        tr = [r for g, r in rd if g == T]
        for r in tr[:1]: a.ds(r, f"r{s}t{T}")
        if T < nT: a(p1_mfma(s-1, T, 1, mode))
        for r in tr[1:]: a.ds(r, f"r{s}t{T}")
        if flip and tr and mode != "x" and s < 20: a(f"v_xor_b32 v{vTA+T}, 0x10000, v{vTA+T}")
        if flip and tr and s >= 20: a(f"v_xor_b32 v{vTB+T}, 0x10000, v{vTB+T}")
        if T >= 1 and a.pend and budget:
            emit_list(a, take(a.pend)); budget -= 1

def qkv_pack(a, mode):
    for T in (0, 1, 3, 2):
        o = PK[T]
        if mode == "q":
            for b in range(2):
                for r in range(4):
                    x = ACC + (b*4+T)*4 + r
                    a(f"v_mul_f32 v{x}, s{sScale}, v{x}")
            for b in range(2):
                x = ACC + (b*4+T)*4
                a(f"v_cvt_pk_bf16_f32 v{o+2*b}, v{x}, v{x+1}")
                a(f"v_cvt_pk_bf16_f32 v{o+2*b+1}, v{x+2}, v{x+3}")
        else:
            for r in range(4):
                a(f"v_cvt_pk_bf16_f32 v{o+r}, v{ACC + T*4 + r}, v{ACC + (4+T)*4 + r}")
        if T in (0, 1) or not OPT["spread"]: a.vmem(f"buffer_store_dwordx4 {vr(o,4)}, v{vEA+T}, {srd(S_WS)}, s{sEPI} offen sc1", "stq", definite=False)

def late_store(a, T):
    L = a.newlabel("ls")
    a(f"s_cmp_eq_u32 s{sJ}, 15")
    a(f"s_cbranch_scc1 {L}")
    a.vmem(f"buffer_store_dwordx4 {vr(PK[T],4)}, v{vEA+T}, {srd(S_WS)}, s{sEPI} offen sc1", "stq", definite=False)
    a.label(L)

def ffn1_init(a):
    a.wait_vm("b1")
    for T in range(3):
        for r in range(4):
            src = vB1 + 2*T + r//2
            d0 = ACC + T*4 + r; d1 = ACC + (4+T)*4 + r
            if r % 2 == 0: a(f"v_lshlrev_b32 v{d0}, 16, v{src}")
            else: a(f"v_and_b32 v{d0}, 0xffff0000, v{src}")
            a(f"v_mov_b32 v{d1}, v{d0}")

def ffn1_epilogue(a):
    a.c("---- FFN1 epilogue")
    t0, t1 = HS + 12, HS + 13
    a(f"s_and_b32 s{sT0}, s{sWAVE}, 3")
    a(f"s_lshl_b32 s{sT0}, s{sT0}, 1")
    a(f"s_lshl_b32 s{sT1}, s{sM}, 3")
    a(f"s_add_u32 s{sT0}, s{sT0}, s{sT1}")
    a(f"s_mul_i32 s{sT0}, s{sT0}, {AF_T}")
    a(f"s_lshr_b32 s{sT1}, s{sWAVE}, 2")
    a(f"s_mul_i32 s{sT1}, s{sT1}, 1536")
    a(f"s_mul_i32 s{sT2}, s{sJ}, 3072")
    a(f"s_add_u32 s{sT0}, s{sT0}, s{sT1}")
    a(f"s_add_u32 s{sT0}, s{sT0}, s{sT2}")
    a(f"s_cmp_ge_u32 s{sJ}, 8")
    a(f"s_cselect_b32 s{sT1}, 10240, 0")
    a(f"s_add_u32 s{sT0}, s{sT0}, s{sT1}")
    a(f"s_add_u32 s{sEPI}, s{sT0}, {AF_OFF}")
    a(f"v_bfe_u32 v{t0}, v0, 4, 1")
    a(f"v_mul_u32_u24 v{t0}, {AF_T}, v{t0}")
    a(f"v_lshrrev_b32 v{t1}, 5, v0")
    a(f"v_lshl_add_u32 v{t0}, v{t1}, 8, v{t0}")
    a(f"v_and_b32 v{t1}, 15, v0")
    a(f"v_lshl_add_u32 v{t0}, v{t1}, 4, v{t0}")
    for T in range(3):
        o = HS + T*4
        for b in range(2):
            for r in range(4):
                x = ACC + (b*4+T)*4 + r
                a(f"v_max_f32 v{x}, 0, v{x}")
        for b in range(2):
            for r in range(4):
                x = ACC + (b*4+T)*4 + r
                a(f"v_mul_f32 v{x}, v{x}, v{x}")
        for b in range(2):
            x = ACC + (b*4+T)*4
            a(f"v_cvt_pk_bf16_f32 v{o+2*b}, v{x}, v{x+1}")
            a(f"v_cvt_pk_bf16_f32 v{o+2*b+1}, v{x+2}, v{x+3}")
        a("s_nop 1")
        a(f"v_permlane16_swap_b32 v{o}, v{o+2}")
        a(f"v_permlane16_swap_b32 v{o+1}, v{o+3}")
        if not OPT["hlate"]: emit_list(a, h_store(T))

HS = 200
def h_store(T):
    return [("v", f"buffer_store_dwordx4 {vr(HS+4*T,4)}, v{HS+12}, {srd(S_WS)}, s{sEPI} offen offset:{512*T} sc1", "st1")]

def phase1(a):
    a.stamp("start")
    a.pend = []
    rot_setup(a)
    emit_list(a, p1_dma_list(0))
    pf_setup(a)
    flags_clear(a, 38)
    p1_setup2(a)
    if not OPT["c1late"]: emit_list(a, p1_dma_list(1))
    a.stamp("setup done")
    LV = a.newlabel("vpass"); LX = a.newlabel("xpass"); LJ = a.newlabel("join")
    a(f"s_cmp_eq_u32 s{sJ}, 15")
    a(f"s_cbranch_scc1 {LX}")
    a(f"s_cmp_ge_u32 s{sJ}, 10")
    a(f"s_cbranch_scc1 {LV}")
    save = (list(a.vm), list(a.lg), a.nstamp, len(a.stampnames))
    ends = []
    for mode, lab in (("q", None), ("v", LV), ("x", LX)):
        a.vm, a.lg, a.nstamp = list(save[0]), list(save[1]), save[2]; del a.stampnames[save[3]:]
        if lab: a.label(lab)
        if mode == "x": gate_start(a)
        for s in range(21):
            pre = post = None
            if s == 0:
                if mode == "x": pre = lambda: a.wait_vm("gw")
                post = lambda: (p1_dma_list(1, mode) if OPT["c1late"] else [])
            if s == 2: post = lambda: [("f", lambda: flags_count_in(a, 28))] + ([("f", lambda: pf_x(a, 4, 3, 252))] if OPT["pf"] else [])
            if s == 4 and OPT["pf"]: post = lambda: [("f", lambda: pf_w(a, 5, 4, 253)), ("f", lambda: pf_x(a, 7, 3, 252))]
            if s == 2 * OPT["pf2"]: post = pf_w1
            if s == 12: post = lambda: [("f", lambda: poll(a, "init", 28, 30, "issue"))]
            if s == 18: pre = lambda: poll(a, "init", 28, 30, "check")
            p1_stage(a, s, mode, pre=pre, post=post, budget=(3 if s < 8 else None))
            if s == 0:
                for _ in range(3):
                    if a.pend: emit_list(a, take(a.pend))
            if s == 8 and mode != "x": epi_setup(a, mode)
        emit_list(a, a.pend); a.pend = []
        a("s_nop 5")
        if mode != "x":
            qkv_pack(a, mode)
            a(f"s_branch {LJ}")
        else:
            gate_finish(a)
        ends.append((list(a.vm), list(a.lg)))
    a.label(LJ)
    common = set.intersection(*[set(t for t, d in e[0] if d) for e in ends])
    a.vm = [(t, d if t in common else False) for t, d in ends[0][0]] + [("st1", False)]
    a.lg = list(ends[0][1])
    assert ends[2][1] == a.lg and ends[1][1] == a.lg, (ends[2][1], a.lg)
    a.stamp("p1 qkv done")
    a("s_nop 1")
    ffn1_init(a)
    sA = 20 + 4 * (OPT["abar"] - 10)
    for s in range(21, 41):
        pre = post = None
        if OPT["spread"] and s in (21, 22): a.pend.insert(0, ("f", (lambda T: lambda: late_store(a, T))(3 if s == 21 else 2)))
        if s == sA:
            pre = lambda: wait_st(a, "stq")
            post = lambda: [("f", lambda: flag_set(a, 0, 92))]
        if s == OPT["apoll"]: a.pend.append(("f", lambda: poll(a, "A", 28, 92, "issue")))
        if s == 40:
            emit_list(a, a.pend); a.pend = []
            att_setup(a)
            poll(a, "A", 28, 92, "check")
            a("s_barrier")
            a.stamp("p1 A seen")
            att_dma(a, 0)
            att_qload(a)
            att_dma(a, 1)
        p1_stage(a, s, "q", pre, post, budget=2)
    a("s_nop 7")
    a.stamp("p1 ffn1 mfma done")
    ffn1_epilogue(a)
    a.stamp("p1 end")

def second_unit(a, part):
    L = a.newlabel("su")
    a(f"s_cmp_lg_u32 s{sJ}, 15")
    a(f"s_cbranch_scc1 {L}")
    st = list(a.vm); lg = list(a.lg)
    if part == 0:
        a(f"s_add_u32 s{sT3}, s{sM}, 256")
        pp_setup(a, PP_LDS + 10240, (232, 233, 234, 235, 236))
        pp_dma(a, PP_LDS + 10240)
        a.vm = st + [("pp2", False), ("pp2", False)]
    else:
        pp_finish(a, 244, 248)
        a.vm = st + [("st1", False), ("st1", False)]
    a.lg = lg
    a.label(L)

SA, SB, OA, OB, PB, VB, KB, QA, QB = 8, 24, 40, 56, 72, 80, 96, 108, 114
vKA, vKB, vVA, vD4, vD1, vAT0, vAT1 = 1, 2, 3, 4, 5, 6, 7
vVB = vAT1
KVL = 0
KVR = 3
KV_C = 4 * KV_T
XCH = 12288

def att_dma_list(c):
    slot = KVL + (c % KVR) * 4 * KV_L
    return [("s", f"s_add_u32 m0, s{sKVM}, {slot}"),
            ("s", f"s_add_u32 s{sT0}, s{sKVG}, {c*KV_C}"),
            ("v", f"buffer_load_dwordx4 v{vD4}, {srd(S_WS)}, s{sT0} offen sc1 lds", f"kv{c}"),
            ("v", f"buffer_load_dword v{vD1}, {srd(S_WS)}, s{sT0} offen offset:1024 sc1 lds", f"kv{c}")]
def att_dma(a, c): emit_list(a, att_dma_list(c))

def att_setup(a):
    a.c("---- attention setup")
    a(f"s_lshl_b32 s{sH}, s{sXCD}, 2")
    a(f"s_add_u32 s{sH}, s{sH}, s{sHI}")
    a(f"s_mov_b32 s{sQB}, s{sLO}")
    a(f"s_lshr_b32 s{sKVM}, s{sWAVE}, 1")
    a(f"s_lshl_b32 s{sKVM}, s{sKVM}, 9")
    a(f"s_mul_i32 s{sT0}, s{sWAVE}, 1280")
    a(f"s_add_u32 s{sKVM}, s{sKVM}, s{sT0}")
    a(f"s_mul_i32 s{sKVG}, s{sH}, {KV_H}")
    a(f"s_add_u32 s{sKVG}, s{sKVG}, s{sT0}")
    a(f"s_add_u32 s{sKVG}, s{sKVG}, {KV_OFF}")
    a(f"s_lshr_b32 s{sKH}, s{sWAVE}, 2")
    a(f"v_lshlrev_b32 v{vD4}, 4, v0")
    a(f"v_lshlrev_b32 v{vD1}, 2, v0")
    a(f"s_mov_b32 s{sEXV}, 0x000fffff")
    a(f"s_mov_b32 s{sEXV+1}, 0x000fffff")

QL = 40960
def att_qload(a):
    a(f"s_lshl_b32 s{sT1}, s{sQB}, 3")
    a(f"s_add_u32 s{sT1}, s{sT1}, s{sWAVE}")
    a(f"s_mul_i32 s{sT1}, s{sT1}, 1280")
    a(f"s_mul_i32 s{sT3}, s{sH}, 81920")
    a(f"s_add_u32 s{sT1}, s{sT1}, s{sT3}")
    a(f"s_mul_i32 s{sT0}, s{sWAVE}, 1280")
    a(f"s_add_u32 m0, s{sT0}, {QL}")
    if QF_OFF: a(f"s_add_u32 s{sT1}, s{sT1}, {QF_OFF}")
    a("s_nop 0")
    a.vmem(f"buffer_load_dwordx4 v{vD4}, {srd(S_WS)}, s{sT1} offen sc1 lds", "kv0")
    a.vmem(f"buffer_load_dword v{vD1}, {srd(S_WS)}, s{sT1} offen offset:1024 sc1 lds", "kv0")

def att_qread(a):
    t0, t1 = SA, SA + 1
    a(f"v_and_b32 v{t0}, 9, v0")
    a(f"v_bfe_u32 v{t1}, v0, 1, 1")
    a(f"v_lshl_add_u32 v{t0}, v{t1}, 2, v{t0}")
    a(f"v_bfe_u32 v{t1}, v0, 2, 1")
    a(f"v_lshl_add_u32 v{t0}, v{t1}, 1, v{t0}")
    a(f"v_lshlrev_b32 v{t0}, 4, v{t0}")
    a(f"v_bfe_u32 v{t1}, v0, 4, 1")
    a(f"v_lshl_add_u32 v{t0}, v{t1}, 3, v{t0}")
    a(f"v_lshrrev_b32 v{t1}, 5, v0")
    a(f"v_lshl_add_u32 v{t1}, v{t1}, 8, v{t0}")
    a(f"s_and_b32 s{sT0}, s{sWAVE}, 3")
    a(f"s_lshl_b32 s{sT0}, s{sT0}, 1")
    a(f"s_add_u32 s{sT1}, s{sT0}, s{sKH}")
    a(f"s_xor_b32 s{sT2}, s{sT1}, 1")
    a(f"s_mul_i32 s{sT1}, s{sT1}, 1280")
    a(f"s_mul_i32 s{sT2}, s{sT2}, 1280")
    a(f"v_add_u32 v{SA+2}, s{sT1}, v{t0}")
    a(f"v_add_u32 v{SA+3}, s{sT1}, v{t1}")
    a(f"v_add_u32 v{SA+4}, s{sT2}, v{t0}")
    a(f"v_add_u32 v{SA+5}, s{sT2}, v{t1}")
def q_reads():
    out = []
    for k, Q in ((0, QA), (1, QB)):
        out += [("d", f"ds_read2st64_b64 {vr(Q,4)}, v{SA+3+2*k} offset0:{QL//512} offset1:{QL//512+1}", "q"),
                ("d", f"ds_read_b64 {vr(Q+4,2)}, v{SA+2+2*k} offset:{QL+1024}", "q")]
    return out

def att_setup2(a):
    a(f"s_mul_i32 s{sT0}, s{sKH}, {2*KV_L}")
    if KVL: a(f"s_add_u32 s{sT0}, s{sT0}, {KVL}")
    a(f"v_and_b32 v{vKB}, 31, v0")
    a(f"v_lshrrev_b32 v{vKA}, 5, v0")
    a(f"v_mul_u32_u24 v{PB}, 320, v{vKA}")
    a(f"v_lshl_add_u32 v{vVA}, v{vKB}, 4, v{PB}")
    a(f"v_add_u32 v{vVB}, 640, v{vVA}")
    a(f"v_cmp_gt_u32 vcc, 20, v{vKB}")
    a(f"v_mov_b32 v{PB}, 1280")
    a(f"v_lshlrev_b32 v{vKB}, 3, v{vKB}")
    a(f"v_cndmask_b32 v{vVA}, v{PB}, v{vVA}, vcc")
    a(f"v_cndmask_b32 v{vVB}, v{PB}, v{vVB}, vcc")
    a(f"v_add_u32 v{vVA}, s{sT0}, v{vVA}")
    a(f"v_add_u32 v{vVB}, s{sT0}, v{vVB}")
    a(f"v_add_u32 v{vKB}, s{sT0}, v{vKB}")
    a(f"v_lshl_add_u32 v{vKA}, v{vKA}, 8, v{vKB}")
    for r in range(4): a(f"v_mov_b32 v{PB+4+r}, 0x3f803f80")
    a(f"v_min_u32 v{PB}, 11, v0")
    a(f"v_mul_u32_u24 v{PB}, {KV_L}, v{PB}")
    a.ds(f"ds_write_b128 v{PB}, {vr(PB+4,4)} offset:{KVL+2560}", "ones")
    for r in range(16):
        a(f"v_mov_b32 v{OA+r}, 0")
        a(f"v_mov_b32 v{OB+r}, 0")

def k_reads(t):
    c, e = t >> 1, t & 1
    tp = (c % KVR) * 4 + e
    kb = KB + (t % 2) * 6
    return [("d", f"ds_read2st64_b64 {vr(kb,4)}, v{vKA} offset0:{6*tp} offset1:{6*tp+1}", f"k{t}"),
            ("d", f"ds_read_b64 {vr(kb+4,2)}, v{vKB} offset:{tp*KV_L+1024}", f"k{t}")]
def v_reads(t):
    c, e = t >> 1, t & 1
    tp = (c % KVR) * 4 + e
    vb = VB + (t % 2) * 8
    return [("d", f"ds_read_b128 {vr(vb+4*kk,4)}, v{(vVA, vVB)[kk]} offset:{tp*KV_L+1280}", f"v{t}") for kk in range(2)]
def qk8(t, S, Q):
    kb = KB + (t % 2) * 6
    return f"v_mfma_f32_32x32x8_bf16 {vr(S,16)}, {vr(kb+4,2)}, {vr(Q+4,2)}, 0"
def qk16(t, S, Q):
    kb = KB + (t % 2) * 6
    return f"v_mfma_f32_32x32x16_bf16 {vr(S,16)}, {vr(kb,4)}, {vr(Q,4)}, {vr(S,16)}"
def pv(t, O, kk, pbuf):
    vb = VB + (t % 2) * 8 + 4 * kk
    return f"v_mfma_f32_32x32x16_bf16 {vr(O,16)}, {vr(vb,4)}, {vr(PB+4*pbuf,4)}, {vr(O,16)}"

def att_group(a, S, pbuf, m1, m2, s1, s2):
    p = PB + 4 * pbuf
    if m1: a(m1)
    emit_list(a, s1)
    for r in range(4): a(f"v_exp_f32 v{S+r}, v{S+r}")
    a(f"v_cvt_pk_bf16_f32 v{p}, v{S}, v{S+1}")
    a(f"v_cvt_pk_bf16_f32 v{p+1}, v{S+2}, v{S+3}")
    if m2: a(m2)
    emit_list(a, s2)
    for r in range(4, 8): a(f"v_exp_f32 v{S+r}, v{S+r}")
    a(f"v_cvt_pk_bf16_f32 v{p+2}, v{S+4}, v{S+5}")
    a(f"v_cvt_pk_bf16_f32 v{p+3}, v{S+6}, v{S+7}")

def attention_main(a, extra=None, pre=None):
    NT = 32
    def bar(c):
        def f():
            if pre: pre(c)
            a.wait_vm(f"kv{c}", lg0=True)
            a("s_barrier")
            if c in (0, 1, 15) or OPT["fine"]: a.stamp(f"att chunk{c}")
        return ("f", f)
    att_qread(a)
    emit_list(a, [bar(0)])
    emit_list(a, q_reads() + k_reads(0) + v_reads(0) + k_reads(1))
    pp_dma(a, PP_LDS)
    att_dma(a, 2)
    a.wait_lg("q")
    a("s_mov_b32 exec_lo, 0")
    for Q in (QA, QB):
        a(f"v_mov_b32 v{Q+4}, 0")
        a(f"v_mov_b32 v{Q+5}, 0")
    a("s_mov_b32 exec_lo, -1")
    a.wait_lg("k0")
    a("s_nop 0")
    a(qk8(0, SA, QA))
    a("s_nop 9")
    a(qk16(0, SA, QA))
    a("s_nop 11")
    pend = []
    for t in range(NT):
        sl = {k: [] for k in ("g0", "a", "b", "c", "g2", "d", "e", "f")}
        if t + 1 < NT:
            vv = v_reads(t + 1)
            sl["a"].append(vv[0]); sl["c"].append(vv[1])
        sl["b"].append(("f", (lambda tt: lambda: a.wait_lg([f"v{tt}", f"k{tt+1}"]))(t)))
        if t + 2 < NT:
            kk = k_reads(t + 2)
            if t % 2 == 0:
                c = t // 2 + 1
                sl["e"].append(bar(c))
                if extra and c == 2: pend += extra(c)
                if c + 2 < 16: pend += att_dma_list(c + 2)
                if extra and c != 2: pend += extra(c)
            sl["e"].append(kk[0]); sl["f"].append(kk[1])
        if OPT["prio"]:
            if t % 2 == 1:
                sl["g0"].append(("s", "s_setprio 3")); sl["g2"].append(("s", "s_setprio 2"))
            else:
                sl["g0"].append(("s", "s_setprio 1")); sl["g2"].append(("s", "s_setprio 0"))
        order = ["f"] if t % 2 == 0 else ["g0", "a", "b", "c", "g2", "d", "e", "f"]
        while pend and order:
            k = order.pop(0)
            nops = sum(1 for it in pend if it[0] != "s")
            sl[k] += take(pend)
            if t % 2 == 1 and nops > len(order) + 1 and pend: sl[k] += take(pend)
        assert not (t % 2 == 1 and pend), pend
        last = (t == NT - 1)
        att_group(a, SA, 0, qk8(t, SB, QB), pv(t-1, OB, 1, 1) if t > 0 else None, sl["g0"], sl["a"])
        att_group(a, SA+8, 1, qk16(t, SB, QB), pv(t, OA, 0, 0), sl["b"], sl["c"])
        att_group(a, SB, 0, None if last else qk8(t+1, SA, QA), pv(t, OA, 1, 1), sl["g2"], sl["d"])
        att_group(a, SB+8, 1, None if last else qk16(t+1, SA, QA), pv(t, OB, 0, 0), sl["e"], sl["f"])
    a("s_nop 1")
    a(pv(NT-1, OB, 1, 1))
    if OPT["prio"]: a("s_setprio 0")

def att_finish_store(a):
    r = SB
    a(f"v_rcp_f32 v{r}, v{OA+12}")
    a("s_nop 0")
    for i in range(12): a(f"v_mul_f32 v{OA+i}, v{r}, v{OA+i}")
    for i in range(6): a(f"v_cvt_pk_bf16_f32 v{SA+i}, v{OA+2*i}, v{OA+2*i+1}")
    a.vmem(f"buffer_store_dwordx4 {vr(SA,4)}, v{vAT0}, {srd(S_WS)}, s{sT4} offen sc1", "sto")
    a("s_mov_b32 exec_hi, 0")
    a.vmem(f"buffer_store_dwordx2 {vr(SA+4,2)}, v{vAT1}, {srd(S_WS)}, s{sT5} offen sc1", "sto")
    a("s_mov_b32 exec_hi, -1")

def att_epilogue(a):
    a.c("---- attention epilogue")
    t0, t1 = vAT0, vAT1
    a(f"s_mul_i32 s{sT0}, s{sWAVE}, 3328")
    a(f"s_add_u32 s{sT0}, s{sT0}, {XCH}")
    a(f"v_add_u32 v{t0}, s{sT0}, v{vD4}")
    a(f"v_lshlrev_b32 v{PB}, 2, v0")
    a(f"v_add_u32 v{PB+1}, s{sT0}, v{PB}")
    a(f"s_xor_b32 s{sT1}, s{sWAVE}, 4")
    a(f"s_mul_i32 s{sT1}, s{sT1}, 3328")
    a(f"s_add_u32 s{sT1}, s{sT1}, {XCH}")
    a(f"v_add_u32 v{t1}, s{sT1}, v{vD4}")
    a(f"v_add_u32 v{PB+2}, s{sT1}, v{PB}")
    a("s_nop 3")
    for i in range(3): a.ds(f"ds_write_b128 v{t0}, {vr(OB+4*i,4)} offset:{1024*i}", "x")
    a.ds(f"ds_write_b32 v{PB+1}, v{OB+12} offset:3072", "x")
    a.lg_all()
    a("s_barrier")
    for i in range(3): a.ds(f"ds_read_b128 {vr(SA+4*i,4)}, v{t1} offset:{1024*i}", "x")
    a.ds(f"ds_read_b32 v{SA+12}, v{PB+2} offset:3072", "x")
    a(f"s_and_b32 s{sT0}, s{sWAVE}, 3")
    a(f"s_lshl_b32 s{sT0}, s{sT0}, 1")
    a(f"s_lshl_b32 s{sT1}, s{sQB}, 3")
    a(f"s_add_u32 s{sT0}, s{sT0}, s{sT1}")
    a(f"s_add_u32 s{sT0}, s{sT0}, s{sKH}")
    a(f"s_mul_i32 s{sT0}, s{sT0}, {2*AF_T}")
    a(f"s_add_u32 s{sT0}, s{sT0}, {AF_OFF}")
    a(f"s_lshl_b32 s{sT4}, s{sH}, 9")
    a(f"s_add_u32 s{sT4}, s{sT4}, s{sT0}")
    a(f"s_cmp_ge_u32 s{sH}, 20")
    a(f"s_cselect_b32 s{sT1}, 24576, 0")
    a(f"s_add_u32 s{sT4}, s{sT4}, s{sT1}")
    a(f"s_add_u32 s{sT4}, s{sT4}, {24*1024}")
    a(f"s_lshr_b32 s{sT5}, s{sH}, 1")
    a(f"s_lshl_b32 s{sT5}, s{sT5}, 8")
    a(f"s_and_b32 s{sT1}, s{sH}, 1")
    a(f"s_lshl_b32 s{sT1}, s{sT1}, 3")
    a(f"s_add_u32 s{sT5}, s{sT5}, s{sT1}")
    a(f"s_add_u32 s{sT5}, s{sT5}, s{sT0}")
    a(f"s_add_u32 s{sT5}, s{sT5}, {64*1024}")
    a(f"v_bfe_u32 v{t1}, v0, 4, 1")
    a(f"v_mul_u32_u24 v{t1}, {AF_T}, v{t1}")
    a(f"v_and_b32 v{t0}, 15, v0")
    a(f"v_lshl_add_u32 v{t1}, v{t0}, 4, v{t1}")
    a(f"v_lshrrev_b32 v{t0}, 5, v0")
    a(f"v_lshl_add_u32 v{t0}, v{t0}, 8, v{t1}")
    a.lg_all()
    for i in range(13): a(f"v_add_f32 v{OA+i}, v{OA+i}, v{SA+i}")
    chk = SB + 1
    a(f"v_mul_f32 v{chk}, 0, v{OA}")
    for i in range(1, 12): a(f"v_fma_f32 v{chk}, v{OA+i}, 0, v{chk}")
    a(f"v_add_f32 v{chk}, v{chk}, v{OA+12}")
    a(f"s_mov_b32 s{sT0}, {f32hex(2.0**40)}")
    a(f"v_cmp_le_f32 vcc, {f32hex(2.0**-24)}, v{chk}")
    a(f"v_cmp_ge_f32 s[{sSAVE}:{sSAVE+1}], s{sT0}, v{chk}")
    a("s_nop 1")
    a(f"s_and_b64 vcc, vcc, s[{sSAVE}:{sSAVE+1}]")
    a(f"s_cmp_eq_u64 vcc, -1")
    LF = a.newlabel("fast")
    a(f"s_cbranch_scc1 {LF}")
    att_fallback(a)
    a.label(LF)
    att_finish_store(a)

def att_fallback(a):
    a.c("---- fallback: exact row max, then shifted exponentials")
    NEG = OB; mx = PB + 7
    kb = KB; vb = VB
    save = (list(a.vm), list(a.lg))
    a.vm_all()
    for r in range(8): a(f"v_mov_b32 v{VB+r}, 0x3f803f80")
    a(f"s_mul_i32 s{sT0}, s{sKH}, {2*KV_L}")
    if KVL: a(f"s_add_u32 s{sT0}, s{sT0}, {KVL}")
    a(f"v_subrev_u32 v{vKA}, s{sT0}, v{vKA}")
    a(f"v_subrev_u32 v{vKB}, s{sT0}, v{vKB}")
    a(f"v_subrev_u32 v{vVA}, s{sT0}, v{vVA}")
    a(f"s_mul_i32 s{sT2}, s{sH}, {KV_H}")
    a(f"s_add_u32 s{sT2}, s{sT2}, {KV_OFF}")
    a(f"v_mov_b32 v{mx}, 0xff800000")
    L1 = a.newlabel("fb1"); L2 = a.newlabel("fb2")
    a(f"s_mov_b32 s{sT1}, 0")
    a.label(L1)
    a(f"s_add_u32 s{sT0}, s{sT2}, s{sT1}")
    a(f"buffer_load_dwordx2 {vr(kb,2)}, v{vKA}, {srd(S_WS)}, s{sT0} offen sc1")
    a(f"buffer_load_dwordx2 {vr(kb+2,2)}, v{vKA}, {srd(S_WS)}, s{sT0} offen offset:512 sc1")
    a(f"buffer_load_dwordx2 {vr(kb+4,2)}, v{vKB}, {srd(S_WS)}, s{sT0} offen offset:1024 sc1")
    a("s_waitcnt vmcnt(0)")
    a(qk8(0, SA, QA))
    a("s_nop 9")
    a(qk16(0, SA, QA))
    a("s_nop 11")
    for i in range(8): a(f"v_max3_f32 v{mx}, v{mx}, v{SA+2*i}, v{SA+2*i+1}")
    a(f"s_add_u32 s{sT1}, s{sT1}, {KV_T}")
    a(f"s_cmp_lt_u32 s{sT1}, {KV_H}")
    a(f"s_cbranch_scc1 {L1}")
    a(f"v_mov_b32 v{mx-1}, v{mx}")
    a("s_nop 1")
    a(f"v_permlane32_swap_b32 v{mx}, v{mx-1}")
    a("s_nop 1")
    a(f"v_max_f32 v{mx}, v{mx}, v{mx-1}")
    for i in range(16):
        a(f"v_sub_f32 v{NEG+i}, 0, v{mx}")
        a(f"v_mov_b32 v{OA+i}, 0")
    a(f"s_mov_b32 s{sT1}, 0")
    a.label(L2)
    a(f"s_add_u32 s{sT0}, s{sT2}, s{sT1}")
    a(f"buffer_load_dwordx2 {vr(kb,2)}, v{vKA}, {srd(S_WS)}, s{sT0} offen sc1")
    a(f"buffer_load_dwordx2 {vr(kb+2,2)}, v{vKA}, {srd(S_WS)}, s{sT0} offen offset:512 sc1")
    a(f"buffer_load_dwordx2 {vr(kb+4,2)}, v{vKB}, {srd(S_WS)}, s{sT0} offen offset:1024 sc1")
    a(f"s_mov_b64 exec, s[{sEXV}:{sEXV+1}]")
    a(f"buffer_load_dwordx4 {vr(vb,4)}, v{vVA}, {srd(S_WS)}, s{sT0} offen offset:1280 sc1")
    a(f"buffer_load_dwordx4 {vr(vb+4,4)}, v{vVA}, {srd(S_WS)}, s{sT0} offen offset:1920 sc1")
    a("s_mov_b64 exec, -1")
    a("s_waitcnt vmcnt(0)")
    a(f"v_mfma_f32_32x32x8_bf16 {vr(SA,16)}, {vr(kb+4,2)}, {vr(QA+4,2)}, {vr(NEG,16)}")
    a("s_nop 9")
    a(qk16(0, SA, QA))
    a("s_nop 11")
    for i in range(16): a(f"v_exp_f32 v{SA+i}, v{SA+i}")
    a("s_nop 0")
    for i in range(8): a(f"v_cvt_pk_bf16_f32 v{PB+i}, v{SA+2*i}, v{SA+2*i+1}")
    a("s_nop 1")
    a(pv(0, OA, 0, 0))
    a(pv(0, OA, 1, 1))
    a(f"s_add_u32 s{sT1}, s{sT1}, {KV_T}")
    a(f"s_cmp_lt_u32 s{sT1}, {KV_H}")
    a(f"s_cbranch_scc1 {L2}")
    a("s_nop 11")
    a.vm, a.lg = save

AC1, AC2, TW = 8, 28, 48
vWL, vWH, vG, vTT0, vTT1 = 1, 2, 3, 6, 7
vB2 = 88
TSLOT = [40960, 81920, 122880, 0]
NS = 34
def HR(s): return 120 + 4*s

def tail_setup(a):
    a.c("---- tail setup")
    a(f"s_lshr_b32 s{sRB}, s{sXCD}, 1")
    a(f"s_lshl_b32 s{sRB}, s{sRB}, 3")
    a(f"s_add_u32 s{sRB}, s{sRB}, s{sLO}")
    a(f"s_and_b32 s{sCG}, s{sXCD}, 1")
    a(f"s_lshl_b32 s{sCG}, s{sCG}, 2")
    a(f"s_add_u32 s{sCG}, s{sCG}, s{sHI}")
    a(f"s_lshr_b32 s{sKH}, s{sWAVE}, 2")
    a(f"s_and_b32 s{sT0}, s{sWAVE}, 3")
    a(f"s_mul_i32 s{sWG}, s{sCG}, 68")
    a(f"s_mul_i32 s{sT1}, s{sKH}, {NS}")
    a(f"s_add_u32 s{sWG}, s{sWG}, s{sT1}")
    a(f"s_add_u32 s{sWG}, s{sWG}, s{sT0}")
    a(f"s_mul_i32 s{sWG}, s{sWG}, 5120")
    a(f"s_add_u32 s{sWG}, s{sWG}, {WF_OFF}")
    a(f"s_lshl_b32 s{sAG}, s{sRB}, 2")
    a(f"s_add_u32 s{sAG}, s{sAG}, s{sT0}")
    a(f"s_mul_i32 s{sAG}, s{sAG}, {AF_T}")
    a(f"s_lshl_b32 s{sT1}, s{sT1}, 10")
    a(f"s_add_u32 s{sAG}, s{sAG}, s{sT1}")
    a(f"s_add_u32 s{sAG}, s{sAG}, {AF_OFF}")
    a(f"s_mul_i32 s{sTWM}, s{sWAVE}, 5120")

def tail_dma_list(u, sreg=None):
    sr = sreg if sreg is not None else sT0
    d = (u != 8)
    out = [("s", f"s_add_u32 m0, s{sTWM}, {TSLOT[u%4]}"), ("s", f"s_add_u32 s{sr}, s{sWG}, {u*20480}")]
    for e in range(4):
        off = f" offset:{e*1024}" if e else ""
        out.append(("v", f"buffer_load_dwordx4 v{vD4}, {srd(S_WS)}, s{sr} offen{off} sc1 lds", f"w{u}", d))
    out += [("s", f"s_add_u32 m0, s{sTWM}, {TSLOT[u%4]+4096}"), ("s", f"s_add_u32 s{sr}, s{sWG}, {u*20480+4096}")]
    out.append(("v", f"buffer_load_dwordx4 v{vD4}, {srd(S_WS)}, s{sr} offen sc1 lds", f"w{u}", d))
    return out
def tail_dma(a, u):
    L = None
    if u == 8:
        L = a.newlabel("nod")
        a(f"s_bitcmp1_b32 s{sWAVE}, 1")
        a(f"s_cbranch_scc1 {L}")
    emit_list(a, tail_dma_list(u))
    if L: a.label(L)

def tail_aload_list(s0, n, sreg=None):
    sr = sreg if sreg is not None else sT0
    out = [("s", f"s_add_u32 s{sr}, s{sAG}, {(s0//4)*4096}")]
    for s in range(s0, s0+n):
        assert s // 4 == s0 // 4
        off = f" offset:{(s%4)*1024}" if s % 4 else ""
        out.append(("v", f"buffer_load_dwordx4 {vr(HR(s),4)}, v{vD4}, {srd(S_WS)}, s{sr} offen{off} sc1", f"a{s}"))
    return out

def tail_small_loads(a):
    mk_srd(a, S_M1, P_B2, 1280)
    a(f"v_lshrrev_b32 v{vTT0}, 4, v0")
    a(f"v_lshlrev_b32 v{vTT1}, 3, v{vTT0}")
    a(f"v_lshlrev_b32 v{vTT0}, 4, v{vTT0}")
    a(f"s_mul_i32 s{sT0}, s{sCG}, 160")
    a.vmem(f"buffer_load_dwordx4 {vr(vB2,4)}, v{vTT0}, {srd(S_M1)}, s{sT0} offen", "b2")
    a.vmem(f"buffer_load_dwordx4 {vr(vB2+4,4)}, v{vTT0}, {srd(S_M1)}, s{sT0} offen offset:64", "b2")
    a.vmem(f"buffer_load_dwordx2 {vr(vB2+8,2)}, v{vTT1}, {srd(S_M1)}, s{sT0} offen offset:128", "b2")
    a(f"s_and_b32 s{sT0}, s{sWAVE}, 3")
    a(f"s_lshl_b32 s{sT1}, s{sRB}, 2")
    a(f"s_add_u32 s{sT0}, s{sT0}, s{sT1}")
    a(f"s_lshl_b32 s{sT0}, s{sT0}, 6")
    a(f"s_add_u32 s{sT0}, s{sT0}, {G_OFF}")
    a(f"v_and_b32 v{vG}, 15, v0")
    a(f"v_lshlrev_b32 v{vG}, 2, v{vG}")
    a.vmem(f"buffer_load_dword v{vG}, v{vG}, {srd(S_WS)}, s{sT0} offen sc1", "g")

def tail_reads(s):
    u = s // 4
    base = TSLOT[u % 4]
    reg = vWL if base < 81920 else vWH
    base = base if base < 81920 else base - 81920
    return [f"ds_read_b128 {vr(TW+(s%2)*20+4*T,4)}, v{reg} offset:{base+(s%4)*5120+T*1024}" for T in range(5)]
def tail_mfmas(s):
    acc = AC1 if s < 24 else AC2
    out = []
    for T in range(5):
        d = vr(acc+4*T, 4)
        cin = "0" if s in (0, 24) else d
        out.append(f"v_mfma_f32_16x16x32_bf16 {d}, {vr(TW+(s%2)*20+4*T,4)}, {vr(HR(s),4)}, {cin}")
    return out

def tail_main(a, issued, pre=None, post=None):
    pre = pre or {}; post = post or {}
    a(f"s_mul_i32 s{sT0}, s{sKH}, 20480")
    a(f"v_add_u32 v{vWL}, s{sT0}, v{vD4}")
    a(f"v_add_u32 v{vWH}, 81920, v{vWL}")
    pend = []
    for s in range(NS + 1):
        if s % 4 == 0 and s < NS:
            u = s // 4
            if u in pre: pre[u]()
            a.wait_vm(f"w{u}", lg0=True)
            a("s_barrier")
            a.stamp(f"tail chunk{u}")
            if u in post: pend += post[u]()
            if u + 3 < 9 and u + 3 >= issued:
                if u + 3 == 8: pend.append(("f", lambda: tail_dma(a, 8)))
                else: pend += tail_dma_list(u + 3)
        else:
            a.lg_all()
        rd = tail_reads(s) if s < NS else []
        mf = tail_mfmas(s-1) if s > 0 else []
        if s > 0: a.wait_vm(f"a{s-1}")
        for i in range(5):
            if i < len(mf): a(mf[i])
            for r in rd[2*i:2*i+2]: a.ds(r, f"t{s}")
            if i >= 3 and pend:
                n = 1
                while n < len(pend) and pend[n-1][0] == "s": n += 1
                emit_list(a, pend[:n]); pend = pend[n:]
    assert not pend
    a.c("---- mix, exchange, store")
    a.wait_vm(["g", "b2"])
    omg = vWH
    a(f"v_sub_f32 v{omg}, 1.0, v{vG}")
    a(f"v_cvt_pk_bf16_f32 v{omg}, v{omg}, v{omg}")
    a(f"v_and_b32 v{omg}, 0xffff0000, v{omg}")
    a(f"s_mul_i32 s{sT1}, s{sWAVE}, 3072")
    a(f"v_add_u32 v{vTT0}, s{sT1}, v{vD4}")
    a(f"s_xor_b32 s{sT1}, s{sWAVE}, 4")
    a(f"s_mul_i32 s{sT1}, s{sT1}, 3072")
    a(f"v_add_u32 v{vTT1}, s{sT1}, v{vD4}")
    for i in range(20): a(f"v_mul_f32 v{AC1+i}, v{omg}, v{AC1+i}")
    for i in range(20): a(f"v_fma_f32 v{AC1+i}, v{vG}, v{AC2+i}, v{AC1+i}")
    XB = 40960 + 40960
    a(f"s_and_b32 s{sT0}, s{sWAVE}, 3")
    a(f"s_lshl_b32 s{sT1}, s{sRB}, 2")
    a(f"s_add_u32 s{sT0}, s{sT0}, s{sT1}")
    a(f"s_mul_i32 s{sT0}, s{sT0}, {16*1280}")
    a(f"s_mul_i32 s{sT1}, s{sCG}, 160")
    a(f"s_add_u32 s{sT0}, s{sT0}, s{sT1}")
    a(f"v_add_u32 v{vTT0}, {XB}, v{vTT0}")
    a(f"v_add_u32 v{vTT1}, {XB}, v{vTT1}")
    LB = a.newlabel("mixB"); LE = a.newlabel("mixE")
    a(f"s_cmp_eq_u32 s{sKH}, 1")
    a(f"s_cbranch_scc1 {LB}")
    for own, send in (((0, 1), (2, 3, 4)), ((2, 3, 4), (0, 1))):
        for k, T in enumerate(send): a.ds(f"ds_write_b128 v{vTT0}, {vr(AC1+4*T,4)} offset:{k*1024}", "x")
        a(f"v_and_b32 v{vWL}, 15, v0")
        a(f"v_mul_u32_u24 v{vWL}, 1280, v{vWL}")
        a(f"v_lshrrev_b32 v{vD4}, 4, v0")
        a(f"v_lshl_add_u32 v{vG}, v{vD4}, 3, v{vWL}")
        a(f"v_lshl_add_u32 v{vWL}, v{vD4}, 4, v{vWL}")
        for T in own:
            for r in range(4):
                src = vB2 + 2*T + r//2
                tmp = TW + T*4 + r
                if r % 2 == 0: a(f"v_lshlrev_b32 v{tmp}, 16, v{src}")
                else: a(f"v_and_b32 v{tmp}, 0xffff0000, v{src}")
                a(f"v_fma_f32 v{AC1+4*T+r}, v{omg}, v{tmp}, v{AC1+4*T+r}")
        a.lg_all()
        a("s_barrier")
        for k, T in enumerate(own): a.ds(f"ds_read_b128 {vr(TW+4*T,4)}, v{vTT1} offset:{k*1024}", f"x{T}")
        for T in own:
            a.wait_lg(f"x{T}")
            for r in range(4): a(f"v_add_f32 v{AC1+4*T+r}, v{AC1+4*T+r}, v{TW+4*T+r}")
            o = TW + 20 + 2*T
            a(f"v_cvt_pk_bf16_f32 v{o}, v{AC1+4*T}, v{AC1+4*T+1}")
            a(f"v_cvt_pk_bf16_f32 v{o+1}, v{AC1+4*T+2}, v{AC1+4*T+3}")
            if T == 1: a(f"buffer_store_dwordx4 {vr(TW+20,4)}, v{vWL}, {srd(S_OUT)}, s{sT0} offen")
            if T == 3: a(f"buffer_store_dwordx4 {vr(TW+24,4)}, v{vWL}, {srd(S_OUT)}, s{sT0} offen offset:64")
            if T == 4: a(f"buffer_store_dwordx2 {vr(TW+28,2)}, v{vG}, {srd(S_OUT)}, s{sT0} offen offset:128")
        if own == (0, 1):
            a(f"s_branch {LE}")
            a.label(LB)
    a.label(LE)
    a.stamp("tail end")


def att_extra(a):
    pieces = []
    for u in range(3):
        for e in range(5):
            pieces.append([("s", f"s_add_u32 m0, s{sTWM}, {TSLOT[u] + e*1024}"),
                           ("s", f"s_add_u32 s{sDM2}, s{sWG}, {u*20480 + e*1024}"),
                           ("v", f"buffer_load_dwordx4 v{vD4}, {srd(S_WS)}, s{sDM2} offen sc1 lds", f"w{u}")])
    def extra(c):
        out = []
        if c == 1 and OPT["hlate"]: out += h_store(0) + h_store(1) + h_store(2)
        if c == 2: out.append(("f", lambda: (pp_finish(a, 244, 248), second_unit(a, 0))))
        if c == 4: out.append(("f", lambda: second_unit(a, 1)))
        if c == 6: out.append(("f", lambda: flag_set(a, 1, 120)))
        if c == 7: out.append(("f", lambda: poll(a, "B", 120, 122, "issue")))
        if 8 <= c < 16:
            i = c - 8
            if i % 4 == 0: out += tail_aload_list(3*i, 3, sDM)
            elif i % 4 == 1: out += tail_aload_list(3*i, 1, sDM) + tail_aload_list(3*i+1, 2, sDM)
            elif i % 4 == 2: out += tail_aload_list(3*i, 2, sDM) + tail_aload_list(3*i+2, 1, sDM)
            else: out += tail_aload_list(3*i, 3, sDM)
            for _ in range(2):
                if pieces: out += pieces.pop(0)
            if c == 15: out.append(("f", lambda: tail_warm(a)))
        return out
    def pre(c):
        if c == 6: wait_st(a, "st1")
        if c == 8: poll(a, "B", 120, 122, "check")
    return extra, pre

def tail_warm(a):
    t = 250
    a(f"s_lshl_b32 s{sT0}, s{sLO}, 3")
    a(f"s_add_u32 s{sT0}, s{sT0}, s{sWAVE}")
    a(f"s_and_b32 s{sT1}, s{sT0}, 31")
    a(f"s_mul_i32 s{sT1}, s{sT1}, {28*128}")
    a(f"s_lshr_b32 s{sT0}, s{sT0}, 5")
    a(f"s_mul_i32 s{sT0}, s{sT0}, {NS*5120}")
    a(f"s_add_u32 s{sT0}, s{sT0}, s{sT1}")
    a(f"s_mul_i32 s{sT1}, s{sCG}, {68*5120}")
    a(f"s_add_u32 s{sT0}, s{sT0}, s{sT1}")
    a(f"s_add_u32 s{sT0}, s{sT0}, {WF_OFF + 12*5120}")
    a(f"v_min_u32 v{t}, 27, v0")
    a(f"v_lshlrev_b32 v{t}, 7, v{t}")
    a.vmem(f"buffer_load_dword v{t}, v{t}, {srd(S_WS)}, s{sT0} offen sc1", "warm")

def mega(a):
    phase1(a)
    a.stamp_move(255)
    tail_setup(a)
    a(f"s_mov_b32 s{sT3}, s2")
    pp_setup(a, PP_LDS, (232, 233, 234, 235, 236))
    att_setup2(a)
    extra, pre = att_extra(a)
    attention_main(a, extra, pre)
    a.stamp("att main done")
    att_epilogue(a)
    a.stamp("att end")
    a.stamp_move(110)
    tail_small_loads(a)
    pre = {1: lambda: wait_st(a, "sto"), 4: lambda: poll(a, "C", 98, 100, "check")}
    post = {1: lambda: [("f", lambda: flag_set(a, 2, 98))],
            3: lambda: [("f", lambda: poll(a, "C", 98, 100, "issue"))],
            4: lambda: tail_aload_list(24, 4, sDM) + tail_aload_list(28, 4, sDM) + tail_aload_list(32, 2, sDM)}
    tail_main(a, 3, pre, post)

HEADER = open("cdna_kernels/" + NAME + ".s.ref").read().split("; Override launch")[0]

def build(fn, stamps=False):
    a = Asm()
    a.stamps = stamps
    name = NAME + "_kernel"
    a.stampreg = 17; a.nstamp = 0; a.stampnames = []; a.stampbase = STAMP_OFF
    a('.amdgcn_target "amdgcn-amd-amdhsa--gfx950"')
    a(".text")
    a(f".globl {name}")
    a(".p2align 8")
    a(f".type {name},@function")
    a.label(name)
    prologue(a)
    a.rstamp(62)
    mega(a)
    a.stamp_flush(srd(S_WS), a.stampbase)
    a.label("L_exit")
    a("s_endpgm")
    a('.section .rodata,"a"')
    a(".p2align 6")
    a(f".amdhsa_kernel {name}")
    a(".amdhsa_next_free_vgpr 256")
    a(".amdhsa_next_free_sgpr 102")
    a(".amdhsa_accum_offset 256")
    a(".amdhsa_group_segment_fixed_size 0")
    a(".amdhsa_kernarg_size 96")
    a(".amdhsa_user_sgpr_count 2")
    a(".amdhsa_user_sgpr_kernarg_segment_ptr 1")
    a(".amdhsa_system_sgpr_workgroup_id_x 1")
    a(".end_amdhsa_kernel")
    for e in check_hazards(a.lines): print("HAZARD", e)
    if stamps: json.dump({"mega": a.stampnames}, open(fn + ".names", "w"))
    open(fn, "w").write(HEADER + "; @launch grid=(256,1,1) block=(512,1,1) lds=163840\n" + a.text())

if __name__ == "__main__":
    for o in sys.argv[2:]:
        if o.startswith("no"): OPT[o[2:]] = False
        elif "=" in o: k, v = o.split("="); OPT[k] = int(v)
        else: OPT[o] = True
    build(sys.argv[1], stamps=OPT.get("stamps", False))
```

```python
import sys, math, struct, json
from emit import Asm, check_hazards

NAME = "gated_mix__softmax_full_mha__dense_activation_squared_relu__prompt"
QF_OFF = 0
KV_OFF = 2621440
KV_T = 2560
KV_L = 3072
KV_H = 64 * KV_T
AF_OFF = KV_OFF + 32 * KV_H
AF_T = 68 * 1024
WF_OFF = AF_OFF + 128 * AF_T
G_OFF = WF_OFF + 8 * 68 * 5120
FLAG_OFF = G_OFF + 8192
STAMP_OFF = FLAG_OFF + 3 * 32768
WS_USED = STAMP_OFF + 3 * 2048 * 256
QSCALE = (20 ** -0.5) * math.log2(math.e)
def f32hex(x): return "0x%08x" % struct.unpack("<I", struct.pack("<f", x))[0]

OPT = dict(fine=False, prio=True, pf=True, spread=True, abar=12, pf2=4, rot=True, hlate=False, c1late=True, apoll=36)

S_X, S_WQ, S_W1, S_WS, S_OUT, S_M1, S_M2 = 8, 12, 16, 20, 24, 28, 32
P_WO, P_B1, P_W2, P_B2, P_GW, P_DBG = 36, 38, 40, 42, 44, 46
sWAVE, sM, sJ, sT0, sT1, sT2, sT3, sT4, sT5 = 48, 49, 50, 51, 52, 53, 54, 55, 56
sLDSW, sOffX, sOffW, sScale, sXCD, sLO, sHI = 57, 58, 59, 60, 61, 62, 63
sEXV, sSAVE = 64, 66
sH, sQB, sKVG, sKH, sKVM = 68, 69, 70, 71, 72
sRB, sCG, sWG, sAG, sTWM = 73, 74, 75, 76, 77
sDM, sW1M, sW1G, sEPI, sPPC, sPD0, sPD1, sPFX, sPFW, sDM2 = 78, 79, 80, 81, 82, 83, 84, 85, 86, 87
sSPIN = 96
sCK, sCK1, sROT = 88, 89, 90
S_DBG = 92
def srd(b): return f"s[{b}:{b+3}]"
def vr(b, n=1): return f"v{b}" if n == 1 else f"v[{b}:{b+n-1}]"

def mk_srd(a, base, ptr, size):
    a(f"s_mov_b32 s{base}, s{ptr}")
    a(f"s_mov_b32 s{base+1}, s{ptr+1}")
    a(f"s_mov_b32 s{base+2}, {size}")
    a(f"s_mov_b32 s{base+3}, 0x00020000")

def emit_list(a, lst):
    for it in lst:
        if it[0] == "s": a(it[1])
        elif it[0] == "v": a.vmem(it[1], it[2], definite=(it[3] if len(it) > 3 else True))
        elif it[0] == "d": a.ds(it[1], it[2])
        elif it[0] == "f": it[1]()
def take(pend):
    k = 1
    while k < len(pend) and pend[k-1][0] == "s": k += 1
    out = pend[:k]; del pend[:k]
    return out

def wait_st(a, tag):
    if OPT.get("strict"): a.vm_all()
    else: a.wait_vm(tag)

def prologue(a):
    a("s_cmp_ge_u32 s2, 256")
    a("s_cbranch_scc1 L_exit")
    a("s_load_dwordx16 s[68:83], s[0:1], 0")
    a("s_load_dwordx8 s[84:91], s[0:1], 64")
    a(f"v_lshrrev_b32 v1, 6, v0")
    a(f"s_and_b32 s{sXCD}, s2, 7")
    a(f"v_readfirstlane_b32 s{sWAVE}, v1")
    a(f"s_lshr_b32 s{sLO}, s2, 3")
    a(f"s_and_b32 s{sLO}, s{sLO}, 7")
    a(f"s_lshr_b32 s{sHI}, s2, 6")
    a(f"v_and_b32 v0, 63, v0")
    a(f"s_mov_b32 s{sSPIN}, 0")
    a(f"s_and_b32 s{sM}, s{sXCD}, 1")
    a(f"s_lshl_b32 s{sM}, s{sM}, 3")
    a(f"s_add_u32 s{sM}, s{sM}, s{sLO}")
    a(f"s_lshr_b32 s{sJ}, s{sXCD}, 1")
    a(f"s_lshl_b32 s{sJ}, s{sJ}, 2")
    a(f"s_add_u32 s{sJ}, s{sJ}, s{sHI}")
    p1_setup(a)
    a("s_waitcnt lgkmcnt(0)")
    mk_srd(a, S_X, 68, 2621440)
    mk_srd(a, S_WQ, 70, 2457600)
    mk_srd(a, S_M1, 84, 1280)
    mk_srd(a, S_W1, 76, 1966080)
    mk_srd(a, S_WS, 90, WS_USED)
    mk_srd(a, S_OUT, 86, 2621440)
    mk_srd(a, S_DBG, 88, 256)
    for dst, src in ((P_WO, 72), (P_B1, 78), (P_W2, 80), (P_B2, 82)):
        a(f"s_mov_b64 s[{dst}:{dst+1}], s[{src}:{src+1}]")

def wave0(a, body, w=0):
    L = a.newlabel("w0")
    a(f"s_cmp_lg_u32 s{sWAVE}, {w}")
    a(f"s_cbranch_scc1 {L}")
    a.inw0 = True
    body()
    a.inw0 = False
    a.label(L)

def flags_clear(a, t):
    def body():
        a(f"v_lshlrev_b32 v{t}, 15, v0")
        a(f"v_mov_b32 v{t+1}, 0")
        a(f"s_lshl_b32 s{sT0}, s2, 7")
        a(f"s_add_u32 s{sT0}, s{sT0}, {FLAG_OFF}")
        a("s_mov_b64 exec, 7")
        a.vmem(f"buffer_store_dword v{t+1}, v{t}, {srd(S_WS)}, s{sT0} offen sc1", "clr", definite="w0")
        a("s_mov_b64 exec, -1")
    wave0(a, body)

def flags_count_in(a, t):
    def body():
        st = list(a.vm)
        a.wait_vm("clr")
        a.vm = st
        a(f"s_and_b32 s{sT0}, s2, 31")
        a(f"s_lshl_b32 s{sT0}, s{sT0}, 2")
        a(f"s_add_u32 s{sT0}, s{sT0}, 128")
        a(f"v_mov_b32 v{t}, s{sT0}")
        a(f"v_mov_b32 v{t+1}, 1")
        a("s_mov_b64 exec, 1")
        a.vmem(f"buffer_atomic_add v{t+1}, v{t}, {srd(S_DBG)}, 0 offen sc1", "cnt", definite="w0")
        a("s_mov_b64 exec, -1")
    wave0(a, body)

def flag_set(a, which, t):
    def body():
        a(f"v_mov_b32 v{t}, 0")
        a(f"v_mov_b32 v{t+1}, 1")
        a(f"s_lshl_b32 s{sT0}, s2, 7")
        a(f"s_add_u32 s{sT0}, s{sT0}, {FLAG_OFF + which * 32768}")
        a(f"s_mov_b64 exec, 1")
        a.vmem(f"buffer_store_dword v{t+1}, v{t}, {srd(S_WS)}, s{sT0} offen sc1", "flag", definite="w0")
        a("s_mov_b64 exec, -1")
    wave0(a, body)

def poll(a, kind, t, d, stage):
    def addr():
        if kind == "init" :
            a(f"v_lshlrev_b32 v{t}, 2, v0")
            a(f"v_or_b32 v{t}, 128, v{t}")
        elif kind == "B":
            a(f"v_lshlrev_b32 v{t}, 7, v0")
        elif kind == "C":
            a(f"v_bfe_u32 v{t}, v0, 2, 3")
            a(f"v_and_b32 v{d}, 3, v0")
            a(f"v_lshl_add_u32 v{t}, v{d}, 6, v{t}")
            a(f"v_lshlrev_b32 v{t}, 7, v{t}")
            a(f"s_lshr_b32 s{sT5}, s{sRB}, 2")
            a(f"s_lshl_b32 s{sT5}, s{sT5}, 10")
            a(f"v_add_u32 v{t}, s{sT5}, v{t}")
        else:
            a(f"s_lshl_b32 s{sT3}, s{sXCD}, 2")
            a(f"s_add_u32 s{sT3}, s{sT3}, s{sHI}")
            a(f"s_mul_i32 s{sT3}, s{sT3}, 20")
            a(f"s_add_u32 s{sT4}, s{sT3}, 19")
            a(f"s_lshr_b32 s{sT3}, s{sT3}, 7")
            a(f"s_lshr_b32 s{sT4}, s{sT4}, 7")
            a(f"s_sub_u32 s{sT4}, s{sT4}, s{sT3}")
            for k in range(2):
                if k == 0:
                    a(f"v_bfe_u32 v{d}, v0, 4, 1")
                    a(f"v_mul_u32_u24 v{d}, s{sT4}, v{d}")
                    a(f"v_lshrrev_b32 v{d+1}, 5, v0")
                    a(f"v_mad_u32_u24 v{d}, v{d+1}, 5, v{d}")
                    a(f"v_add3_u32 v{d}, v{d}, s{sT3}, 5")
                    a(f"v_and_b32 v{d+1}, 15, v0")
                else:
                    a(f"v_and_b32 v{d}, 1, v0")
                    a(f"v_mul_u32_u24 v{d}, s{sT4}, v{d}")
                    a(f"v_add_u32 v{d}, s{sT3}, v{d}")
                    a(f"v_bfe_u32 v{d+1}, v0, 1, 1")
                    a(f"s_lshl_b32 s{sT5}, s{sLO}, 1")
                    a(f"v_add_u32 v{d+1}, s{sT5}, v{d+1}")
                a(f"v_lshrrev_b32 v{d+2}, 3, v{d+1}")
                a(f"v_lshrrev_b32 v{d+3}, 2, v{d}")
                a(f"v_lshl_add_u32 v{d+2}, v{d+3}, 1, v{d+2}")
                a(f"v_and_b32 v{d+1}, 7, v{d+1}")
                a(f"v_lshl_add_u32 v{d+2}, v{d+1}, 3, v{d+2}")
                a(f"v_and_b32 v{d}, 3, v{d}")
                a(f"v_lshl_add_u32 v{d+2}, v{d}, 6, v{d+2}")
                a(f"v_lshlrev_b32 v{t+k}, 7, v{d+2}")
    def loads():
        if kind == "init": return [f"buffer_load_dword v{d}, v{t}, {srd(S_DBG)}, 0 offen sc1"]
        out = []
        n = {"A": 2, "B": 4, "C": 1}[kind]
        for k in range(n):
            base = FLAG_OFF + "ABC".index(kind) * 32768 + (k * 8192 if kind == "B" else 0)
            out.append(f"s_mov_b32 s{sT5}, {base}")
            out.append(f"buffer_load_dword v{d+k}, v{t + (k if kind == 'A' else 0)}, {srd(S_WS)}, s{sT5} offen sc1")
        return out
    def issue():
        addr()
        for l in loads():
            if l.startswith("s_"): a(l)
            else: a.vmem(l, "poll" + kind, definite="w0")
    def check():
        L = a.newlabel("spin"); LD = a.newlabel("got")
        st = list(a.vm)
        a.wait_vm("poll" + kind)
        a.label(L)
        if kind in ("A", "B"): a(f"v_and_b32 v{d}, v{d}, v{d+1}")
        if kind == "B":
            a(f"v_and_b32 v{d+2}, v{d+2}, v{d+3}")
            a(f"v_and_b32 v{d}, v{d}, v{d+2}")
        a(f"v_cmp_le_u32 vcc, 8, v{d}" if kind == "init" else f"v_cmp_eq_u32 vcc, 1, v{d}")
        a("s_nop 1")
        a("s_cmp_eq_u64 vcc, -1")
        a(f"s_cbranch_scc1 {LD}")
        a(f"s_add_u32 s{sSPIN}, s{sSPIN}, 1")
        a(f"s_cmp_gt_u32 s{sSPIN}, 0x100000")
        a(f"s_cbranch_scc1 {LD}")
        a("s_sleep 1")
        for l in loads(): a(l)
        a("s_waitcnt vmcnt(0)")
        a(f"s_branch {L}")
        a.label(LD)
        a.vm = [(t_, False if d_ == "w0" else d_) for t_, d_ in st if t_ != "poll" + kind]
    wave0(a, issue if stage == "issue" else check)

XR, ACC, WF = 96, 64, 32
vX0, vX1, vW0, vW1, vU0, vU1, vU2 = 1, 2, 3, 4, 5, 6, 7
vXA, vTA, vTB, vB1, vEA, vPP, vPF = 8, 10, 14, 18, 24, 240, 242
PK = [44, 60, 92, 76]
PP_LDS = 131072

def p1_setup(a):
    t0, t1, t2, t3 = 32, 33, 34, 35
    a(f"s_lshl_b32 s{sLDSW}, s{sWAVE}, 12")
    a(f"s_mul_i32 s{sOffX}, s{sM}, {128*1280}")
    a(f"s_lshl_b32 s{sOffW}, s{sJ}, 8")
    a(f"v_lshrrev_b32 v{t0}, 3, v0")
    a(f"s_lshl_b32 s{sT0}, s{sWAVE}, 4")
    a(f"v_add_u32 v{t0}, s{sT0}, v{t0}")
    a(f"v_mul_u32_u24 v{t0}, 1280, v{t0}")
    a(f"v_and_b32 v{t1}, 7, v0")
    a(f"v_lshrrev_b32 v{t2}, 4, v0")
    a(f"v_xor_b32 v{t1}, v{t1}, v{t2}")
    a(f"v_lshl_add_u32 v{vX0}, v{t1}, 4, v{t0}")
    a(f"v_xor_b32 v{t1}, 4, v{t1}")
    a(f"v_lshl_add_u32 v{vX1}, v{t1}, 4, v{t0}")
    a(f"v_add_u32 v{vX1}, {8*1280-1024}, v{vX1}")
    a(f"s_lshl_b32 s{sT0}, s{sWAVE}, 3")
    a(f"v_add_u32 v{t0}, s{sT0}, v{t2}")
    a(f"v_mul_u32_u24 v{t0}, 3840, v{t0}")
    a(f"s_and_b32 s{sT0}, s{sWAVE}, 1")
    a(f"s_lshl_b32 s{sT0}, s{sT0}, 2")
    a(f"v_or_b32 v{t1}, s{sT0}, v{t2}")
    a(f"v_bfe_u32 v{t3}, v0, 1, 3")
    a(f"v_xor_b32 v{t1}, v{t1}, v{t3}")
    a(f"v_lshlrev_b32 v{t1}, 5, v{t1}")
    a(f"v_and_b32 v{t3}, 1, v0")
    a(f"v_lshl_add_u32 v{t1}, v{t3}, 4, v{t1}")
    a(f"v_add_u32 v{vW0}, v{t0}, v{t1}")
    a(f"v_add_u32 v{vW1}, {4*3840-1024}, v{vW0}")
    a(f"v_mov_b32 v28, 0")
    a(f"v_mov_b32 v29, 0")
    a(f"v_lshlrev_b32 v36, 4, v0")
    a(f"v_lshlrev_b32 v37, 2, v0")

def p1_dma_list(c, mode="q"):
    slot = (c % 4) * 32768
    if c < 10:
        out = [("s", f"s_add_u32 m0, s{sLDSW}, {slot}"),
               ("s", f"s_lshl_b32 s{sDM}, s{sCK}, 7"),
               ("s", f"s_add_u32 s{sDM}, s{sDM}, s{sOffX}"),
               ("v", f"buffer_load_dwordx4 v{vX0}, {srd(S_X)}, s{sDM} offen lds", f"c{c}"),
               ("v", f"buffer_load_dwordx4 v{vX1}, {srd(S_X)}, s{sDM} offen offset:1024 lds", f"c{c}")]
        adv = [("s", f"s_add_u32 s{sCK}, s{sCK}, 1"), ("s", f"s_cmp_eq_u32 s{sCK}, 10"), ("s", f"s_cselect_b32 s{sCK}, 0, s{sCK}")]
        if mode != "x":
            out += [("s", f"s_add_u32 m0, s{sLDSW}, {slot+2048}"),
                    ("s", f"s_mul_i32 s{sDM}, s{sCK}, {64*3840}"),
                    ("s", f"s_add_u32 s{sDM}, s{sDM}, s{sOffW}"),
                    ("v", f"buffer_load_dwordx4 v{vW0}, {srd(S_WQ)}, s{sDM} offen lds", f"c{c}")] + adv + \
                   [("v", f"buffer_load_dwordx4 v{vW1}, {srd(S_WQ)}, s{sDM} offen offset:1024 lds", f"c{c}")]
        else:
            out = out[:4] + adv + out[4:]
        return out
    out = [("s", f"s_add_u32 m0, s{sW1M}, {slot}"),
           ("s", f"s_mul_i32 s{sDM}, s{sCK1}, {64*3072}"),
           ("s", f"s_add_u32 s{sDM}, s{sDM}, s{sW1G}")]
    for e, v in enumerate((vU0, vU1, vU2)):
        off = f" offset:{e*1024}" if e else ""
        out.append(("v", f"buffer_load_dwordx4 v{v}, {srd(S_W1)}, s{sDM} offen{off} lds", f"c{c}"))
        if e == 0: out += [("s", f"s_add_u32 s{sCK1}, s{sCK1}, 2"), ("s", f"s_sub_u32 s{sDM2}, s{sCK1}, 10"), ("s", f"s_min_u32 s{sCK1}, s{sCK1}, s{sDM2}")]
    return out

def rot_setup(a):
    a(f"s_lshr_b32 s{sCK}, s{sXCD}, 1")
    a(f"s_and_b32 s{sT0}, s{sXCD}, 1")
    a(f"s_mul_i32 s{sT0}, s{sT0}, 5")
    a(f"s_add_u32 s{sCK}, s{sCK}, s{sT0}")
    if not OPT["rot"]: a(f"s_mov_b32 s{sCK}, 0")
    a(f"s_mov_b32 s{sROT}, s{sCK}")
    a(f"s_lshr_b32 s{sCK1}, s{sWAVE}, 2")
    a(f"s_add_u32 s{sCK1}, s{sCK1}, s{sCK}")

vPX, vPW, vP1 = 248, 249, 250
def mod10(a, t0, t1):
    a(f"v_subrev_u32 v{t1}, 10, v{t0}")
    a(f"v_min_u32 v{t0}, v{t0}, v{t1}")
def pf_w(a, first, n, dst):
    t0, t1 = 26, 27
    a(f"v_lshrrev_b32 v{t0}, 1, v0")
    a(f"v_min_u32 v{t0}, {n-1}, v{t0}")
    a(f"v_add3_u32 v{t0}, s{sROT}, v{t0}, {first}")
    mod10(a, t0, t1)
    a(f"v_mul_u32_u24 v{t0}, {64*3840}, v{t0}")
    a(f"v_and_b32 v{t1}, 1, v0")
    a(f"v_lshl_add_u32 v{t0}, v{t1}, 7, v{t0}")
    a.vmem(f"buffer_load_dword v{dst}, v{t0}, {srd(S_WQ)}, s{sPFW} offen", "pf")
def pf_x(a, first, n, dst, definite=True):
    t0, t1 = 26, 27
    a(f"v_lshrrev_b32 v{t0}, 2, v0")
    a(f"v_min_u32 v{t0}, {n-1}, v{t0}")
    a(f"v_add3_u32 v{t0}, s{sROT}, v{t0}, {first}")
    mod10(a, t0, t1)
    a(f"v_and_b32 v{t1}, 3, v0")
    a(f"v_mul_u32_u24 v{t1}, 1280, v{t1}")
    a(f"v_lshl_add_u32 v{t0}, v{t0}, 7, v{t1}")
    a.vmem(f"buffer_load_dword v{dst}, v{t0}, {srd(S_X)}, s{sPFX} offen", "pf", definite=definite)
def pf_setup(a):
    t0, t1 = 32, 33
    a(f"s_lshr_b32 s{sT0}, s2, 3")
    a(f"s_lshl_b32 s{sT0}, s{sT0}, 3")
    a(f"s_add_u32 s{sT0}, s{sT0}, s{sWAVE}")
    a(f"s_lshr_b32 s{sT1}, s{sT0}, 2")
    a(f"s_mul_i32 s{sPFW}, s{sT1}, 3840")
    a(f"s_and_b32 s{sT1}, s{sT0}, 3")
    a(f"s_lshl_b32 s{sT1}, s{sT1}, 8")
    a(f"s_add_u32 s{sPFW}, s{sPFW}, s{sT1}")
    a(f"s_lshr_b32 s{sT2}, s{sXCD}, 1")
    a(f"s_lshl_b32 s{sT1}, s{sT2}, 10")
    a(f"s_add_u32 s{sPFW}, s{sPFW}, s{sT1}")
    a(f"s_and_b32 s{sT1}, s{sXCD}, 1")
    a(f"s_lshl_b32 s{sT1}, s{sT1}, 8")
    a(f"s_add_u32 s{sT1}, s{sT1}, s{sT0}")
    a(f"s_mul_i32 s{sPFX}, s{sT1}, {4*1280}")
    if OPT["pf"]:
        pf_w(a, 1, 4, 253)
        L = a.newlabel("pfx")
        a(f"s_cmp_lg_u32 s{sT2}, 3")
        a(f"s_cbranch_scc1 {L}")
        pf_x(a, 1, 6, 252, definite=False)
        a.label(L)
    a(f"s_mul_i32 s{sT1}, s{sT0}, {3*3072}")
    a(f"s_mul_i32 s{sT2}, s{sT2}, 768")
    a(f"s_add_u32 s{sT1}, s{sT1}, s{sT2}")
    a(f"v_lshrrev_b32 v{t0}, 3, v0")
    a(f"v_min_u32 v{t0}, 2, v{t0}")
    a(f"v_mul_u32_u24 v{t0}, 3072, v{t0}")
    a(f"v_and_b32 v{t1}, 7, v0")
    a(f"v_min_u32 v{t1}, 5, v{t1}")
    a(f"v_lshl_add_u32 v{vP1}, v{t1}, 7, v{t0}")
    a(f"v_add_u32 v{vP1}, s{sT1}, v{vP1}")
def pf_w1(): return [("v", f"buffer_load_dword v254, v{vP1}, {srd(S_W1)}, 0 offen", "pf")]

def p1_setup2(a):
    t0, t1, t2, t3, t4, t5 = 32, 33, 34, 35, 38, 39
    a(f"s_mul_i32 s{sW1M}, s{sWAVE}, 3072")
    a(f"s_mul_i32 s{sW1G}, s{sJ}, 192")
    a(f"s_and_b32 s{sT0}, s{sWAVE}, 3")
    a(f"s_lshl_b32 s{sT0}, s{sT0}, 13")
    a(f"v_bfe_u32 v{t0}, v0, 3, 1")
    a(f"v_lshlrev_b32 v{t0}, 10, v{t0}")
    a(f"v_and_b32 v{t1}, 7, v0")
    a(f"v_lshl_add_u32 v{t0}, v{t1}, 7, v{t0}")
    a(f"v_add_u32 v{t0}, s{sT0}, v{t0}")
    a(f"v_lshrrev_b32 v{t1}, 4, v0")
    a(f"v_bfe_u32 v{t2}, v0, 1, 3")
    a(f"v_xor_b32 v{t2}, v{t1}, v{t2}")
    a(f"v_lshl_add_u32 v{vXA}, v{t2}, 4, v{t0}")
    a(f"v_xor_b32 v{vXA+1}, 64, v{vXA}")
    a(f"v_bfe_u32 v{t2}, v0, 2, 2")
    a(f"v_lshlrev_b32 v{t0}, 12, v{t1}")
    a(f"v_lshl_add_u32 v{t0}, v{t2}, 8, v{t0}")
    a(f"v_and_b32 v{t3}, 3, v0")
    a(f"v_lshl_add_u32 v{t0}, v{t3}, 3, v{t0}")
    a(f"v_bfe_u32 v{t4}, v0, 4, 1")
    a(f"v_lshl_add_u32 v{t5}, v{t4}, 2, v{t2}")
    a(f"s_lshr_b32 s{sT0}, s{sWAVE}, 2")
    a(f"s_lshl_b32 s{sT1}, s{sT0}, 2")
    a(f"v_xor_b32 v{t5}, s{sT1}, v{t5}")
    for T in range(4):
        a(f"v_xor_b32 v{vTA+T}, {T}, v{t5}")
        a(f"v_lshl_add_u32 v{vTA+T}, v{vTA+T}, 5, v{t0}")
    a(f"v_lshrrev_b32 v{t0}, 5, v0")
    a(f"v_lshlrev_b32 v{t0}, 4, v{t0}")
    a(f"v_lshl_add_u32 v{t0}, v{t4}, 2, v{t0}")
    a(f"v_add_u32 v{t0}, v{t0}, v{t2}")
    a(f"v_mul_u32_u24 v{t0}, 192, v{t0}")
    a(f"v_lshl_add_u32 v{t0}, v{t3}, 3, v{t0}")
    a(f"v_add_u32 v{t0}, 0x10000, v{t0}")
    a(f"s_mul_i32 s{sT1}, s{sT0}, 3")
    for T in range(3):
        a(f"s_add_u32 s{sT2}, s{sT1}, {T}")
        a(f"v_xor_b32 v{vTB+T}, s{sT2}, v{t4}")
        a(f"v_lshl_add_u32 v{vTB+T}, v{vTB+T}, 5, v{t0}")
    mk_srd(a, S_M2, P_B1, 3072)
    a(f"s_mul_i32 s{sT2}, s{sT0}, 96")
    a(f"s_add_u32 s{sT1}, s{sW1G}, s{sT2}")
    a(f"v_lshlrev_b32 v{t1}, 3, v{t1}")
    for T in range(3):
        a.vmem(f"buffer_load_dwordx2 {vr(vB1+2*T,2)}, v{t1}, {srd(S_M2)}, s{sT1} offen offset:{32*T}", "b1")
    for e, v in enumerate((vU0, vU1, vU2)):
        a(f"v_add_u32 v{t0}, {e*64}, v0")
        a(f"v_mul_u32_u24 v{t1}, 5462, v{t0}")
        a(f"v_lshrrev_b32 v{t1}, 16, v{t1}")
        a(f"v_mul_u32_u24 v{t2}, 12, v{t1}")
        a(f"v_sub_u32 v{t2}, v{t0}, v{t2}")
        a(f"v_bfe_u32 v{t3}, v{t1}, 2, 1")
        a(f"v_bfe_u32 v{t4}, v{t1}, 3, 1")
        a(f"v_and_b32 v{t5}, 3, v{t1}")
        a(f"v_lshl_add_u32 v{t5}, v{t3}, 3, v{t5}")
        a(f"v_lshl_add_u32 v{t5}, v{t4}, 2, v{t5}")
        a(f"s_and_b32 s{sT0}, s{sWAVE}, 3")
        a(f"s_lshl_b32 s{sT0}, s{sT0}, 4")
        a(f"v_add_u32 v{t5}, s{sT0}, v{t5}")
        a(f"v_mul_u32_u24 v{t5}, 3072, v{t5}")
        a(f"v_lshlrev_b32 v{t3}, 1, v{t3}")
        a(f"v_xor_b32 v{t2}, v{t2}, v{t3}")
        a(f"v_lshl_add_u32 v{v}, v{t2}, 4, v{t5}")
        if e: a(f"v_subrev_u32 v{v}, {e*1024}, v{v}")

def epi_setup(a, mode):
    t0, t1, t2, t3, t4 = 240, 241, 242, 243, 244
    a(f"s_and_b32 s{sT1}, s{sWAVE}, 3")
    a(f"s_lshl_b32 s{sT3}, s{sM}, 2")
    a(f"s_add_u32 s{sT3}, s{sT1}, s{sT3}")
    if mode == "v": return epi_setup_v(a)
    a(f"s_cmp_ge_u32 s{sJ}, 5")
    a(f"s_cselect_b32 s{sT0}, 5, 0")
    a(f"s_cselect_b32 s{sScale}, 1.0, {f32hex(QSCALE)}")
    a(f"s_cselect_b32 s{sT1}, 1, 0")
    a(f"s_cselect_b32 s{sT2}, {KV_OFF}, {QF_OFF}")
    a(f"s_lshl_b32 s{sT4}, 81920, s{sT1}")
    a(f"s_lshl_b32 s{sT5}, 1280, s{sT1}")
    a(f"s_mul_i32 s{sEPI}, s{sT5}, s{sT3}")
    a(f"s_add_u32 s{sEPI}, s{sEPI}, s{sT2}")
    a(f"s_sub_u32 s{sT0}, s{sJ}, s{sT0}")
    a(f"s_lshl_b32 s{sT0}, s{sT0}, 5")
    a(f"s_lshr_b32 s{sT1}, s{sWAVE}, 2")
    a(f"s_lshl_b32 s{sT1}, s{sT1}, 4")
    a(f"s_add_u32 s{sT0}, s{sT0}, s{sT1}")
    a(f"v_and_b32 v{t3}, 9, v0")
    a(f"v_bfe_u32 v{t0}, v0, 1, 1")
    a(f"v_lshl_add_u32 v{t3}, v{t0}, 2, v{t3}")
    a(f"v_bfe_u32 v{t0}, v0, 2, 1")
    a(f"v_lshl_add_u32 v{t3}, v{t0}, 1, v{t3}")
    a(f"v_lshlrev_b32 v{t3}, 4, v{t3}")
    a(f"v_lshrrev_b32 v{t0}, 4, v0")
    a(f"v_add_u32 v{t0}, s{sT0}, v{t0}")
    a(f"s_mov_b32 s{sT3}, 0x43120")
    for T in range(4):
        adr = vEA + T
        a(f"v_add_u32 v{t1}, {4*T}, v{t0}")
        a(f"v_mul_u32_u24 v{t2}, 205, v{t1}")
        a(f"v_lshrrev_b32 v{t2}, 10, v{t2}")
        a(f"v_mul_u32_u24 v{adr}, 5, v{t2}")
        a(f"v_sub_u32 v{t1}, v{t1}, v{adr}")
        a(f"v_lshlrev_b32 v{t1}, 2, v{t1}")
        a(f"v_bfe_u32 v{t1}, s{sT3}, v{t1}, 4")
        a(f"v_mul_lo_u32 v{adr}, v{t2}, s{sT4}")
        a(f"v_lshl_add_u32 v{adr}, v{t1}, 8, v{adr}")
        a(f"v_add_u32 v{adr}, v{adr}, v{t3}")

def epi_setup_v(a):
    t0, t1, t2, t3, t4 = 240, 241, 242, 243, 244
    a(f"s_sub_u32 s{sT0}, s{sJ}, 10")
    a(f"s_lshl_b32 s{sT0}, s{sT0}, 7")
    a(f"s_lshr_b32 s{sT1}, s{sWAVE}, 2")
    a(f"s_lshl_b32 s{sT1}, s{sT1}, 6")
    a(f"s_add_u32 s{sT0}, s{sT0}, s{sT1}")
    a(f"s_mul_i32 s{sEPI}, s{sT3}, {KV_T}")
    a(f"s_add_u32 s{sEPI}, s{sEPI}, {KV_OFF + 1280}")
    a(f"s_mov_b32 s{sT4}, {KV_H}")
    a(f"v_lshrrev_b32 v{t3}, 4, v0")
    a(f"v_mul_u32_u24 v{t3}, 320, v{t3}")
    a(f"v_and_b32 v{t0}, 15, v0")
    a(f"v_add_u32 v{t0}, s{sT0}, v{t0}")
    for T in range(4):
        adr = vEA + T
        a(f"v_add_u32 v{t1}, {16*T}, v{t0}")
        a(f"v_mul_u32_u24 v{t2}, 3277, v{t1}")
        a(f"v_lshrrev_b32 v{t2}, 16, v{t2}")
        a(f"v_mul_u32_u24 v{adr}, 20, v{t2}")
        a(f"v_sub_u32 v{t1}, v{t1}, v{adr}")
        a(f"v_mul_lo_u32 v{adr}, v{t2}, s{sT4}")
        a(f"v_and_b32 v{t2}, 0x13, v{t1}")
        a(f"v_bfe_u32 v{t4}, v{t1}, 2, 1")
        a(f"v_lshl_add_u32 v{t2}, v{t4}, 3, v{t2}")
        a(f"v_bfe_u32 v{t4}, v{t1}, 3, 1")
        a(f"v_lshl_add_u32 v{t2}, v{t4}, 2, v{t2}")
        a(f"v_lshl_add_u32 v{adr}, v{t2}, 4, v{adr}")
        a(f"v_add_u32 v{adr}, v{adr}, v{t3}")

def pp_setup(a, base, tt):
    t0, t1, t2, t3, t4 = tt
    L = a.newlabel("pp")
    a(f"s_lshr_b32 s{sT4}, s{sT3}, 2")
    a(f"s_and_b32 s{sT5}, s{sT3}, 3")
    a(f"s_mul_i32 s{sPPC}, s{sT5}, 320")
    a(f"s_cmp_ge_u32 s{sT4}, 48")
    a(f"s_cselect_b32 s{S_M2}, s{P_WO}, s{P_W2}")
    a(f"s_cselect_b32 s{S_M2+1}, s{P_WO+1}, s{P_W2+1}")
    a(f"s_mov_b32 s{S_M2+2}, 1966080")
    a(f"s_cselect_b32 s{S_M2+2}, 819200, s{S_M2+2}")
    a(f"s_mov_b32 s{S_M2+3}, 0x00020000")
    for rep in range(2):
        a(f"s_lshl_b32 s{sT0}, s{sWAVE}, 6")
        a(f"v_add_u32 v{t0}, s{sT0}, v0")
        if rep: a(f"v_add_u32 v{t0}, 512, v{t0}")
        a(f"v_mul_u32_u24 v{t1}, 3277, v{t0}")
        a(f"v_lshrrev_b32 v{t1}, 16, v{t1}")
        a(f"v_mul_u32_u24 v{t2}, 20, v{t1}")
        a(f"v_sub_u32 v{t2}, v{t0}, v{t2}")
        a(f"s_cmp_ge_u32 s{sT4}, 48")
        a(f"s_cbranch_scc1 {L}_wo{rep}")
        a(f"s_lshl_b32 s{sT0}, s{sT4}, 5")
        a(f"v_add_u32 v{t1}, s{sT0}, v{t1}")
        a(f"s_branch {L}_go{rep}")
        a.label(f"{L}_wo{rep}")
        a(f"v_lshrrev_b32 v{t3}, 3, v{t1}")
        a(f"s_cmp_ge_u32 s{sT4}, 64")
        a(f"s_cbranch_scc1 {L}_rem{rep}")
        a(f"s_sub_u32 s{sT0}, s{sT4}, 48")
        a(f"s_lshl_b32 s{sT0}, s{sT0}, 2")
        a(f"v_add_u32 v{t3}, s{sT0}, v{t3}")
        a(f"v_lshrrev_b32 v{t4}, 1, v{t3}")
        a(f"v_mul_u32_u24 v{t4}, 20, v{t4}")
        a(f"v_and_b32 v{t3}, 1, v{t3}")
        a(f"v_lshl_add_u32 v{t4}, v{t3}, 3, v{t4}")
        a(f"v_and_b32 v{t1}, 7, v{t1}")
        a(f"v_add_u32 v{t1}, v{t4}, v{t1}")
        a(f"s_branch {L}_go{rep}")
        a.label(f"{L}_rem{rep}")
        a(f"s_sub_u32 s{sT0}, s{sT4}, 64")
        a(f"s_lshl_b32 s{sT0}, s{sT0}, 2")
        a(f"v_add_u32 v{t3}, s{sT0}, v{t3}")
        a(f"v_bfe_u32 v{t4}, v{t1}, 2, 1")
        a(f"v_lshl_add_u32 v{t4}, v{t3}, 1, v{t4}")
        a(f"v_mul_u32_u24 v{t4}, 20, v{t4}")
        a(f"v_and_b32 v{t1}, 3, v{t1}")
        a(f"v_add3_u32 v{t1}, v{t4}, v{t1}, 16")
        a.label(f"{L}_go{rep}")
        a(f"v_mul_u32_u24 v{t1}, 1280, v{t1}")
        a(f"v_lshl_add_u32 v{vPP+rep}, v{t2}, 4, v{t1}")
    a(f"s_cmp_ge_u32 s{sT4}, 24")
    a(f"s_cselect_b32 s{sT0}, 10, 0")
    a(f"s_cmp_ge_u32 s{sT4}, 48")
    a(f"s_cselect_b32 s{sT0}, -24, s{sT0}")
    a(f"s_cmp_ge_u32 s{sT4}, 58")
    a(f"s_cselect_b32 s{sT0}, 0, s{sT0}")
    a(f"s_add_u32 s{sT4}, s{sT4}, s{sT0}")
    a(f"s_mul_i32 s{sT5}, s{sT5}, 136")
    a(f"s_add_u32 s{sT4}, s{sT4}, s{sT5}")
    a(f"v_lshrrev_b32 v{t1}, 4, v0")
    a(f"v_bfe_u32 v{t2}, v0, 2, 2")
    a(f"v_lshl_add_u32 v{t1}, v{t1}, 3, v{t2}")
    a(f"v_mul_u32_u24 v{t1}, 320, v{t1}")
    a(f"v_and_b32 v{t0}, 3, v0")
    for rep, sd in enumerate((sPD0, sPD1)):
        a(f"s_add_u32 s{sT0}, s{sWAVE}, {8*rep}")
        a(f"s_cmp_ge_u32 s{sT0}, 5")
        a(f"s_cselect_b32 s{sT1}, 1, 0")
        a(f"s_mul_i32 s{sT2}, s{sT1}, 5")
        a(f"s_sub_u32 s{sT0}, s{sT0}, s{sT2}")
        a(f"s_lshr_b32 s{sT2}, s{sT0}, 1")
        a(f"s_lshl_b32 s{sT2}, s{sT2}, 6")
        a(f"s_and_b32 s{sT5}, s{sT0}, 1")
        a(f"s_lshl_b32 s{sT5}, s{sT5}, 3")
        a(f"s_add_u32 s{sT2}, s{sT2}, s{sT5}")
        a(f"s_mul_i32 s{sT5}, s{sT1}, 160")
        a(f"s_add_u32 s{sT2}, s{sT2}, s{sT5}")
        a(f"s_add_u32 s{sT2}, s{sT2}, {base}")
        a(f"s_cmp_eq_u32 s{sT0}, 4")
        a(f"s_cselect_b32 s{sT5}, 3, 4")
        a(f"v_lshlrev_b32 v{t2}, s{sT5}, v{t0}")
        a(f"v_add3_u32 v{vPF+rep}, v{t2}, v{t1}, s{sT2}")
        a(f"s_mul_i32 s{sT1}, s{sT1}, 68")
        a(f"s_add_u32 s{sT1}, s{sT1}, s{sT4}")
        a(f"s_mul_i32 s{sT1}, s{sT1}, 5120")
        a(f"s_lshl_b32 s{sT0}, s{sT0}, 10")
        a(f"s_add_u32 s{sT1}, s{sT1}, s{sT0}")
        a(f"s_add_u32 s{sd}, s{sT1}, {WF_OFF}")

def lt2(a, body):
    L = a.newlabel("lt2")
    a(f"s_cmp_ge_u32 s{sWAVE}, 2")
    a(f"s_cbranch_scc1 {L}")
    body()
    a.label(L)

def pp_dma(a, base):
    a(f"s_lshl_b32 s{sT0}, s{sWAVE}, 10")
    a(f"s_add_u32 m0, s{sT0}, {base}")
    a("s_nop 0")
    a.vmem(f"buffer_load_dwordx4 v{vPP}, {srd(S_M2)}, s{sPPC} offen lds", "pp")
    def second():
        a(f"s_add_u32 m0, s{sT0}, {base + 8192}")
        a("s_nop 0")
        a.vmem(f"buffer_load_dwordx4 v{vPP+1}, {srd(S_M2)}, s{sPPC} offen lds", "pp", definite=False)
    lt2(a, second)

def pp_finish(a, tmp, l16):
    a(f"v_lshlrev_b32 v{l16}, 4, v0")
    def one(rep):
        a(f"ds_read_b64_tr_b16 {vr(tmp,2)}, v{vPF+rep}")
        a(f"ds_read_b64_tr_b16 {vr(tmp+2,2)}, v{vPF+rep} offset:1280")
        a.lg_all()
        a.vmem(f"buffer_store_dwordx4 {vr(tmp,4)}, v{l16}, {srd(S_WS)}, s{(sPD0, sPD1)[rep]} offen sc1", "st1", definite=(rep == 0))
    one(0)
    lt2(a, lambda: one(1))

GW_LDS = 151552
vGW = vTA
def gate_start(a):
    for rep in range(2):
        a(f"s_mov_b32 m0, {GW_LDS + rep*1280}")
        a(f"v_lshrrev_b32 v{vGW}, 4, v0")
        a.vmem(f"buffer_load_dwordx4 v36, {srd(S_M1)}, 0 offen lds", "gw")
        a.vmem(f"buffer_load_dword v37, {srd(S_M1)}, 0 offen offset:1024 lds", "gw")
    a(f"s_lshl_b32 s{sT0}, s{sROT}, 7")
    a(f"s_add_u32 s{sT0}, s{sT0}, {GW_LDS}")
    a(f"v_lshlrev_b32 v{vGW}, 4, v{vGW}")
    a(f"v_add_u32 v{vGW}, s{sT0}, v{vGW}")

def gate_finish(a):
    a.c("---- gate")
    acc = ACC
    a(f"s_mov_b32 vcc_lo, 0xffff0000")
    a(f"s_mov_b32 vcc_hi, 0")
    a("s_nop 4")
    a(f"v_cndmask_b32 v{acc}, v{ACC}, v{ACC+16}, vcc")
    a(f"v_cvt_pk_bf16_f32 v{acc}, v{acc}, v{acc}")
    a(f"v_and_b32 v{acc}, 0xffff0000, v{acc}")
    a(f"v_mul_f32 v{acc}, {f32hex(-math.log2(math.e))}, v{acc}")
    a(f"v_exp_f32 v{acc}, v{acc}")
    a("s_nop 0")
    a(f"v_add_f32 v{acc}, 1.0, v{acc}")
    a(f"v_rcp_f32 v{acc}, v{acc}")
    a("s_nop 0")
    a(f"v_cvt_pk_bf16_f32 v{acc}, v{acc}, v{acc}")
    a(f"v_and_b32 v76, 0xffff0000, v{acc}")
    a(f"s_and_b32 s{sT0}, s{sWAVE}, 3")
    a(f"s_lshl_b32 s{sT1}, s{sM}, 2")
    a(f"s_add_u32 s{sT0}, s{sT0}, s{sT1}")
    a(f"s_lshl_b32 s{sT0}, s{sT0}, 7")
    a(f"s_add_u32 s{sT0}, s{sT0}, {G_OFF}")
    a(f"v_lshlrev_b32 v77, 2, v0")
    a(f"s_mov_b32 exec_hi, 0")
    a.vmem(f"buffer_store_dword v76, v77, {srd(S_WS)}, s{sT0} offen sc1", "st1", definite=False)
    a("s_mov_b32 exec_hi, -1")

def p1_reads(s, mode):
    out = []
    buf = WF + (s % 2) * 16
    if s < 20:
        c, ks = s // 2, s % 2
        base = (c % 2) * 32768
        for b in range(2):
            out.append(("x", f"ds_read_b128 {vr(XR+(s*2+b)*4,4)}, v{vXA+ks} offset:{base + b*4096}"))
        if mode != "x":
            for T in range(4):
                for r2 in range(2):
                    out.append((T, f"ds_read_b64_tr_b16 {vr(buf+T*4+r2*2,2)}, v{vTA+T} offset:{base + 2048 + ks*16384 + r2*1024}"))
        else:
            out.append((0, f"ds_read_b128 {vr(buf,4)}, v{vGW} offset:{s*64}"))
    else:
        sf = s - 20
        c, ks = 10 + sf // 4, sf % 4
        base = (c % 2) * 32768
        for T in range(3):
            for r2 in range(2):
                out.append((T, f"ds_read_b64_tr_b16 {vr(buf+T*4+r2*2,2)}, v{vTB+T} offset:{base + ks*6144 + r2*1536}"))
    return out

def p1_mfma(s, T, b, mode):
    buf = WF + (s % 2) * 16
    d = vr(ACC + (b*4+T)*4, 4)
    w = vr(buf + T*4, 4); x = vr(XR + ((s % 20)*2+b)*4, 4)
    cin = "0" if s == 0 else d
    if mode == "v" and s < 20: return f"v_mfma_f32_16x16x32_bf16 {d}, {x}, {w}, {cin}"
    return f"v_mfma_f32_16x16x32_bf16 {d}, {w}, {x}, {cin}"

def p1_stage(a, s, mode, pre=None, post=None, budget=None):
    if s < 20: start = (s % 2 == 0); c = s // 2
    elif s < 40: start = ((s - 20) % 4 == 0); c = 10 + (s - 20) // 4
    else: start = False; c = None
    if start:
        emit_list(a, a.pend); a.pend = []
        if pre: pre()
        a.wait_vm(f"c{c}")
        a("s_barrier")
        if OPT["fine"] or c in (0, 1, 5, 10, 11, 14): a.stamp(f"p1 chunk{c}")
        if post and c == 0: a.pend += post()
        if c + 2 < 15: a.pend += p1_dma_list(c + 2, mode)
        if post and c: a.pend += post()
    rd = p1_reads(s, mode) if s < 40 else []
    nT = 0 if s == 0 else ((1 if mode == "x" else 4) if s - 1 < 20 else 3)
    if budget is None: budget = 2 if s <= 20 else 1
    xr = [r for g, r in rd if g == "x"]
    nxt = s + 1
    flip = (nxt < 20 and nxt % 4 == 0) or (20 < nxt < 40 and (nxt - 20) % 8 == 0)
    for r in xr: a.ds(r, f"r{s}x")
    if flip and s < 20:
        a(f"v_xor_b32 v{vXA}, 0x10000, v{vXA}")
        a(f"v_xor_b32 v{vXA+1}, 0x10000, v{vXA+1}")
    for T in range(4):
        if T < nT:
            a.wait_lg([f"r{s-1}x", f"r{s-1}t{T}"])
            a(p1_mfma(s-1, T, 0, mode))
        tr = [r for g, r in rd if g == T]
        for r in tr[:1]: a.ds(r, f"r{s}t{T}")
        if T < nT: a(p1_mfma(s-1, T, 1, mode))
        for r in tr[1:]: a.ds(r, f"r{s}t{T}")
        if flip and tr and mode != "x" and s < 20: a(f"v_xor_b32 v{vTA+T}, 0x10000, v{vTA+T}")
        if flip and tr and s >= 20: a(f"v_xor_b32 v{vTB+T}, 0x10000, v{vTB+T}")
        if T >= 1 and a.pend and budget:
            emit_list(a, take(a.pend)); budget -= 1

def qkv_pack(a, mode):
    for T in (0, 1, 3, 2):
        o = PK[T]
        if mode == "q":
            for b in range(2):
                for r in range(4):
                    x = ACC + (b*4+T)*4 + r
                    a(f"v_mul_f32 v{x}, s{sScale}, v{x}")
            for b in range(2):
                x = ACC + (b*4+T)*4
                a(f"v_cvt_pk_bf16_f32 v{o+2*b}, v{x}, v{x+1}")
                a(f"v_cvt_pk_bf16_f32 v{o+2*b+1}, v{x+2}, v{x+3}")
        else:
            for r in range(4):
                a(f"v_cvt_pk_bf16_f32 v{o+r}, v{ACC + T*4 + r}, v{ACC + (4+T)*4 + r}")
        if T in (0, 1) or not OPT["spread"]: a.vmem(f"buffer_store_dwordx4 {vr(o,4)}, v{vEA+T}, {srd(S_WS)}, s{sEPI} offen sc1", "stq", definite=False)

def late_store(a, T):
    L = a.newlabel("ls")
    a(f"s_cmp_eq_u32 s{sJ}, 15")
    a(f"s_cbranch_scc1 {L}")
    a.vmem(f"buffer_store_dwordx4 {vr(PK[T],4)}, v{vEA+T}, {srd(S_WS)}, s{sEPI} offen sc1", "stq", definite=False)
    a.label(L)

def ffn1_init(a):
    a.wait_vm("b1")
    for T in range(3):
        for r in range(4):
            src = vB1 + 2*T + r//2
            d0 = ACC + T*4 + r; d1 = ACC + (4+T)*4 + r
            if r % 2 == 0: a(f"v_lshlrev_b32 v{d0}, 16, v{src}")
            else: a(f"v_and_b32 v{d0}, 0xffff0000, v{src}")
            a(f"v_mov_b32 v{d1}, v{d0}")

def ffn1_epilogue(a):
    a.c("---- FFN1 epilogue")
    t0, t1 = HS + 12, HS + 13
    a(f"s_and_b32 s{sT0}, s{sWAVE}, 3")
    a(f"s_lshl_b32 s{sT0}, s{sT0}, 1")
    a(f"s_lshl_b32 s{sT1}, s{sM}, 3")
    a(f"s_add_u32 s{sT0}, s{sT0}, s{sT1}")
    a(f"s_mul_i32 s{sT0}, s{sT0}, {AF_T}")
    a(f"s_lshr_b32 s{sT1}, s{sWAVE}, 2")
    a(f"s_mul_i32 s{sT1}, s{sT1}, 1536")
    a(f"s_mul_i32 s{sT2}, s{sJ}, 3072")
    a(f"s_add_u32 s{sT0}, s{sT0}, s{sT1}")
    a(f"s_add_u32 s{sT0}, s{sT0}, s{sT2}")
    a(f"s_cmp_ge_u32 s{sJ}, 8")
    a(f"s_cselect_b32 s{sT1}, 10240, 0")
    a(f"s_add_u32 s{sT0}, s{sT0}, s{sT1}")
    a(f"s_add_u32 s{sEPI}, s{sT0}, {AF_OFF}")
    a(f"v_bfe_u32 v{t0}, v0, 4, 1")
    a(f"v_mul_u32_u24 v{t0}, {AF_T}, v{t0}")
    a(f"v_lshrrev_b32 v{t1}, 5, v0")
    a(f"v_lshl_add_u32 v{t0}, v{t1}, 8, v{t0}")
    a(f"v_and_b32 v{t1}, 15, v0")
    a(f"v_lshl_add_u32 v{t0}, v{t1}, 4, v{t0}")
    for T in range(3):
        o = HS + T*4
        for b in range(2):
            for r in range(4):
                x = ACC + (b*4+T)*4 + r
                a(f"v_max_f32 v{x}, 0, v{x}")
        for b in range(2):
            for r in range(4):
                x = ACC + (b*4+T)*4 + r
                a(f"v_mul_f32 v{x}, v{x}, v{x}")
        for b in range(2):
            x = ACC + (b*4+T)*4
            a(f"v_cvt_pk_bf16_f32 v{o+2*b}, v{x}, v{x+1}")
            a(f"v_cvt_pk_bf16_f32 v{o+2*b+1}, v{x+2}, v{x+3}")
        a("s_nop 1")
        a(f"v_permlane16_swap_b32 v{o}, v{o+2}")
        a(f"v_permlane16_swap_b32 v{o+1}, v{o+3}")
        if not OPT["hlate"]: emit_list(a, h_store(T))

HS = 200
def h_store(T):
    return [("v", f"buffer_store_dwordx4 {vr(HS+4*T,4)}, v{HS+12}, {srd(S_WS)}, s{sEPI} offen offset:{512*T} sc1", "st1")]

def phase1(a):
    a.stamp("start")
    a.pend = []
    rot_setup(a)
    emit_list(a, p1_dma_list(0))
    pf_setup(a)
    flags_clear(a, 38)
    p1_setup2(a)
    if not OPT["c1late"]: emit_list(a, p1_dma_list(1))
    a.stamp("setup done")
    LV = a.newlabel("vpass"); LX = a.newlabel("xpass"); LJ = a.newlabel("join")
    a(f"s_cmp_eq_u32 s{sJ}, 15")
    a(f"s_cbranch_scc1 {LX}")
    a(f"s_cmp_ge_u32 s{sJ}, 10")
    a(f"s_cbranch_scc1 {LV}")
    save = (list(a.vm), list(a.lg), a.nstamp, len(a.stampnames))
    ends = []
    for mode, lab in (("q", None), ("v", LV), ("x", LX)):
        a.vm, a.lg, a.nstamp = list(save[0]), list(save[1]), save[2]; del a.stampnames[save[3]:]
        if lab: a.label(lab)
        if mode == "x": gate_start(a)
        for s in range(21):
            pre = post = None
            if s == 0:
                if mode == "x": pre = lambda: a.wait_vm("gw")
                post = lambda: (p1_dma_list(1, mode) if OPT["c1late"] else [])
            if s == 2: post = lambda: [("f", lambda: flags_count_in(a, 28))] + ([("f", lambda: pf_x(a, 4, 3, 252))] if OPT["pf"] else [])
            if s == 4 and OPT["pf"]: post = lambda: [("f", lambda: pf_w(a, 5, 4, 253)), ("f", lambda: pf_x(a, 7, 3, 252))]
            if s == 2 * OPT["pf2"]: post = pf_w1
            if s == 12: post = lambda: [("f", lambda: poll(a, "init", 28, 30, "issue"))]
            if s == 18: pre = lambda: poll(a, "init", 28, 30, "check")
            p1_stage(a, s, mode, pre=pre, post=post, budget=(3 if s < 8 else None))
            if s == 0:
                for _ in range(3):
                    if a.pend: emit_list(a, take(a.pend))
            if s == 8 and mode != "x": epi_setup(a, mode)
        emit_list(a, a.pend); a.pend = []
        a("s_nop 5")
        if mode != "x":
            qkv_pack(a, mode)
            a(f"s_branch {LJ}")
        else:
            gate_finish(a)
        ends.append((list(a.vm), list(a.lg)))
    a.label(LJ)
    common = set.intersection(*[set(t for t, d in e[0] if d) for e in ends])
    a.vm = [(t, d if t in common else False) for t, d in ends[0][0]] + [("st1", False)]
    a.lg = list(ends[0][1])
    assert ends[2][1] == a.lg and ends[1][1] == a.lg, (ends[2][1], a.lg)
    a.stamp("p1 qkv done")
    a("s_nop 1")
    ffn1_init(a)
    sA = 20 + 4 * (OPT["abar"] - 10)
    for s in range(21, 41):
        pre = post = None
        if OPT["spread"] and s in (21, 22): a.pend.insert(0, ("f", (lambda T: lambda: late_store(a, T))(3 if s == 21 else 2)))
        if s == sA:
            pre = lambda: wait_st(a, "stq")
            post = lambda: [("f", lambda: flag_set(a, 0, 92))]
        if s == OPT["apoll"]: a.pend.append(("f", lambda: poll(a, "A", 28, 92, "issue")))
        if s == 40:
            emit_list(a, a.pend); a.pend = []
            att_setup(a)
            poll(a, "A", 28, 92, "check")
            a("s_barrier")
            a.stamp("p1 A seen")
            att_dma(a, 0)
            att_qload(a)
            att_dma(a, 1)
        p1_stage(a, s, "q", pre, post, budget=2)
    a("s_nop 7")
    a.stamp("p1 ffn1 mfma done")
    ffn1_epilogue(a)
    a.stamp("p1 end")

def second_unit(a, part):
    L = a.newlabel("su")
    a(f"s_cmp_lg_u32 s{sJ}, 15")
    a(f"s_cbranch_scc1 {L}")
    st = list(a.vm); lg = list(a.lg)
    if part == 0:
        a(f"s_add_u32 s{sT3}, s{sM}, 256")
        pp_setup(a, PP_LDS + 10240, (232, 233, 234, 235, 236))
        pp_dma(a, PP_LDS + 10240)
        a.vm = st + [("pp2", False), ("pp2", False)]
    else:
        pp_finish(a, 244, 248)
        a.vm = st + [("st1", False), ("st1", False)]
    a.lg = lg
    a.label(L)

SA, SB, OA, OB, PB, VB, KB, QA, QB = 8, 24, 40, 56, 72, 80, 96, 108, 114
vKA, vKB, vVA, vD4, vD1, vAT0, vAT1 = 1, 2, 3, 4, 5, 6, 7
vVB = vAT1
KVL = 0
KVR = 3
KV_C = 4 * KV_T
XCH = 12288

def att_dma_list(c):
    slot = KVL + (c % KVR) * 4 * KV_L
    return [("s", f"s_add_u32 m0, s{sKVM}, {slot}"),
            ("s", f"s_add_u32 s{sT0}, s{sKVG}, {c*KV_C}"),
            ("v", f"buffer_load_dwordx4 v{vD4}, {srd(S_WS)}, s{sT0} offen sc1 lds", f"kv{c}"),
            ("v", f"buffer_load_dword v{vD1}, {srd(S_WS)}, s{sT0} offen offset:1024 sc1 lds", f"kv{c}")]
def att_dma(a, c): emit_list(a, att_dma_list(c))

def att_setup(a):
    a.c("---- attention setup")
    a(f"s_lshl_b32 s{sH}, s{sXCD}, 2")
    a(f"s_add_u32 s{sH}, s{sH}, s{sHI}")
    a(f"s_mov_b32 s{sQB}, s{sLO}")
    a(f"s_lshr_b32 s{sKVM}, s{sWAVE}, 1")
    a(f"s_lshl_b32 s{sKVM}, s{sKVM}, 9")
    a(f"s_mul_i32 s{sT0}, s{sWAVE}, 1280")
    a(f"s_add_u32 s{sKVM}, s{sKVM}, s{sT0}")
    a(f"s_mul_i32 s{sKVG}, s{sH}, {KV_H}")
    a(f"s_add_u32 s{sKVG}, s{sKVG}, s{sT0}")
    a(f"s_add_u32 s{sKVG}, s{sKVG}, {KV_OFF}")
    a(f"s_lshr_b32 s{sKH}, s{sWAVE}, 2")
    a(f"v_lshlrev_b32 v{vD4}, 4, v0")
    a(f"v_lshlrev_b32 v{vD1}, 2, v0")
    a(f"s_mov_b32 s{sEXV}, 0x000fffff")
    a(f"s_mov_b32 s{sEXV+1}, 0x000fffff")

QL = 40960
def att_qload(a):
    a(f"s_lshl_b32 s{sT1}, s{sQB}, 3")
    a(f"s_add_u32 s{sT1}, s{sT1}, s{sWAVE}")
    a(f"s_mul_i32 s{sT1}, s{sT1}, 1280")
    a(f"s_mul_i32 s{sT3}, s{sH}, 81920")
    a(f"s_add_u32 s{sT1}, s{sT1}, s{sT3}")
    a(f"s_mul_i32 s{sT0}, s{sWAVE}, 1280")
    a(f"s_add_u32 m0, s{sT0}, {QL}")
    if QF_OFF: a(f"s_add_u32 s{sT1}, s{sT1}, {QF_OFF}")
    a("s_nop 0")
    a.vmem(f"buffer_load_dwordx4 v{vD4}, {srd(S_WS)}, s{sT1} offen sc1 lds", "kv0")
    a.vmem(f"buffer_load_dword v{vD1}, {srd(S_WS)}, s{sT1} offen offset:1024 sc1 lds", "kv0")

def att_qread(a):
    t0, t1 = SA, SA + 1
    a(f"v_and_b32 v{t0}, 9, v0")
    a(f"v_bfe_u32 v{t1}, v0, 1, 1")
    a(f"v_lshl_add_u32 v{t0}, v{t1}, 2, v{t0}")
    a(f"v_bfe_u32 v{t1}, v0, 2, 1")
    a(f"v_lshl_add_u32 v{t0}, v{t1}, 1, v{t0}")
    a(f"v_lshlrev_b32 v{t0}, 4, v{t0}")
    a(f"v_bfe_u32 v{t1}, v0, 4, 1")
    a(f"v_lshl_add_u32 v{t0}, v{t1}, 3, v{t0}")
    a(f"v_lshrrev_b32 v{t1}, 5, v0")
    a(f"v_lshl_add_u32 v{t1}, v{t1}, 8, v{t0}")
    a(f"s_and_b32 s{sT0}, s{sWAVE}, 3")
    a(f"s_lshl_b32 s{sT0}, s{sT0}, 1")
    a(f"s_add_u32 s{sT1}, s{sT0}, s{sKH}")
    a(f"s_xor_b32 s{sT2}, s{sT1}, 1")
    a(f"s_mul_i32 s{sT1}, s{sT1}, 1280")
    a(f"s_mul_i32 s{sT2}, s{sT2}, 1280")
    a(f"v_add_u32 v{SA+2}, s{sT1}, v{t0}")
    a(f"v_add_u32 v{SA+3}, s{sT1}, v{t1}")
    a(f"v_add_u32 v{SA+4}, s{sT2}, v{t0}")
    a(f"v_add_u32 v{SA+5}, s{sT2}, v{t1}")
def q_reads():
    out = []
    for k, Q in ((0, QA), (1, QB)):
        out += [("d", f"ds_read2st64_b64 {vr(Q,4)}, v{SA+3+2*k} offset0:{QL//512} offset1:{QL//512+1}", "q"),
                ("d", f"ds_read_b64 {vr(Q+4,2)}, v{SA+2+2*k} offset:{QL+1024}", "q")]
    return out

def att_setup2(a):
    a(f"s_mul_i32 s{sT0}, s{sKH}, {2*KV_L}")
    if KVL: a(f"s_add_u32 s{sT0}, s{sT0}, {KVL}")
    a(f"v_and_b32 v{vKB}, 31, v0")
    a(f"v_lshrrev_b32 v{vKA}, 5, v0")
    a(f"v_mul_u32_u24 v{PB}, 320, v{vKA}")
    a(f"v_lshl_add_u32 v{vVA}, v{vKB}, 4, v{PB}")
    a(f"v_add_u32 v{vVB}, 640, v{vVA}")
    a(f"v_cmp_gt_u32 vcc, 20, v{vKB}")
    a(f"v_mov_b32 v{PB}, 1280")
    a(f"v_lshlrev_b32 v{vKB}, 3, v{vKB}")
    a(f"v_cndmask_b32 v{vVA}, v{PB}, v{vVA}, vcc")
    a(f"v_cndmask_b32 v{vVB}, v{PB}, v{vVB}, vcc")
    a(f"v_add_u32 v{vVA}, s{sT0}, v{vVA}")
    a(f"v_add_u32 v{vVB}, s{sT0}, v{vVB}")
    a(f"v_add_u32 v{vKB}, s{sT0}, v{vKB}")
    a(f"v_lshl_add_u32 v{vKA}, v{vKA}, 8, v{vKB}")
    for r in range(4): a(f"v_mov_b32 v{PB+4+r}, 0x3f803f80")
    a(f"v_min_u32 v{PB}, 11, v0")
    a(f"v_mul_u32_u24 v{PB}, {KV_L}, v{PB}")
    a.ds(f"ds_write_b128 v{PB}, {vr(PB+4,4)} offset:{KVL+2560}", "ones")
    for r in range(16):
        a(f"v_mov_b32 v{OA+r}, 0")
        a(f"v_mov_b32 v{OB+r}, 0")

def k_reads(t):
    c, e = t >> 1, t & 1
    tp = (c % KVR) * 4 + e
    kb = KB + (t % 2) * 6
    return [("d", f"ds_read2st64_b64 {vr(kb,4)}, v{vKA} offset0:{6*tp} offset1:{6*tp+1}", f"k{t}"),
            ("d", f"ds_read_b64 {vr(kb+4,2)}, v{vKB} offset:{tp*KV_L+1024}", f"k{t}")]
def v_reads(t):
    c, e = t >> 1, t & 1
    tp = (c % KVR) * 4 + e
    vb = VB + (t % 2) * 8
    return [("d", f"ds_read_b128 {vr(vb+4*kk,4)}, v{(vVA, vVB)[kk]} offset:{tp*KV_L+1280}", f"v{t}") for kk in range(2)]
def qk8(t, S, Q):
    kb = KB + (t % 2) * 6
    return f"v_mfma_f32_32x32x8_bf16 {vr(S,16)}, {vr(kb+4,2)}, {vr(Q+4,2)}, 0"
def qk16(t, S, Q):
    kb = KB + (t % 2) * 6
    return f"v_mfma_f32_32x32x16_bf16 {vr(S,16)}, {vr(kb,4)}, {vr(Q,4)}, {vr(S,16)}"
def pv(t, O, kk, pbuf):
    vb = VB + (t % 2) * 8 + 4 * kk
    return f"v_mfma_f32_32x32x16_bf16 {vr(O,16)}, {vr(vb,4)}, {vr(PB+4*pbuf,4)}, {vr(O,16)}"

def att_group(a, S, pbuf, m1, m2, s1, s2):
    p = PB + 4 * pbuf
    if m1: a(m1)
    emit_list(a, s1)
    for r in range(4): a(f"v_exp_f32 v{S+r}, v{S+r}")
    a(f"v_cvt_pk_bf16_f32 v{p}, v{S}, v{S+1}")
    a(f"v_cvt_pk_bf16_f32 v{p+1}, v{S+2}, v{S+3}")
    if m2: a(m2)
    emit_list(a, s2)
    for r in range(4, 8): a(f"v_exp_f32 v{S+r}, v{S+r}")
    a(f"v_cvt_pk_bf16_f32 v{p+2}, v{S+4}, v{S+5}")
    a(f"v_cvt_pk_bf16_f32 v{p+3}, v{S+6}, v{S+7}")

def attention_main(a, extra=None, pre=None):
    NT = 32
    def bar(c):
        def f():
            if pre: pre(c)
            a.wait_vm(f"kv{c}", lg0=True)
            a("s_barrier")
            if c in (0, 1, 15) or OPT["fine"]: a.stamp(f"att chunk{c}")
        return ("f", f)
    att_qread(a)
    emit_list(a, [bar(0)])
    emit_list(a, q_reads() + k_reads(0) + v_reads(0) + k_reads(1))
    pp_dma(a, PP_LDS)
    att_dma(a, 2)
    a.wait_lg("q")
    a("s_mov_b32 exec_lo, 0")
    for Q in (QA, QB):
        a(f"v_mov_b32 v{Q+4}, 0")
        a(f"v_mov_b32 v{Q+5}, 0")
    a("s_mov_b32 exec_lo, -1")
    a.wait_lg("k0")
    a("s_nop 0")
    a(qk8(0, SA, QA))
    a("s_nop 9")
    a(qk16(0, SA, QA))
    a("s_nop 11")
    pend = []
    for t in range(NT):
        sl = {k: [] for k in ("g0", "a", "b", "c", "g2", "d", "e", "f")}
        if t + 1 < NT:
            vv = v_reads(t + 1)
            sl["a"].append(vv[0]); sl["c"].append(vv[1])
        sl["b"].append(("f", (lambda tt: lambda: a.wait_lg([f"v{tt}", f"k{tt+1}"]))(t)))
        if t + 2 < NT:
            kk = k_reads(t + 2)
            if t % 2 == 0:
                c = t // 2 + 1
                sl["e"].append(bar(c))
                if extra and c == 2: pend += extra(c)
                if c + 2 < 16: pend += att_dma_list(c + 2)
                if extra and c != 2: pend += extra(c)
            sl["e"].append(kk[0]); sl["f"].append(kk[1])
        if OPT["prio"]:
            if t % 2 == 1:
                sl["g0"].append(("s", "s_setprio 3")); sl["g2"].append(("s", "s_setprio 2"))
            else:
                sl["g0"].append(("s", "s_setprio 1")); sl["g2"].append(("s", "s_setprio 0"))
        order = ["f"] if t % 2 == 0 else ["g0", "a", "b", "c", "g2", "d", "e", "f"]
        while pend and order:
            k = order.pop(0)
            nops = sum(1 for it in pend if it[0] != "s")
            sl[k] += take(pend)
            if t % 2 == 1 and nops > len(order) + 1 and pend: sl[k] += take(pend)
        assert not (t % 2 == 1 and pend), pend
        last = (t == NT - 1)
        att_group(a, SA, 0, qk8(t, SB, QB), pv(t-1, OB, 1, 1) if t > 0 else None, sl["g0"], sl["a"])
        att_group(a, SA+8, 1, qk16(t, SB, QB), pv(t, OA, 0, 0), sl["b"], sl["c"])
        att_group(a, SB, 0, None if last else qk8(t+1, SA, QA), pv(t, OA, 1, 1), sl["g2"], sl["d"])
        att_group(a, SB+8, 1, None if last else qk16(t+1, SA, QA), pv(t, OB, 0, 0), sl["e"], sl["f"])
    a("s_nop 1")
    a(pv(NT-1, OB, 1, 1))
    if OPT["prio"]: a("s_setprio 0")

def att_finish_store(a):
    r = SB
    a(f"v_rcp_f32 v{r}, v{OA+12}")
    a("s_nop 0")
    for i in range(12): a(f"v_mul_f32 v{OA+i}, v{r}, v{OA+i}")
    for i in range(6): a(f"v_cvt_pk_bf16_f32 v{SA+i}, v{OA+2*i}, v{OA+2*i+1}")
    a.vmem(f"buffer_store_dwordx4 {vr(SA,4)}, v{vAT0}, {srd(S_WS)}, s{sT4} offen sc1", "sto")
    a("s_mov_b32 exec_hi, 0")
    a.vmem(f"buffer_store_dwordx2 {vr(SA+4,2)}, v{vAT1}, {srd(S_WS)}, s{sT5} offen sc1", "sto")
    a("s_mov_b32 exec_hi, -1")

def att_epilogue(a):
    a.c("---- attention epilogue")
    t0, t1 = vAT0, vAT1
    a(f"s_mul_i32 s{sT0}, s{sWAVE}, 3328")
    a(f"s_add_u32 s{sT0}, s{sT0}, {XCH}")
    a(f"v_add_u32 v{t0}, s{sT0}, v{vD4}")
    a(f"v_lshlrev_b32 v{PB}, 2, v0")
    a(f"v_add_u32 v{PB+1}, s{sT0}, v{PB}")
    a(f"s_xor_b32 s{sT1}, s{sWAVE}, 4")
    a(f"s_mul_i32 s{sT1}, s{sT1}, 3328")
    a(f"s_add_u32 s{sT1}, s{sT1}, {XCH}")
    a(f"v_add_u32 v{t1}, s{sT1}, v{vD4}")
    a(f"v_add_u32 v{PB+2}, s{sT1}, v{PB}")
    a("s_nop 3")
    for i in range(3): a.ds(f"ds_write_b128 v{t0}, {vr(OB+4*i,4)} offset:{1024*i}", "x")
    a.ds(f"ds_write_b32 v{PB+1}, v{OB+12} offset:3072", "x")
    a.lg_all()
    a("s_barrier")
    for i in range(3): a.ds(f"ds_read_b128 {vr(SA+4*i,4)}, v{t1} offset:{1024*i}", "x")
    a.ds(f"ds_read_b32 v{SA+12}, v{PB+2} offset:3072", "x")
    a(f"s_and_b32 s{sT0}, s{sWAVE}, 3")
    a(f"s_lshl_b32 s{sT0}, s{sT0}, 1")
    a(f"s_lshl_b32 s{sT1}, s{sQB}, 3")
    a(f"s_add_u32 s{sT0}, s{sT0}, s{sT1}")
    a(f"s_add_u32 s{sT0}, s{sT0}, s{sKH}")
    a(f"s_mul_i32 s{sT0}, s{sT0}, {2*AF_T}")
    a(f"s_add_u32 s{sT0}, s{sT0}, {AF_OFF}")
    a(f"s_lshl_b32 s{sT4}, s{sH}, 9")
    a(f"s_add_u32 s{sT4}, s{sT4}, s{sT0}")
    a(f"s_cmp_ge_u32 s{sH}, 20")
    a(f"s_cselect_b32 s{sT1}, 24576, 0")
    a(f"s_add_u32 s{sT4}, s{sT4}, s{sT1}")
    a(f"s_add_u32 s{sT4}, s{sT4}, {24*1024}")
    a(f"s_lshr_b32 s{sT5}, s{sH}, 1")
    a(f"s_lshl_b32 s{sT5}, s{sT5}, 8")
    a(f"s_and_b32 s{sT1}, s{sH}, 1")
    a(f"s_lshl_b32 s{sT1}, s{sT1}, 3")
    a(f"s_add_u32 s{sT5}, s{sT5}, s{sT1}")
    a(f"s_add_u32 s{sT5}, s{sT5}, s{sT0}")
    a(f"s_add_u32 s{sT5}, s{sT5}, {64*1024}")
    a(f"v_bfe_u32 v{t1}, v0, 4, 1")
    a(f"v_mul_u32_u24 v{t1}, {AF_T}, v{t1}")
    a(f"v_and_b32 v{t0}, 15, v0")
    a(f"v_lshl_add_u32 v{t1}, v{t0}, 4, v{t1}")
    a(f"v_lshrrev_b32 v{t0}, 5, v0")
    a(f"v_lshl_add_u32 v{t0}, v{t0}, 8, v{t1}")
    a.lg_all()
    for i in range(13): a(f"v_add_f32 v{OA+i}, v{OA+i}, v{SA+i}")
    chk = SB + 1
    a(f"v_mul_f32 v{chk}, 0, v{OA}")
    for i in range(1, 12): a(f"v_fma_f32 v{chk}, v{OA+i}, 0, v{chk}")
    a(f"v_add_f32 v{chk}, v{chk}, v{OA+12}")
    a(f"s_mov_b32 s{sT0}, {f32hex(2.0**40)}")
    a(f"v_cmp_le_f32 vcc, {f32hex(2.0**-24)}, v{chk}")
    a(f"v_cmp_ge_f32 s[{sSAVE}:{sSAVE+1}], s{sT0}, v{chk}")
    a("s_nop 1")
    a(f"s_and_b64 vcc, vcc, s[{sSAVE}:{sSAVE+1}]")
    a(f"s_cmp_eq_u64 vcc, -1")
    LF = a.newlabel("fast")
    a(f"s_cbranch_scc1 {LF}")
    att_fallback(a)
    a.label(LF)
    att_finish_store(a)

def att_fallback(a):
    a.c("---- fallback: exact row max, then shifted exponentials")
    NEG = OB; mx = PB + 7
    kb = KB; vb = VB
    save = (list(a.vm), list(a.lg))
    a.vm_all()
    for r in range(8): a(f"v_mov_b32 v{VB+r}, 0x3f803f80")
    a(f"s_mul_i32 s{sT0}, s{sKH}, {2*KV_L}")
    if KVL: a(f"s_add_u32 s{sT0}, s{sT0}, {KVL}")
    a(f"v_subrev_u32 v{vKA}, s{sT0}, v{vKA}")
    a(f"v_subrev_u32 v{vKB}, s{sT0}, v{vKB}")
    a(f"v_subrev_u32 v{vVA}, s{sT0}, v{vVA}")
    a(f"s_mul_i32 s{sT2}, s{sH}, {KV_H}")
    a(f"s_add_u32 s{sT2}, s{sT2}, {KV_OFF}")
    a(f"v_mov_b32 v{mx}, 0xff800000")
    L1 = a.newlabel("fb1"); L2 = a.newlabel("fb2")
    a(f"s_mov_b32 s{sT1}, 0")
    a.label(L1)
    a(f"s_add_u32 s{sT0}, s{sT2}, s{sT1}")
    a(f"buffer_load_dwordx2 {vr(kb,2)}, v{vKA}, {srd(S_WS)}, s{sT0} offen sc1")
    a(f"buffer_load_dwordx2 {vr(kb+2,2)}, v{vKA}, {srd(S_WS)}, s{sT0} offen offset:512 sc1")
    a(f"buffer_load_dwordx2 {vr(kb+4,2)}, v{vKB}, {srd(S_WS)}, s{sT0} offen offset:1024 sc1")
    a("s_waitcnt vmcnt(0)")
    a(qk8(0, SA, QA))
    a("s_nop 9")
    a(qk16(0, SA, QA))
    a("s_nop 11")
    for i in range(8): a(f"v_max3_f32 v{mx}, v{mx}, v{SA+2*i}, v{SA+2*i+1}")
    a(f"s_add_u32 s{sT1}, s{sT1}, {KV_T}")
    a(f"s_cmp_lt_u32 s{sT1}, {KV_H}")
    a(f"s_cbranch_scc1 {L1}")
    a(f"v_mov_b32 v{mx-1}, v{mx}")
    a("s_nop 1")
    a(f"v_permlane32_swap_b32 v{mx}, v{mx-1}")
    a("s_nop 1")
    a(f"v_max_f32 v{mx}, v{mx}, v{mx-1}")
    for i in range(16):
        a(f"v_sub_f32 v{NEG+i}, 0, v{mx}")
        a(f"v_mov_b32 v{OA+i}, 0")
    a(f"s_mov_b32 s{sT1}, 0")
    a.label(L2)
    a(f"s_add_u32 s{sT0}, s{sT2}, s{sT1}")
    a(f"buffer_load_dwordx2 {vr(kb,2)}, v{vKA}, {srd(S_WS)}, s{sT0} offen sc1")
    a(f"buffer_load_dwordx2 {vr(kb+2,2)}, v{vKA}, {srd(S_WS)}, s{sT0} offen offset:512 sc1")
    a(f"buffer_load_dwordx2 {vr(kb+4,2)}, v{vKB}, {srd(S_WS)}, s{sT0} offen offset:1024 sc1")
    a(f"s_mov_b64 exec, s[{sEXV}:{sEXV+1}]")
    a(f"buffer_load_dwordx4 {vr(vb,4)}, v{vVA}, {srd(S_WS)}, s{sT0} offen offset:1280 sc1")
    a(f"buffer_load_dwordx4 {vr(vb+4,4)}, v{vVA}, {srd(S_WS)}, s{sT0} offen offset:1920 sc1")
    a("s_mov_b64 exec, -1")
    a("s_waitcnt vmcnt(0)")
    a(f"v_mfma_f32_32x32x8_bf16 {vr(SA,16)}, {vr(kb+4,2)}, {vr(QA+4,2)}, {vr(NEG,16)}")
    a("s_nop 9")
    a(qk16(0, SA, QA))
    a("s_nop 11")
    for i in range(16): a(f"v_exp_f32 v{SA+i}, v{SA+i}")
    a("s_nop 0")
    for i in range(8): a(f"v_cvt_pk_bf16_f32 v{PB+i}, v{SA+2*i}, v{SA+2*i+1}")
    a("s_nop 1")
    a(pv(0, OA, 0, 0))
    a(pv(0, OA, 1, 1))
    a(f"s_add_u32 s{sT1}, s{sT1}, {KV_T}")
    a(f"s_cmp_lt_u32 s{sT1}, {KV_H}")
    a(f"s_cbranch_scc1 {L2}")
    a("s_nop 11")
    a.vm, a.lg = save

AC1, AC2, TW = 8, 28, 48
vWL, vWH, vG, vTT0, vTT1 = 1, 2, 3, 6, 7
vB2 = 88
TSLOT = [40960, 81920, 122880, 0]
NS = 34
def HR(s): return 120 + 4*s

def tail_setup(a):
    a.c("---- tail setup")
    a(f"s_lshr_b32 s{sRB}, s{sXCD}, 1")
    a(f"s_lshl_b32 s{sRB}, s{sRB}, 3")
    a(f"s_add_u32 s{sRB}, s{sRB}, s{sLO}")
    a(f"s_and_b32 s{sCG}, s{sXCD}, 1")
    a(f"s_lshl_b32 s{sCG}, s{sCG}, 2")
    a(f"s_add_u32 s{sCG}, s{sCG}, s{sHI}")
    a(f"s_lshr_b32 s{sKH}, s{sWAVE}, 2")
    a(f"s_and_b32 s{sT0}, s{sWAVE}, 3")
    a(f"s_mul_i32 s{sWG}, s{sCG}, 68")
    a(f"s_mul_i32 s{sT1}, s{sKH}, {NS}")
    a(f"s_add_u32 s{sWG}, s{sWG}, s{sT1}")
    a(f"s_add_u32 s{sWG}, s{sWG}, s{sT0}")
    a(f"s_mul_i32 s{sWG}, s{sWG}, 5120")
    a(f"s_add_u32 s{sWG}, s{sWG}, {WF_OFF}")
    a(f"s_lshl_b32 s{sAG}, s{sRB}, 2")
    a(f"s_add_u32 s{sAG}, s{sAG}, s{sT0}")
    a(f"s_mul_i32 s{sAG}, s{sAG}, {AF_T}")
    a(f"s_lshl_b32 s{sT1}, s{sT1}, 10")
    a(f"s_add_u32 s{sAG}, s{sAG}, s{sT1}")
    a(f"s_add_u32 s{sAG}, s{sAG}, {AF_OFF}")
    a(f"s_mul_i32 s{sTWM}, s{sWAVE}, 5120")

def tail_dma_list(u, sreg=None):
    sr = sreg if sreg is not None else sT0
    d = (u != 8)
    out = [("s", f"s_add_u32 m0, s{sTWM}, {TSLOT[u%4]}"), ("s", f"s_add_u32 s{sr}, s{sWG}, {u*20480}")]
    for e in range(4):
        off = f" offset:{e*1024}" if e else ""
        out.append(("v", f"buffer_load_dwordx4 v{vD4}, {srd(S_WS)}, s{sr} offen{off} sc1 lds", f"w{u}", d))
    out += [("s", f"s_add_u32 m0, s{sTWM}, {TSLOT[u%4]+4096}"), ("s", f"s_add_u32 s{sr}, s{sWG}, {u*20480+4096}")]
    out.append(("v", f"buffer_load_dwordx4 v{vD4}, {srd(S_WS)}, s{sr} offen sc1 lds", f"w{u}", d))
    return out
def tail_dma(a, u):
    L = None
    if u == 8:
        L = a.newlabel("nod")
        a(f"s_bitcmp1_b32 s{sWAVE}, 1")
        a(f"s_cbranch_scc1 {L}")
    emit_list(a, tail_dma_list(u))
    if L: a.label(L)

def tail_aload_list(s0, n, sreg=None):
    sr = sreg if sreg is not None else sT0
    out = [("s", f"s_add_u32 s{sr}, s{sAG}, {(s0//4)*4096}")]
    for s in range(s0, s0+n):
        assert s // 4 == s0 // 4
        off = f" offset:{(s%4)*1024}" if s % 4 else ""
        out.append(("v", f"buffer_load_dwordx4 {vr(HR(s),4)}, v{vD4}, {srd(S_WS)}, s{sr} offen{off} sc1", f"a{s}"))
    return out

def tail_small_loads(a):
    mk_srd(a, S_M1, P_B2, 1280)
    a(f"v_lshrrev_b32 v{vTT0}, 4, v0")
    a(f"v_lshlrev_b32 v{vTT1}, 3, v{vTT0}")
    a(f"v_lshlrev_b32 v{vTT0}, 4, v{vTT0}")
    a(f"s_mul_i32 s{sT0}, s{sCG}, 160")
    a.vmem(f"buffer_load_dwordx4 {vr(vB2,4)}, v{vTT0}, {srd(S_M1)}, s{sT0} offen", "b2")
    a.vmem(f"buffer_load_dwordx4 {vr(vB2+4,4)}, v{vTT0}, {srd(S_M1)}, s{sT0} offen offset:64", "b2")
    a.vmem(f"buffer_load_dwordx2 {vr(vB2+8,2)}, v{vTT1}, {srd(S_M1)}, s{sT0} offen offset:128", "b2")
    a(f"s_and_b32 s{sT0}, s{sWAVE}, 3")
    a(f"s_lshl_b32 s{sT1}, s{sRB}, 2")
    a(f"s_add_u32 s{sT0}, s{sT0}, s{sT1}")
    a(f"s_lshl_b32 s{sT0}, s{sT0}, 6")
    a(f"s_add_u32 s{sT0}, s{sT0}, {G_OFF}")
    a(f"v_and_b32 v{vG}, 15, v0")
    a(f"v_lshlrev_b32 v{vG}, 2, v{vG}")
    a.vmem(f"buffer_load_dword v{vG}, v{vG}, {srd(S_WS)}, s{sT0} offen sc1", "g")

def tail_reads(s):
    u = s // 4
    base = TSLOT[u % 4]
    reg = vWL if base < 81920 else vWH
    base = base if base < 81920 else base - 81920
    return [f"ds_read_b128 {vr(TW+(s%2)*20+4*T,4)}, v{reg} offset:{base+(s%4)*5120+T*1024}" for T in range(5)]
def tail_mfmas(s):
    acc = AC1 if s < 24 else AC2
    out = []
    for T in range(5):
        d = vr(acc+4*T, 4)
        cin = "0" if s in (0, 24) else d
        out.append(f"v_mfma_f32_16x16x32_bf16 {d}, {vr(TW+(s%2)*20+4*T,4)}, {vr(HR(s),4)}, {cin}")
    return out

def tail_main(a, issued, pre=None, post=None):
    pre = pre or {}; post = post or {}
    a(f"s_mul_i32 s{sT0}, s{sKH}, 20480")
    a(f"v_add_u32 v{vWL}, s{sT0}, v{vD4}")
    a(f"v_add_u32 v{vWH}, 81920, v{vWL}")
    pend = []
    for s in range(NS + 1):
        if s % 4 == 0 and s < NS:
            u = s // 4
            if u in pre: pre[u]()
            a.wait_vm(f"w{u}", lg0=True)
            a("s_barrier")
            a.stamp(f"tail chunk{u}")
            if u in post: pend += post[u]()
            if u + 3 < 9 and u + 3 >= issued:
                if u + 3 == 8: pend.append(("f", lambda: tail_dma(a, 8)))
                else: pend += tail_dma_list(u + 3)
        else:
            a.lg_all()
        rd = tail_reads(s) if s < NS else []
        mf = tail_mfmas(s-1) if s > 0 else []
        if s > 0: a.wait_vm(f"a{s-1}")
        for i in range(5):
            if i < len(mf): a(mf[i])
            for r in rd[2*i:2*i+2]: a.ds(r, f"t{s}")
            if i >= 3 and pend:
                n = 1
                while n < len(pend) and pend[n-1][0] == "s": n += 1
                emit_list(a, pend[:n]); pend = pend[n:]
    assert not pend
    a.c("---- mix, exchange, store")
    a.wait_vm(["g", "b2"])
    omg = vWH
    a(f"v_sub_f32 v{omg}, 1.0, v{vG}")
    a(f"v_cvt_pk_bf16_f32 v{omg}, v{omg}, v{omg}")
    a(f"v_and_b32 v{omg}, 0xffff0000, v{omg}")
    a(f"s_mul_i32 s{sT1}, s{sWAVE}, 3072")
    a(f"v_add_u32 v{vTT0}, s{sT1}, v{vD4}")
    a(f"s_xor_b32 s{sT1}, s{sWAVE}, 4")
    a(f"s_mul_i32 s{sT1}, s{sT1}, 3072")
    a(f"v_add_u32 v{vTT1}, s{sT1}, v{vD4}")
    for i in range(20): a(f"v_mul_f32 v{AC1+i}, v{omg}, v{AC1+i}")
    for i in range(20): a(f"v_fma_f32 v{AC1+i}, v{vG}, v{AC2+i}, v{AC1+i}")
    XB = 40960 + 40960
    a(f"s_and_b32 s{sT0}, s{sWAVE}, 3")
    a(f"s_lshl_b32 s{sT1}, s{sRB}, 2")
    a(f"s_add_u32 s{sT0}, s{sT0}, s{sT1}")
    a(f"s_mul_i32 s{sT0}, s{sT0}, {16*1280}")
    a(f"s_mul_i32 s{sT1}, s{sCG}, 160")
    a(f"s_add_u32 s{sT0}, s{sT0}, s{sT1}")
    a(f"v_add_u32 v{vTT0}, {XB}, v{vTT0}")
    a(f"v_add_u32 v{vTT1}, {XB}, v{vTT1}")
    LB = a.newlabel("mixB"); LE = a.newlabel("mixE")
    a(f"s_cmp_eq_u32 s{sKH}, 1")
    a(f"s_cbranch_scc1 {LB}")
    for own, send in (((0, 1), (2, 3, 4)), ((2, 3, 4), (0, 1))):
        for k, T in enumerate(send): a.ds(f"ds_write_b128 v{vTT0}, {vr(AC1+4*T,4)} offset:{k*1024}", "x")
        a(f"v_and_b32 v{vWL}, 15, v0")
        a(f"v_mul_u32_u24 v{vWL}, 1280, v{vWL}")
        a(f"v_lshrrev_b32 v{vD4}, 4, v0")
        a(f"v_lshl_add_u32 v{vG}, v{vD4}, 3, v{vWL}")
        a(f"v_lshl_add_u32 v{vWL}, v{vD4}, 4, v{vWL}")
        for T in own:
            for r in range(4):
                src = vB2 + 2*T + r//2
                tmp = TW + T*4 + r
                if r % 2 == 0: a(f"v_lshlrev_b32 v{tmp}, 16, v{src}")
                else: a(f"v_and_b32 v{tmp}, 0xffff0000, v{src}")
                a(f"v_fma_f32 v{AC1+4*T+r}, v{omg}, v{tmp}, v{AC1+4*T+r}")
        a.lg_all()
        a("s_barrier")
        for k, T in enumerate(own): a.ds(f"ds_read_b128 {vr(TW+4*T,4)}, v{vTT1} offset:{k*1024}", f"x{T}")
        for T in own:
            a.wait_lg(f"x{T}")
            for r in range(4): a(f"v_add_f32 v{AC1+4*T+r}, v{AC1+4*T+r}, v{TW+4*T+r}")
            o = TW + 20 + 2*T
            a(f"v_cvt_pk_bf16_f32 v{o}, v{AC1+4*T}, v{AC1+4*T+1}")
            a(f"v_cvt_pk_bf16_f32 v{o+1}, v{AC1+4*T+2}, v{AC1+4*T+3}")
            if T == 1: a(f"buffer_store_dwordx4 {vr(TW+20,4)}, v{vWL}, {srd(S_OUT)}, s{sT0} offen")
            if T == 3: a(f"buffer_store_dwordx4 {vr(TW+24,4)}, v{vWL}, {srd(S_OUT)}, s{sT0} offen offset:64")
            if T == 4: a(f"buffer_store_dwordx2 {vr(TW+28,2)}, v{vG}, {srd(S_OUT)}, s{sT0} offen offset:128")
        if own == (0, 1):
            a(f"s_branch {LE}")
            a.label(LB)
    a.label(LE)
    a.stamp("tail end")


def att_extra(a):
    pieces = []
    for u in range(3):
        for e in range(5):
            pieces.append([("s", f"s_add_u32 m0, s{sTWM}, {TSLOT[u] + e*1024}"),
                           ("s", f"s_add_u32 s{sDM2}, s{sWG}, {u*20480 + e*1024}"),
                           ("v", f"buffer_load_dwordx4 v{vD4}, {srd(S_WS)}, s{sDM2} offen sc1 lds", f"w{u}")])
    def extra(c):
        out = []
        if c == 1 and OPT["hlate"]: out += h_store(0) + h_store(1) + h_store(2)
        if c == 2: out.append(("f", lambda: (pp_finish(a, 244, 248), second_unit(a, 0))))
        if c == 4: out.append(("f", lambda: second_unit(a, 1)))
        if c == 6: out.append(("f", lambda: flag_set(a, 1, 120)))
        if c == 7: out.append(("f", lambda: poll(a, "B", 120, 122, "issue")))
        if 8 <= c < 16:
            i = c - 8
            if i % 4 == 0: out += tail_aload_list(3*i, 3, sDM)
            elif i % 4 == 1: out += tail_aload_list(3*i, 1, sDM) + tail_aload_list(3*i+1, 2, sDM)
            elif i % 4 == 2: out += tail_aload_list(3*i, 2, sDM) + tail_aload_list(3*i+2, 1, sDM)
            else: out += tail_aload_list(3*i, 3, sDM)
            for _ in range(2):
                if pieces: out += pieces.pop(0)
            if c == 15: out.append(("f", lambda: tail_warm(a)))
        return out
    def pre(c):
        if c == 6: wait_st(a, "st1")
        if c == 8: poll(a, "B", 120, 122, "check")
    return extra, pre

def tail_warm(a):
    t = 250
    a(f"s_lshl_b32 s{sT0}, s{sLO}, 3")
    a(f"s_add_u32 s{sT0}, s{sT0}, s{sWAVE}")
    a(f"s_and_b32 s{sT1}, s{sT0}, 31")
    a(f"s_mul_i32 s{sT1}, s{sT1}, {28*128}")
    a(f"s_lshr_b32 s{sT0}, s{sT0}, 5")
    a(f"s_mul_i32 s{sT0}, s{sT0}, {NS*5120}")
    a(f"s_add_u32 s{sT0}, s{sT0}, s{sT1}")
    a(f"s_mul_i32 s{sT1}, s{sCG}, {68*5120}")
    a(f"s_add_u32 s{sT0}, s{sT0}, s{sT1}")
    a(f"s_add_u32 s{sT0}, s{sT0}, {WF_OFF + 12*5120}")
    a(f"v_min_u32 v{t}, 27, v0")
    a(f"v_lshlrev_b32 v{t}, 7, v{t}")
    a.vmem(f"buffer_load_dword v{t}, v{t}, {srd(S_WS)}, s{sT0} offen sc1", "warm")

def mega(a):
    phase1(a)
    a.stamp_move(255)
    tail_setup(a)
    a(f"s_mov_b32 s{sT3}, s2")
    pp_setup(a, PP_LDS, (232, 233, 234, 235, 236))
    att_setup2(a)
    extra, pre = att_extra(a)
    attention_main(a, extra, pre)
    a.stamp("att main done")
    att_epilogue(a)
    a.stamp("att end")
    a.stamp_move(110)
    tail_small_loads(a)
    pre = {1: lambda: wait_st(a, "sto"), 4: lambda: poll(a, "C", 98, 100, "check")}
    post = {1: lambda: [("f", lambda: flag_set(a, 2, 98))],
            3: lambda: [("f", lambda: poll(a, "C", 98, 100, "issue"))],
            4: lambda: tail_aload_list(24, 4, sDM) + tail_aload_list(28, 4, sDM) + tail_aload_list(32, 2, sDM)}
    tail_main(a, 3, pre, post)

def dbg_out(a):
    want = ["setup done", "p1 chunk0", "p1 chunk1", "p1 chunk5", "p1 chunk10", "p1 chunk14", "p1 A seen", "att chunk0", "att chunk1", "att chunk15", "att end", "tail chunk1", "tail chunk6", "tail end"]
    r = a.stampreg
    def body():
        a.rstamp(63)
        a(f"v_readlane_b32 s97, v{r}, 62")
        a(f"s_not_b32 s97, s97")
        a(f"v_mov_b32 v1, s98")
        a(f"v_writelane_b32 v1, s97, 1")
        a(f"v_lshlrev_b32 v2, 2, v0")
        a("s_mov_b64 exec, 3")
        a(f"buffer_atomic_umax v1, v2, {srd(S_DBG)}, 0 offen sc1")
        a("s_mov_b64 exec, -1")
        L = a.newlabel("dbg")
        a("s_cmp_lg_u32 s2, 5")
        a(f"s_cbranch_scc1 {L}")
        a(f"v_readlane_b32 s97, v{r}, 0")
        for k, n in enumerate(want):
            a(f"v_readlane_b32 s98, v{r}, {a.stampnames.index(n)}")
            a("s_nop 3")
            a("s_sub_u32 s98, s98, s97")
            a(f"v_writelane_b32 v1, s98, {2+k}")
        a("s_mov_b64 exec, 0xfffc")
        a(f"buffer_store_dword v1, v2, {srd(S_DBG)}, 0 offen sc1")
        a("s_mov_b64 exec, -1")
        a.label(L)
    wave0(a, body)

HEADER = open("cdna_kernels/" + NAME + ".s.ref").read().split("; Override launch")[0]

def build(fn, stamps=False):
    a = Asm()
    a.stamps = stamps
    name = NAME + "_kernel"
    a.stampreg = 17; a.nstamp = 0; a.stampnames = []; a.stampbase = STAMP_OFF
    a('.amdgcn_target "amdgcn-amd-amdhsa--gfx950"')
    a(".text")
    a(f".globl {name}")
    a(".p2align 8")
    a(f".type {name},@function")
    a.label(name)
    prologue(a)
    a.rstamp(62)
    mega(a)
    if OPT.get("dbg"): dbg_out(a)
    a.stamp_flush(srd(S_WS), a.stampbase)
    a.label("L_exit")
    a("s_endpgm")
    a('.section .rodata,"a"')
    a(".p2align 6")
    a(f".amdhsa_kernel {name}")
    a(".amdhsa_next_free_vgpr 256")
    a(".amdhsa_next_free_sgpr 102")
    a(".amdhsa_accum_offset 256")
    a(".amdhsa_group_segment_fixed_size 0")
    a(".amdhsa_kernarg_size 96")
    a(".amdhsa_user_sgpr_count 2")
    a(".amdhsa_user_sgpr_kernarg_segment_ptr 1")
    a(".amdhsa_system_sgpr_workgroup_id_x 1")
    a(".end_amdhsa_kernel")
    for e in check_hazards(a.lines): print("HAZARD", e)
    if stamps: json.dump({"mega": a.stampnames}, open(fn + ".names", "w"))
    open(fn, "w").write(HEADER + "; @launch grid=(256,1,1) block=(512,1,1) lds=163840\n" + a.text())

if __name__ == "__main__":
    for o in sys.argv[2:]:
        if o.startswith("no"): OPT[o[2:]] = False
        elif "=" in o: k, v = o.split("="); OPT[k] = int(v)
        else: OPT[o] = True
    build(sys.argv[1], stamps=OPT.get("stamps", False))
```

```python
import sys, math, struct, json
from emit import Asm, check_hazards

NAME = "gated_mix__softmax_full_mha__dense_activation_squared_relu__prompt"
QF_OFF = 0
KV_OFF = 2621440
KV_T = 2560
KV_L = 3072
KV_H = 64 * KV_T
AF_OFF = KV_OFF + 32 * KV_H
AF_T = 68 * 1024
WF_OFF = AF_OFF + 128 * AF_T
G_OFF = WF_OFF + 8 * 68 * 5120
FLAG_OFF = G_OFF + 8192
STAMP_OFF = FLAG_OFF + 3 * 32768
WS_USED = STAMP_OFF + 3 * 2048 * 256
QSCALE = (20 ** -0.5) * math.log2(math.e)
def f32hex(x): return "0x%08x" % struct.unpack("<I", struct.pack("<f", x))[0]

OPT = dict(fine=False, prio=True, pf=True, spread=True, abar=12, pf2=4, rot=True, hlate=False, c1late=False, cpf=True, apoll=36)

S_X, S_WQ, S_W1, S_WS, S_OUT, S_M1, S_M2 = 8, 12, 16, 20, 24, 28, 32
P_WO, P_B1, P_W2, P_B2, P_GW, P_DBG = 36, 38, 40, 42, 44, 46
sWAVE, sM, sJ, sT0, sT1, sT2, sT3, sT4, sT5 = 48, 49, 50, 51, 52, 53, 54, 55, 56
sLDSW, sOffX, sOffW, sScale, sXCD, sLO, sHI = 57, 58, 59, 60, 61, 62, 63
sEXV, sSAVE = 64, 66
sH, sQB, sKVG, sKH, sKVM = 68, 69, 70, 71, 72
sRB, sCG, sWG, sAG, sTWM = 73, 74, 75, 76, 77
sDM, sW1M, sW1G, sEPI, sPPC, sPD0, sPD1, sPFX, sPFW, sDM2 = 78, 79, 80, 81, 82, 83, 84, 85, 86, 87
sSPIN = 96
sCK, sCK1, sROT = 88, 89, 90
S_DBG = 92
def srd(b): return f"s[{b}:{b+3}]"
def vr(b, n=1): return f"v{b}" if n == 1 else f"v[{b}:{b+n-1}]"

def mk_srd(a, base, ptr, size):
    a(f"s_mov_b32 s{base}, s{ptr}")
    a(f"s_mov_b32 s{base+1}, s{ptr+1}")
    a(f"s_mov_b32 s{base+2}, {size}")
    a(f"s_mov_b32 s{base+3}, 0x00020000")

def emit_list(a, lst):
    for it in lst:
        if it[0] == "s": a(it[1])
        elif it[0] == "v": a.vmem(it[1], it[2], definite=(it[3] if len(it) > 3 else True))
        elif it[0] == "d": a.ds(it[1], it[2])
        elif it[0] == "f": it[1]()
def take(pend):
    k = 1
    while k < len(pend) and pend[k-1][0] == "s": k += 1
    out = pend[:k]; del pend[:k]
    return out

def wait_st(a, tag):
    if OPT.get("strict"): a.vm_all()
    else: a.wait_vm(tag)

def OUTF(): return " sc1" if OPT.get("outsc1") else ""

def prologue(a):
    a("s_cmp_ge_u32 s2, 256")
    a("s_cbranch_scc1 L_exit")
    a("s_load_dwordx16 s[68:83], s[0:1], 0")
    a("s_load_dwordx8 s[84:91], s[0:1], 64")
    a(f"v_lshrrev_b32 v1, 6, v0")
    a(f"s_and_b32 s{sXCD}, s2, 7")
    a(f"v_readfirstlane_b32 s{sWAVE}, v1")
    a(f"s_lshr_b32 s{sLO}, s2, 3")
    a(f"s_and_b32 s{sLO}, s{sLO}, 7")
    a(f"s_lshr_b32 s{sHI}, s2, 6")
    a(f"v_and_b32 v0, 63, v0")
    a(f"s_mov_b32 s{sSPIN}, 0")
    a(f"s_and_b32 s{sM}, s{sXCD}, 1")
    a(f"s_lshl_b32 s{sM}, s{sM}, 3")
    a(f"s_add_u32 s{sM}, s{sM}, s{sLO}")
    a(f"s_lshr_b32 s{sJ}, s{sXCD}, 1")
    a(f"s_lshl_b32 s{sJ}, s{sJ}, 2")
    a(f"s_add_u32 s{sJ}, s{sJ}, s{sHI}")
    p1_setup(a)
    a("s_waitcnt lgkmcnt(0)")
    mk_srd(a, S_X, 68, 2621440)
    mk_srd(a, S_WQ, 70, 2457600)
    mk_srd(a, S_M1, 84, 1280)
    mk_srd(a, S_W1, 76, 1966080)
    mk_srd(a, S_WS, 90, WS_USED)
    mk_srd(a, S_OUT, 86, 2621440)
    mk_srd(a, S_DBG, 88, 256)
    for dst, src in ((P_WO, 72), (P_B1, 78), (P_W2, 80), (P_B2, 82)):
        a(f"s_mov_b64 s[{dst}:{dst+1}], s[{src}:{src+1}]")

def wave0(a, body, w=0):
    L = a.newlabel("w0")
    a(f"s_cmp_lg_u32 s{sWAVE}, {w}")
    a(f"s_cbranch_scc1 {L}")
    a.inw0 = True
    body()
    a.inw0 = False
    a.label(L)

def flags_clear(a, t):
    def body():
        a(f"v_lshlrev_b32 v{t}, 15, v0")
        a(f"v_mov_b32 v{t+1}, 0")
        a(f"s_lshl_b32 s{sT0}, s2, 7")
        a(f"s_add_u32 s{sT0}, s{sT0}, {FLAG_OFF}")
        a("s_mov_b64 exec, 7")
        a.vmem(f"buffer_store_dword v{t+1}, v{t}, {srd(S_WS)}, s{sT0} offen sc1", "clr", definite="w0")
        a("s_mov_b64 exec, -1")
    wave0(a, body)

def flags_count_in(a, t):
    def body():
        st = list(a.vm)
        a.wait_vm("clr")
        a.vm = st
        a(f"s_and_b32 s{sT0}, s2, 31")
        a(f"s_lshl_b32 s{sT0}, s{sT0}, 2")
        a(f"s_add_u32 s{sT0}, s{sT0}, 128")
        a(f"v_mov_b32 v{t}, s{sT0}")
        a(f"v_mov_b32 v{t+1}, 1")
        a("s_mov_b64 exec, 1")
        a.vmem(f"buffer_atomic_add v{t+1}, v{t}, {srd(S_DBG)}, 0 offen sc1", "cnt", definite="w0")
        a("s_mov_b64 exec, -1")
    wave0(a, body)

def flag_set(a, which, t):
    def body():
        a(f"v_mov_b32 v{t}, 0")
        a(f"v_mov_b32 v{t+1}, 1")
        a(f"s_lshl_b32 s{sT0}, s2, 7")
        a(f"s_add_u32 s{sT0}, s{sT0}, {FLAG_OFF + which * 32768}")
        a(f"s_mov_b64 exec, 1")
        a.vmem(f"buffer_store_dword v{t+1}, v{t}, {srd(S_WS)}, s{sT0} offen sc1", "flag", definite="w0")
        a("s_mov_b64 exec, -1")
    wave0(a, body)

def poll(a, kind, t, d, stage):
    def addr():
        if kind == "init" :
            a(f"v_lshlrev_b32 v{t}, 2, v0")
            a(f"v_or_b32 v{t}, 128, v{t}")
        elif kind == "B":
            a(f"v_lshlrev_b32 v{t}, 7, v0")
        elif kind == "C":
            a(f"v_bfe_u32 v{t}, v0, 2, 3")
            a(f"v_and_b32 v{d}, 3, v0")
            a(f"v_lshl_add_u32 v{t}, v{d}, 6, v{t}")
            a(f"v_lshlrev_b32 v{t}, 7, v{t}")
            a(f"s_lshr_b32 s{sT5}, s{sRB}, 2")
            a(f"s_lshl_b32 s{sT5}, s{sT5}, 10")
            a(f"v_add_u32 v{t}, s{sT5}, v{t}")
        else:
            a(f"s_lshl_b32 s{sT3}, s{sXCD}, 2")
            a(f"s_add_u32 s{sT3}, s{sT3}, s{sHI}")
            a(f"s_mul_i32 s{sT3}, s{sT3}, 20")
            a(f"s_add_u32 s{sT4}, s{sT3}, 19")
            a(f"s_lshr_b32 s{sT3}, s{sT3}, 7")
            a(f"s_lshr_b32 s{sT4}, s{sT4}, 7")
            a(f"s_sub_u32 s{sT4}, s{sT4}, s{sT3}")
            for k in range(2):
                if k == 0:
                    a(f"v_bfe_u32 v{d}, v0, 4, 1")
                    a(f"v_mul_u32_u24 v{d}, s{sT4}, v{d}")
                    a(f"v_lshrrev_b32 v{d+1}, 5, v0")
                    a(f"v_mad_u32_u24 v{d}, v{d+1}, 5, v{d}")
                    a(f"v_add3_u32 v{d}, v{d}, s{sT3}, 5")
                    a(f"v_and_b32 v{d+1}, 15, v0")
                else:
                    a(f"v_and_b32 v{d}, 1, v0")
                    a(f"v_mul_u32_u24 v{d}, s{sT4}, v{d}")
                    a(f"v_add_u32 v{d}, s{sT3}, v{d}")
                    a(f"v_bfe_u32 v{d+1}, v0, 1, 1")
                    a(f"s_lshl_b32 s{sT5}, s{sLO}, 1")
                    a(f"v_add_u32 v{d+1}, s{sT5}, v{d+1}")
                a(f"v_lshrrev_b32 v{d+2}, 3, v{d+1}")
                a(f"v_lshrrev_b32 v{d+3}, 2, v{d}")
                a(f"v_lshl_add_u32 v{d+2}, v{d+3}, 1, v{d+2}")
                a(f"v_and_b32 v{d+1}, 7, v{d+1}")
                a(f"v_lshl_add_u32 v{d+2}, v{d+1}, 3, v{d+2}")
                a(f"v_and_b32 v{d}, 3, v{d}")
                a(f"v_lshl_add_u32 v{d+2}, v{d}, 6, v{d+2}")
                a(f"v_lshlrev_b32 v{t+k}, 7, v{d+2}")
    def loads():
        if kind == "init": return [f"buffer_load_dword v{d}, v{t}, {srd(S_DBG)}, 0 offen sc1"]
        out = []
        n = {"A": 2, "B": 4, "C": 1}[kind]
        for k in range(n):
            base = FLAG_OFF + "ABC".index(kind) * 32768 + (k * 8192 if kind == "B" else 0)
            out.append(f"s_mov_b32 s{sT5}, {base}")
            out.append(f"buffer_load_dword v{d+k}, v{t + (k if kind == 'A' else 0)}, {srd(S_WS)}, s{sT5} offen sc1")
        return out
    def issue():
        addr()
        for l in loads():
            if l.startswith("s_"): a(l)
            else: a.vmem(l, "poll" + kind, definite="w0")
    def check():
        L = a.newlabel("spin"); LD = a.newlabel("got")
        st = list(a.vm)
        a.wait_vm("poll" + kind)
        a.label(L)
        if kind in ("A", "B"): a(f"v_and_b32 v{d}, v{d}, v{d+1}")
        if kind == "B":
            a(f"v_and_b32 v{d+2}, v{d+2}, v{d+3}")
            a(f"v_and_b32 v{d}, v{d}, v{d+2}")
        a(f"v_cmp_le_u32 vcc, 8, v{d}" if kind == "init" else f"v_cmp_eq_u32 vcc, 1, v{d}")
        a("s_nop 1")
        a("s_cmp_eq_u64 vcc, -1")
        a(f"s_cbranch_scc1 {LD}")
        a(f"s_add_u32 s{sSPIN}, s{sSPIN}, 1")
        a(f"s_cmp_gt_u32 s{sSPIN}, 0x100000")
        a(f"s_cbranch_scc1 {LD}")
        a("s_sleep 1")
        for l in loads(): a(l)
        a("s_waitcnt vmcnt(0)")
        a(f"s_branch {L}")
        a.label(LD)
        a.vm = [(t_, False if d_ == "w0" else d_) for t_, d_ in st if t_ != "poll" + kind]
    wave0(a, issue if stage == "issue" else check)

XR, ACC, WF = 96, 64, 32
vX0, vX1, vW0, vW1, vU0, vU1, vU2 = 1, 2, 3, 4, 5, 6, 7
vXA, vTA, vTB, vB1, vEA, vPP, vPF = 8, 10, 14, 18, 24, 240, 242
PK = [44, 60, 92, 76]
PP_LDS = 131072

def p1_setup(a):
    t0, t1, t2, t3 = 32, 33, 34, 35
    a(f"s_lshl_b32 s{sLDSW}, s{sWAVE}, 12")
    a(f"s_mul_i32 s{sOffX}, s{sM}, {128*1280}")
    a(f"s_lshl_b32 s{sOffW}, s{sJ}, 8")
    a(f"v_lshrrev_b32 v{t0}, 3, v0")
    a(f"s_lshl_b32 s{sT0}, s{sWAVE}, 4")
    a(f"v_add_u32 v{t0}, s{sT0}, v{t0}")
    a(f"v_mul_u32_u24 v{t0}, 1280, v{t0}")
    a(f"v_and_b32 v{t1}, 7, v0")
    a(f"v_lshrrev_b32 v{t2}, 4, v0")
    a(f"v_xor_b32 v{t1}, v{t1}, v{t2}")
    a(f"v_lshl_add_u32 v{vX0}, v{t1}, 4, v{t0}")
    a(f"v_xor_b32 v{t1}, 4, v{t1}")
    a(f"v_lshl_add_u32 v{vX1}, v{t1}, 4, v{t0}")
    a(f"v_add_u32 v{vX1}, {8*1280-1024}, v{vX1}")
    a(f"s_lshl_b32 s{sT0}, s{sWAVE}, 3")
    a(f"v_add_u32 v{t0}, s{sT0}, v{t2}")
    a(f"v_mul_u32_u24 v{t0}, 3840, v{t0}")
    a(f"s_and_b32 s{sT0}, s{sWAVE}, 1")
    a(f"s_lshl_b32 s{sT0}, s{sT0}, 2")
    a(f"v_or_b32 v{t1}, s{sT0}, v{t2}")
    a(f"v_bfe_u32 v{t3}, v0, 1, 3")
    a(f"v_xor_b32 v{t1}, v{t1}, v{t3}")
    a(f"v_lshlrev_b32 v{t1}, 5, v{t1}")
    a(f"v_and_b32 v{t3}, 1, v0")
    a(f"v_lshl_add_u32 v{t1}, v{t3}, 4, v{t1}")
    a(f"v_add_u32 v{vW0}, v{t0}, v{t1}")
    a(f"v_add_u32 v{vW1}, {4*3840-1024}, v{vW0}")
    a(f"v_mov_b32 v28, 0")
    a(f"v_mov_b32 v29, 0")
    a(f"v_lshlrev_b32 v36, 4, v0")
    a(f"v_lshlrev_b32 v37, 2, v0")

def p1_dma_list(c, mode="q"):
    slot = (c % 4) * 32768
    if c < 10:
        out = [("s", f"s_add_u32 m0, s{sLDSW}, {slot}"),
               ("s", f"s_lshl_b32 s{sDM}, s{sCK}, 7"),
               ("s", f"s_add_u32 s{sDM}, s{sDM}, s{sOffX}"),
               ("v", f"buffer_load_dwordx4 v{vX0}, {srd(S_X)}, s{sDM} offen lds", f"c{c}"),
               ("v", f"buffer_load_dwordx4 v{vX1}, {srd(S_X)}, s{sDM} offen offset:1024 lds", f"c{c}")]
        adv = [("s", f"s_add_u32 s{sCK}, s{sCK}, 1"), ("s", f"s_cmp_eq_u32 s{sCK}, 10"), ("s", f"s_cselect_b32 s{sCK}, 0, s{sCK}")]
        if mode != "x":
            out += [("s", f"s_add_u32 m0, s{sLDSW}, {slot+2048}"),
                    ("s", f"s_mul_i32 s{sDM}, s{sCK}, {64*3840}"),
                    ("s", f"s_add_u32 s{sDM}, s{sDM}, s{sOffW}"),
                    ("v", f"buffer_load_dwordx4 v{vW0}, {srd(S_WQ)}, s{sDM} offen lds", f"c{c}")] + adv + \
                   [("v", f"buffer_load_dwordx4 v{vW1}, {srd(S_WQ)}, s{sDM} offen offset:1024 lds", f"c{c}")]
        else:
            out = out[:4] + adv + out[4:]
        return out
    out = [("s", f"s_add_u32 m0, s{sW1M}, {slot}"),
           ("s", f"s_mul_i32 s{sDM}, s{sCK1}, {64*3072}"),
           ("s", f"s_add_u32 s{sDM}, s{sDM}, s{sW1G}")]
    for e, v in enumerate((vU0, vU1, vU2)):
        off = f" offset:{e*1024}" if e else ""
        out.append(("v", f"buffer_load_dwordx4 v{v}, {srd(S_W1)}, s{sDM} offen{off} lds", f"c{c}"))
        if e == 0: out += [("s", f"s_add_u32 s{sCK1}, s{sCK1}, 2"), ("s", f"s_sub_u32 s{sDM2}, s{sCK1}, 10"), ("s", f"s_min_u32 s{sCK1}, s{sCK1}, s{sDM2}")]
    return out

def rot_setup(a):
    a(f"s_lshr_b32 s{sCK}, s{sXCD}, 1")
    a(f"s_and_b32 s{sT0}, s{sXCD}, 1")
    a(f"s_mul_i32 s{sT0}, s{sT0}, 5")
    a(f"s_add_u32 s{sCK}, s{sCK}, s{sT0}")
    if not OPT["rot"]: a(f"s_mov_b32 s{sCK}, 0")
    a(f"s_mov_b32 s{sROT}, s{sCK}")
    a(f"s_lshr_b32 s{sCK1}, s{sWAVE}, 2")
    a(f"s_add_u32 s{sCK1}, s{sCK1}, s{sCK}")

vPX, vPW, vP1 = 248, 249, 250
def mod10(a, t0, t1):
    a(f"v_subrev_u32 v{t1}, 10, v{t0}")
    a(f"v_min_u32 v{t0}, v{t0}, v{t1}")
def pf_w(a, first, n, dst):
    t0, t1 = 26, 27
    a(f"v_lshrrev_b32 v{t0}, 1, v0")
    a(f"v_min_u32 v{t0}, {n-1}, v{t0}")
    a(f"v_add3_u32 v{t0}, s{sROT}, v{t0}, {first}")
    mod10(a, t0, t1)
    a(f"v_mul_u32_u24 v{t0}, {64*3840}, v{t0}")
    a(f"v_and_b32 v{t1}, 1, v0")
    a(f"v_lshl_add_u32 v{t0}, v{t1}, 7, v{t0}")
    a.vmem(f"buffer_load_dword v{dst}, v{t0}, {srd(S_WQ)}, s{sPFW} offen", "pf")
def pf_x(a, first, n, dst, definite=True):
    t0, t1 = 26, 27
    a(f"v_lshrrev_b32 v{t0}, 2, v0")
    a(f"v_min_u32 v{t0}, {n-1}, v{t0}")
    a(f"v_add3_u32 v{t0}, s{sROT}, v{t0}, {first}")
    mod10(a, t0, t1)
    a(f"v_and_b32 v{t1}, 3, v0")
    a(f"v_mul_u32_u24 v{t1}, 1280, v{t1}")
    a(f"v_lshl_add_u32 v{t0}, v{t0}, 7, v{t1}")
    a.vmem(f"buffer_load_dword v{dst}, v{t0}, {srd(S_X)}, s{sPFX} offen", "pf", definite=definite)
def pf_setup(a):
    t0, t1 = 32, 33
    a(f"s_lshr_b32 s{sT0}, s2, 3")
    a(f"s_lshl_b32 s{sT0}, s{sT0}, 3")
    a(f"s_add_u32 s{sT0}, s{sT0}, s{sWAVE}")
    a(f"s_lshr_b32 s{sT1}, s{sT0}, 2")
    a(f"s_mul_i32 s{sPFW}, s{sT1}, 3840")
    a(f"s_and_b32 s{sT1}, s{sT0}, 3")
    a(f"s_lshl_b32 s{sT1}, s{sT1}, 8")
    a(f"s_add_u32 s{sPFW}, s{sPFW}, s{sT1}")
    a(f"s_lshr_b32 s{sT2}, s{sXCD}, 1")
    a(f"s_lshl_b32 s{sT1}, s{sT2}, 10")
    a(f"s_add_u32 s{sPFW}, s{sPFW}, s{sT1}")
    a(f"s_and_b32 s{sT1}, s{sXCD}, 1")
    a(f"s_lshl_b32 s{sT1}, s{sT1}, 8")
    a(f"s_add_u32 s{sT1}, s{sT1}, s{sT0}")
    a(f"s_mul_i32 s{sPFX}, s{sT1}, {4*1280}")
    if OPT["cpf"]:
        a(f"s_getpc_b64 s[{sSAVE}:{sSAVE+1}]")
        a.label("L_here")
        a(f"s_lshl_b32 s{sT1}, s{sT0}, 8")
        a(f"v_and_b32 v{t0}, 1, v0")
        a(f"v_lshlrev_b32 v{t0}, 7, v{t0}")
        a(f"v_add_u32 v{t0}, s{sT1}, v{t0}")
        a(f"v_min_u32 v{t0}, L_exit-L_here, v{t0}")
        a.vmem(f"global_load_dword v251, v{t0}, s[{sSAVE}:{sSAVE+1}]", "pf")
    if OPT["pf"]:
        pf_w(a, 1, 4, 253)
        L = a.newlabel("pfx")
        a(f"s_cmp_lg_u32 s{sT2}, 3")
        a(f"s_cbranch_scc1 {L}")
        pf_x(a, 1, 6, 252, definite=False)
        a.label(L)
    a(f"s_mul_i32 s{sT1}, s{sT0}, {3*3072}")
    a(f"s_mul_i32 s{sT2}, s{sT2}, 768")
    a(f"s_add_u32 s{sT1}, s{sT1}, s{sT2}")
    a(f"v_lshrrev_b32 v{t0}, 3, v0")
    a(f"v_min_u32 v{t0}, 2, v{t0}")
    a(f"v_mul_u32_u24 v{t0}, 3072, v{t0}")
    a(f"v_and_b32 v{t1}, 7, v0")
    a(f"v_min_u32 v{t1}, 5, v{t1}")
    a(f"v_lshl_add_u32 v{vP1}, v{t1}, 7, v{t0}")
    a(f"v_add_u32 v{vP1}, s{sT1}, v{vP1}")
def pf_w1(): return [("v", f"buffer_load_dword v254, v{vP1}, {srd(S_W1)}, 0 offen", "pf")]

def p1_setup2(a):
    t0, t1, t2, t3, t4, t5 = 32, 33, 34, 35, 38, 39
    a(f"s_mul_i32 s{sW1M}, s{sWAVE}, 3072")
    a(f"s_mul_i32 s{sW1G}, s{sJ}, 192")
    a(f"s_and_b32 s{sT0}, s{sWAVE}, 3")
    a(f"s_lshl_b32 s{sT0}, s{sT0}, 13")
    a(f"v_bfe_u32 v{t0}, v0, 3, 1")
    a(f"v_lshlrev_b32 v{t0}, 10, v{t0}")
    a(f"v_and_b32 v{t1}, 7, v0")
    a(f"v_lshl_add_u32 v{t0}, v{t1}, 7, v{t0}")
    a(f"v_add_u32 v{t0}, s{sT0}, v{t0}")
    a(f"v_lshrrev_b32 v{t1}, 4, v0")
    a(f"v_bfe_u32 v{t2}, v0, 1, 3")
    a(f"v_xor_b32 v{t2}, v{t1}, v{t2}")
    a(f"v_lshl_add_u32 v{vXA}, v{t2}, 4, v{t0}")
    a(f"v_xor_b32 v{vXA+1}, 64, v{vXA}")
    a(f"v_bfe_u32 v{t2}, v0, 2, 2")
    a(f"v_lshlrev_b32 v{t0}, 12, v{t1}")
    a(f"v_lshl_add_u32 v{t0}, v{t2}, 8, v{t0}")
    a(f"v_and_b32 v{t3}, 3, v0")
    a(f"v_lshl_add_u32 v{t0}, v{t3}, 3, v{t0}")
    a(f"v_bfe_u32 v{t4}, v0, 4, 1")
    a(f"v_lshl_add_u32 v{t5}, v{t4}, 2, v{t2}")
    a(f"s_lshr_b32 s{sT0}, s{sWAVE}, 2")
    a(f"s_lshl_b32 s{sT1}, s{sT0}, 2")
    a(f"v_xor_b32 v{t5}, s{sT1}, v{t5}")
    for T in range(4):
        a(f"v_xor_b32 v{vTA+T}, {T}, v{t5}")
        a(f"v_lshl_add_u32 v{vTA+T}, v{vTA+T}, 5, v{t0}")
    a(f"v_lshrrev_b32 v{t0}, 5, v0")
    a(f"v_lshlrev_b32 v{t0}, 4, v{t0}")
    a(f"v_lshl_add_u32 v{t0}, v{t4}, 2, v{t0}")
    a(f"v_add_u32 v{t0}, v{t0}, v{t2}")
    a(f"v_mul_u32_u24 v{t0}, 192, v{t0}")
    a(f"v_lshl_add_u32 v{t0}, v{t3}, 3, v{t0}")
    a(f"v_add_u32 v{t0}, 0x10000, v{t0}")
    a(f"s_mul_i32 s{sT1}, s{sT0}, 3")
    for T in range(3):
        a(f"s_add_u32 s{sT2}, s{sT1}, {T}")
        a(f"v_xor_b32 v{vTB+T}, s{sT2}, v{t4}")
        a(f"v_lshl_add_u32 v{vTB+T}, v{vTB+T}, 5, v{t0}")
    mk_srd(a, S_M2, P_B1, 3072)
    a(f"s_mul_i32 s{sT2}, s{sT0}, 96")
    a(f"s_add_u32 s{sT1}, s{sW1G}, s{sT2}")
    a(f"v_lshlrev_b32 v{t1}, 3, v{t1}")
    for T in range(3):
        a.vmem(f"buffer_load_dwordx2 {vr(vB1+2*T,2)}, v{t1}, {srd(S_M2)}, s{sT1} offen offset:{32*T}", "b1")
    for e, v in enumerate((vU0, vU1, vU2)):
        a(f"v_add_u32 v{t0}, {e*64}, v0")
        a(f"v_mul_u32_u24 v{t1}, 5462, v{t0}")
        a(f"v_lshrrev_b32 v{t1}, 16, v{t1}")
        a(f"v_mul_u32_u24 v{t2}, 12, v{t1}")
        a(f"v_sub_u32 v{t2}, v{t0}, v{t2}")
        a(f"v_bfe_u32 v{t3}, v{t1}, 2, 1")
        a(f"v_bfe_u32 v{t4}, v{t1}, 3, 1")
        a(f"v_and_b32 v{t5}, 3, v{t1}")
        a(f"v_lshl_add_u32 v{t5}, v{t3}, 3, v{t5}")
        a(f"v_lshl_add_u32 v{t5}, v{t4}, 2, v{t5}")
        a(f"s_and_b32 s{sT0}, s{sWAVE}, 3")
        a(f"s_lshl_b32 s{sT0}, s{sT0}, 4")
        a(f"v_add_u32 v{t5}, s{sT0}, v{t5}")
        a(f"v_mul_u32_u24 v{t5}, 3072, v{t5}")
        a(f"v_lshlrev_b32 v{t3}, 1, v{t3}")
        a(f"v_xor_b32 v{t2}, v{t2}, v{t3}")
        a(f"v_lshl_add_u32 v{v}, v{t2}, 4, v{t5}")
        if e: a(f"v_subrev_u32 v{v}, {e*1024}, v{v}")

def epi_setup(a, mode):
    t0, t1, t2, t3, t4 = 240, 241, 242, 243, 244
    a(f"s_and_b32 s{sT1}, s{sWAVE}, 3")
    a(f"s_lshl_b32 s{sT3}, s{sM}, 2")
    a(f"s_add_u32 s{sT3}, s{sT1}, s{sT3}")
    if mode == "v": return epi_setup_v(a)
    a(f"s_cmp_ge_u32 s{sJ}, 5")
    a(f"s_cselect_b32 s{sT0}, 5, 0")
    a(f"s_cselect_b32 s{sScale}, 1.0, {f32hex(QSCALE)}")
    a(f"s_cselect_b32 s{sT1}, 1, 0")
    a(f"s_cselect_b32 s{sT2}, {KV_OFF}, {QF_OFF}")
    a(f"s_lshl_b32 s{sT4}, 81920, s{sT1}")
    a(f"s_lshl_b32 s{sT5}, 1280, s{sT1}")
    a(f"s_mul_i32 s{sEPI}, s{sT5}, s{sT3}")
    a(f"s_add_u32 s{sEPI}, s{sEPI}, s{sT2}")
    a(f"s_sub_u32 s{sT0}, s{sJ}, s{sT0}")
    a(f"s_lshl_b32 s{sT0}, s{sT0}, 5")
    a(f"s_lshr_b32 s{sT1}, s{sWAVE}, 2")
    a(f"s_lshl_b32 s{sT1}, s{sT1}, 4")
    a(f"s_add_u32 s{sT0}, s{sT0}, s{sT1}")
    a(f"v_and_b32 v{t3}, 9, v0")
    a(f"v_bfe_u32 v{t0}, v0, 1, 1")
    a(f"v_lshl_add_u32 v{t3}, v{t0}, 2, v{t3}")
    a(f"v_bfe_u32 v{t0}, v0, 2, 1")
    a(f"v_lshl_add_u32 v{t3}, v{t0}, 1, v{t3}")
    a(f"v_lshlrev_b32 v{t3}, 4, v{t3}")
    a(f"v_lshrrev_b32 v{t0}, 4, v0")
    a(f"v_add_u32 v{t0}, s{sT0}, v{t0}")
    a(f"s_mov_b32 s{sT3}, 0x43120")
    for T in range(4):
        adr = vEA + T
        a(f"v_add_u32 v{t1}, {4*T}, v{t0}")
        a(f"v_mul_u32_u24 v{t2}, 205, v{t1}")
        a(f"v_lshrrev_b32 v{t2}, 10, v{t2}")
        a(f"v_mul_u32_u24 v{adr}, 5, v{t2}")
        a(f"v_sub_u32 v{t1}, v{t1}, v{adr}")
        a(f"v_lshlrev_b32 v{t1}, 2, v{t1}")
        a(f"v_bfe_u32 v{t1}, s{sT3}, v{t1}, 4")
        a(f"v_mul_lo_u32 v{adr}, v{t2}, s{sT4}")
        a(f"v_lshl_add_u32 v{adr}, v{t1}, 8, v{adr}")
        a(f"v_add_u32 v{adr}, v{adr}, v{t3}")

def epi_setup_v(a):
    t0, t1, t2, t3, t4 = 240, 241, 242, 243, 244
    a(f"s_sub_u32 s{sT0}, s{sJ}, 10")
    a(f"s_lshl_b32 s{sT0}, s{sT0}, 7")
    a(f"s_lshr_b32 s{sT1}, s{sWAVE}, 2")
    a(f"s_lshl_b32 s{sT1}, s{sT1}, 6")
    a(f"s_add_u32 s{sT0}, s{sT0}, s{sT1}")
    a(f"s_mul_i32 s{sEPI}, s{sT3}, {KV_T}")
    a(f"s_add_u32 s{sEPI}, s{sEPI}, {KV_OFF + 1280}")
    a(f"s_mov_b32 s{sT4}, {KV_H}")
    a(f"v_lshrrev_b32 v{t3}, 4, v0")
    a(f"v_mul_u32_u24 v{t3}, 320, v{t3}")
    a(f"v_and_b32 v{t0}, 15, v0")
    a(f"v_add_u32 v{t0}, s{sT0}, v{t0}")
    for T in range(4):
        adr = vEA + T
        a(f"v_add_u32 v{t1}, {16*T}, v{t0}")
        a(f"v_mul_u32_u24 v{t2}, 3277, v{t1}")
        a(f"v_lshrrev_b32 v{t2}, 16, v{t2}")
        a(f"v_mul_u32_u24 v{adr}, 20, v{t2}")
        a(f"v_sub_u32 v{t1}, v{t1}, v{adr}")
        a(f"v_mul_lo_u32 v{adr}, v{t2}, s{sT4}")
        a(f"v_and_b32 v{t2}, 0x13, v{t1}")
        a(f"v_bfe_u32 v{t4}, v{t1}, 2, 1")
        a(f"v_lshl_add_u32 v{t2}, v{t4}, 3, v{t2}")
        a(f"v_bfe_u32 v{t4}, v{t1}, 3, 1")
        a(f"v_lshl_add_u32 v{t2}, v{t4}, 2, v{t2}")
        a(f"v_lshl_add_u32 v{adr}, v{t2}, 4, v{adr}")
        a(f"v_add_u32 v{adr}, v{adr}, v{t3}")

def pp_setup(a, base, tt):
    t0, t1, t2, t3, t4 = tt
    L = a.newlabel("pp")
    a(f"s_lshr_b32 s{sT4}, s{sT3}, 2")
    a(f"s_and_b32 s{sT5}, s{sT3}, 3")
    a(f"s_mul_i32 s{sPPC}, s{sT5}, 320")
    a(f"s_cmp_ge_u32 s{sT4}, 48")
    a(f"s_cselect_b32 s{S_M2}, s{P_WO}, s{P_W2}")
    a(f"s_cselect_b32 s{S_M2+1}, s{P_WO+1}, s{P_W2+1}")
    a(f"s_mov_b32 s{S_M2+2}, 1966080")
    a(f"s_cselect_b32 s{S_M2+2}, 819200, s{S_M2+2}")
    a(f"s_mov_b32 s{S_M2+3}, 0x00020000")
    for rep in range(2):
        a(f"s_lshl_b32 s{sT0}, s{sWAVE}, 6")
        a(f"v_add_u32 v{t0}, s{sT0}, v0")
        if rep: a(f"v_add_u32 v{t0}, 512, v{t0}")
        a(f"v_mul_u32_u24 v{t1}, 3277, v{t0}")
        a(f"v_lshrrev_b32 v{t1}, 16, v{t1}")
        a(f"v_mul_u32_u24 v{t2}, 20, v{t1}")
        a(f"v_sub_u32 v{t2}, v{t0}, v{t2}")
        a(f"s_cmp_ge_u32 s{sT4}, 48")
        a(f"s_cbranch_scc1 {L}_wo{rep}")
        a(f"s_lshl_b32 s{sT0}, s{sT4}, 5")
        a(f"v_add_u32 v{t1}, s{sT0}, v{t1}")
        a(f"s_branch {L}_go{rep}")
        a.label(f"{L}_wo{rep}")
        a(f"v_lshrrev_b32 v{t3}, 3, v{t1}")
        a(f"s_cmp_ge_u32 s{sT4}, 64")
        a(f"s_cbranch_scc1 {L}_rem{rep}")
        a(f"s_sub_u32 s{sT0}, s{sT4}, 48")
        a(f"s_lshl_b32 s{sT0}, s{sT0}, 2")
        a(f"v_add_u32 v{t3}, s{sT0}, v{t3}")
        a(f"v_lshrrev_b32 v{t4}, 1, v{t3}")
        a(f"v_mul_u32_u24 v{t4}, 20, v{t4}")
        a(f"v_and_b32 v{t3}, 1, v{t3}")
        a(f"v_lshl_add_u32 v{t4}, v{t3}, 3, v{t4}")
        a(f"v_and_b32 v{t1}, 7, v{t1}")
        a(f"v_add_u32 v{t1}, v{t4}, v{t1}")
        a(f"s_branch {L}_go{rep}")
        a.label(f"{L}_rem{rep}")
        a(f"s_sub_u32 s{sT0}, s{sT4}, 64")
        a(f"s_lshl_b32 s{sT0}, s{sT0}, 2")
        a(f"v_add_u32 v{t3}, s{sT0}, v{t3}")
        a(f"v_bfe_u32 v{t4}, v{t1}, 2, 1")
        a(f"v_lshl_add_u32 v{t4}, v{t3}, 1, v{t4}")
        a(f"v_mul_u32_u24 v{t4}, 20, v{t4}")
        a(f"v_and_b32 v{t1}, 3, v{t1}")
        a(f"v_add3_u32 v{t1}, v{t4}, v{t1}, 16")
        a.label(f"{L}_go{rep}")
        a(f"v_mul_u32_u24 v{t1}, 1280, v{t1}")
        a(f"v_lshl_add_u32 v{vPP+rep}, v{t2}, 4, v{t1}")
    a(f"s_cmp_ge_u32 s{sT4}, 24")
    a(f"s_cselect_b32 s{sT0}, 10, 0")
    a(f"s_cmp_ge_u32 s{sT4}, 48")
    a(f"s_cselect_b32 s{sT0}, -24, s{sT0}")
    a(f"s_cmp_ge_u32 s{sT4}, 58")
    a(f"s_cselect_b32 s{sT0}, 0, s{sT0}")
    a(f"s_add_u32 s{sT4}, s{sT4}, s{sT0}")
    a(f"s_mul_i32 s{sT5}, s{sT5}, 136")
    a(f"s_add_u32 s{sT4}, s{sT4}, s{sT5}")
    a(f"v_lshrrev_b32 v{t1}, 4, v0")
    a(f"v_bfe_u32 v{t2}, v0, 2, 2")
    a(f"v_lshl_add_u32 v{t1}, v{t1}, 3, v{t2}")
    a(f"v_mul_u32_u24 v{t1}, 320, v{t1}")
    a(f"v_and_b32 v{t0}, 3, v0")
    for rep, sd in enumerate((sPD0, sPD1)):
        a(f"s_add_u32 s{sT0}, s{sWAVE}, {8*rep}")
        a(f"s_cmp_ge_u32 s{sT0}, 5")
        a(f"s_cselect_b32 s{sT1}, 1, 0")
        a(f"s_mul_i32 s{sT2}, s{sT1}, 5")
        a(f"s_sub_u32 s{sT0}, s{sT0}, s{sT2}")
        a(f"s_lshr_b32 s{sT2}, s{sT0}, 1")
        a(f"s_lshl_b32 s{sT2}, s{sT2}, 6")
        a(f"s_and_b32 s{sT5}, s{sT0}, 1")
        a(f"s_lshl_b32 s{sT5}, s{sT5}, 3")
        a(f"s_add_u32 s{sT2}, s{sT2}, s{sT5}")
        a(f"s_mul_i32 s{sT5}, s{sT1}, 160")
        a(f"s_add_u32 s{sT2}, s{sT2}, s{sT5}")
        a(f"s_add_u32 s{sT2}, s{sT2}, {base}")
        a(f"s_cmp_eq_u32 s{sT0}, 4")
        a(f"s_cselect_b32 s{sT5}, 3, 4")
        a(f"v_lshlrev_b32 v{t2}, s{sT5}, v{t0}")
        a(f"v_add3_u32 v{vPF+rep}, v{t2}, v{t1}, s{sT2}")
        a(f"s_mul_i32 s{sT1}, s{sT1}, 68")
        a(f"s_add_u32 s{sT1}, s{sT1}, s{sT4}")
        a(f"s_mul_i32 s{sT1}, s{sT1}, 5120")
        a(f"s_lshl_b32 s{sT0}, s{sT0}, 10")
        a(f"s_add_u32 s{sT1}, s{sT1}, s{sT0}")
        a(f"s_add_u32 s{sd}, s{sT1}, {WF_OFF}")

def lt2(a, body):
    L = a.newlabel("lt2")
    a(f"s_cmp_ge_u32 s{sWAVE}, 2")
    a(f"s_cbranch_scc1 {L}")
    body()
    a.label(L)

def pp_dma(a, base):
    a(f"s_lshl_b32 s{sT0}, s{sWAVE}, 10")
    a(f"s_add_u32 m0, s{sT0}, {base}")
    a("s_nop 0")
    a.vmem(f"buffer_load_dwordx4 v{vPP}, {srd(S_M2)}, s{sPPC} offen lds", "pp")
    def second():
        a(f"s_add_u32 m0, s{sT0}, {base + 8192}")
        a("s_nop 0")
        a.vmem(f"buffer_load_dwordx4 v{vPP+1}, {srd(S_M2)}, s{sPPC} offen lds", "pp", definite=False)
    lt2(a, second)

def pp_finish(a, tmp, l16):
    a(f"v_lshlrev_b32 v{l16}, 4, v0")
    def one(rep):
        a(f"ds_read_b64_tr_b16 {vr(tmp,2)}, v{vPF+rep}")
        a(f"ds_read_b64_tr_b16 {vr(tmp+2,2)}, v{vPF+rep} offset:1280")
        a.lg_all()
        a.vmem(f"buffer_store_dwordx4 {vr(tmp,4)}, v{l16}, {srd(S_WS)}, s{(sPD0, sPD1)[rep]} offen sc1", "st1", definite=(rep == 0))
    one(0)
    lt2(a, lambda: one(1))

GW_LDS = 151552
vGW = vTA
def gate_start(a):
    for rep in range(2):
        a(f"s_mov_b32 m0, {GW_LDS + rep*1280}")
        a(f"v_lshrrev_b32 v{vGW}, 4, v0")
        a.vmem(f"buffer_load_dwordx4 v36, {srd(S_M1)}, 0 offen lds", "gw")
        a.vmem(f"buffer_load_dword v37, {srd(S_M1)}, 0 offen offset:1024 lds", "gw")
    a(f"s_lshl_b32 s{sT0}, s{sROT}, 7")
    a(f"s_add_u32 s{sT0}, s{sT0}, {GW_LDS}")
    a(f"v_lshlrev_b32 v{vGW}, 4, v{vGW}")
    a(f"v_add_u32 v{vGW}, s{sT0}, v{vGW}")

def gate_finish(a):
    a.c("---- gate")
    acc = ACC
    a(f"s_mov_b32 vcc_lo, 0xffff0000")
    a(f"s_mov_b32 vcc_hi, 0")
    a("s_nop 4")
    a(f"v_cndmask_b32 v{acc}, v{ACC}, v{ACC+16}, vcc")
    a(f"v_cvt_pk_bf16_f32 v{acc}, v{acc}, v{acc}")
    a(f"v_and_b32 v{acc}, 0xffff0000, v{acc}")
    a(f"v_mul_f32 v{acc}, {f32hex(-math.log2(math.e))}, v{acc}")
    a(f"v_exp_f32 v{acc}, v{acc}")
    a("s_nop 0")
    a(f"v_add_f32 v{acc}, 1.0, v{acc}")
    a(f"v_rcp_f32 v{acc}, v{acc}")
    a("s_nop 0")
    a(f"v_cvt_pk_bf16_f32 v{acc}, v{acc}, v{acc}")
    a(f"v_and_b32 v76, 0xffff0000, v{acc}")
    a(f"s_and_b32 s{sT0}, s{sWAVE}, 3")
    a(f"s_lshl_b32 s{sT1}, s{sM}, 2")
    a(f"s_add_u32 s{sT0}, s{sT0}, s{sT1}")
    a(f"s_lshl_b32 s{sT0}, s{sT0}, 7")
    a(f"s_add_u32 s{sT0}, s{sT0}, {G_OFF}")
    a(f"v_lshlrev_b32 v77, 2, v0")
    a(f"s_mov_b32 exec_hi, 0")
    a.vmem(f"buffer_store_dword v76, v77, {srd(S_WS)}, s{sT0} offen sc1", "st1", definite=False)
    a("s_mov_b32 exec_hi, -1")

def p1_reads(s, mode):
    out = []
    buf = WF + (s % 2) * 16
    if s < 20:
        c, ks = s // 2, s % 2
        base = (c % 2) * 32768
        for b in range(2):
            out.append(("x", f"ds_read_b128 {vr(XR+(s*2+b)*4,4)}, v{vXA+ks} offset:{base + b*4096}"))
        if mode != "x":
            for T in range(4):
                for r2 in range(2):
                    out.append((T, f"ds_read_b64_tr_b16 {vr(buf+T*4+r2*2,2)}, v{vTA+T} offset:{base + 2048 + ks*16384 + r2*1024}"))
        else:
            out.append((0, f"ds_read_b128 {vr(buf,4)}, v{vGW} offset:{s*64}"))
    else:
        sf = s - 20
        c, ks = 10 + sf // 4, sf % 4
        base = (c % 2) * 32768
        for T in range(3):
            for r2 in range(2):
                out.append((T, f"ds_read_b64_tr_b16 {vr(buf+T*4+r2*2,2)}, v{vTB+T} offset:{base + ks*6144 + r2*1536}"))
    return out

def p1_mfma(s, T, b, mode):
    buf = WF + (s % 2) * 16
    d = vr(ACC + (b*4+T)*4, 4)
    w = vr(buf + T*4, 4); x = vr(XR + ((s % 20)*2+b)*4, 4)
    cin = "0" if s == 0 else d
    if mode == "v" and s < 20: return f"v_mfma_f32_16x16x32_bf16 {d}, {x}, {w}, {cin}"
    return f"v_mfma_f32_16x16x32_bf16 {d}, {w}, {x}, {cin}"

def p1_stage(a, s, mode, pre=None, post=None, budget=None):
    if s < 20: start = (s % 2 == 0); c = s // 2
    elif s < 40: start = ((s - 20) % 4 == 0); c = 10 + (s - 20) // 4
    else: start = False; c = None
    if start:
        emit_list(a, a.pend); a.pend = []
        if pre: pre()
        a.wait_vm(f"c{c}")
        a("s_barrier")
        if OPT["fine"] or c in (0, 1, 5, 10, 11, 14): a.stamp(f"p1 chunk{c}")
        if post and c == 0: a.pend += post()
        if c + 2 < 15: a.pend += p1_dma_list(c + 2, mode)
        if post and c: a.pend += post()
    rd = p1_reads(s, mode) if s < 40 else []
    nT = 0 if s == 0 else ((1 if mode == "x" else 4) if s - 1 < 20 else 3)
    if budget is None: budget = 2 if s <= 20 else 1
    xr = [r for g, r in rd if g == "x"]
    nxt = s + 1
    flip = (nxt < 20 and nxt % 4 == 0) or (20 < nxt < 40 and (nxt - 20) % 8 == 0)
    for r in xr: a.ds(r, f"r{s}x")
    if flip and s < 20:
        a(f"v_xor_b32 v{vXA}, 0x10000, v{vXA}")
        a(f"v_xor_b32 v{vXA+1}, 0x10000, v{vXA+1}")
    for T in range(4):
        if T < nT:
            a.wait_lg([f"r{s-1}x", f"r{s-1}t{T}"])
            a(p1_mfma(s-1, T, 0, mode))
        tr = [r for g, r in rd if g == T]
        for r in tr[:1]: a.ds(r, f"r{s}t{T}")
        if T < nT: a(p1_mfma(s-1, T, 1, mode))
        for r in tr[1:]: a.ds(r, f"r{s}t{T}")
        if flip and tr and mode != "x" and s < 20: a(f"v_xor_b32 v{vTA+T}, 0x10000, v{vTA+T}")
        if flip and tr and s >= 20: a(f"v_xor_b32 v{vTB+T}, 0x10000, v{vTB+T}")
        if T >= 1 and a.pend and budget:
            emit_list(a, take(a.pend)); budget -= 1

def qkv_pack(a, mode):
    for T in (0, 1, 3, 2):
        o = PK[T]
        if mode == "q":
            for b in range(2):
                for r in range(4):
                    x = ACC + (b*4+T)*4 + r
                    a(f"v_mul_f32 v{x}, s{sScale}, v{x}")
            for b in range(2):
                x = ACC + (b*4+T)*4
                a(f"v_cvt_pk_bf16_f32 v{o+2*b}, v{x}, v{x+1}")
                a(f"v_cvt_pk_bf16_f32 v{o+2*b+1}, v{x+2}, v{x+3}")
        else:
            for r in range(4):
                a(f"v_cvt_pk_bf16_f32 v{o+r}, v{ACC + T*4 + r}, v{ACC + (4+T)*4 + r}")
        if T in (0, 1) or not OPT["spread"]: a.vmem(f"buffer_store_dwordx4 {vr(o,4)}, v{vEA+T}, {srd(S_WS)}, s{sEPI} offen sc1", "stq", definite=False)

def late_store(a, T):
    L = a.newlabel("ls")
    a(f"s_cmp_eq_u32 s{sJ}, 15")
    a(f"s_cbranch_scc1 {L}")
    a.vmem(f"buffer_store_dwordx4 {vr(PK[T],4)}, v{vEA+T}, {srd(S_WS)}, s{sEPI} offen sc1", "stq", definite=False)
    a.label(L)

def ffn1_init(a):
    a.wait_vm("b1")
    for T in range(3):
        for r in range(4):
            src = vB1 + 2*T + r//2
            d0 = ACC + T*4 + r; d1 = ACC + (4+T)*4 + r
            if r % 2 == 0: a(f"v_lshlrev_b32 v{d0}, 16, v{src}")
            else: a(f"v_and_b32 v{d0}, 0xffff0000, v{src}")
            a(f"v_mov_b32 v{d1}, v{d0}")

def ffn1_epilogue(a):
    a.c("---- FFN1 epilogue")
    t0, t1 = HS + 12, HS + 13
    a(f"s_and_b32 s{sT0}, s{sWAVE}, 3")
    a(f"s_lshl_b32 s{sT0}, s{sT0}, 1")
    a(f"s_lshl_b32 s{sT1}, s{sM}, 3")
    a(f"s_add_u32 s{sT0}, s{sT0}, s{sT1}")
    a(f"s_mul_i32 s{sT0}, s{sT0}, {AF_T}")
    a(f"s_lshr_b32 s{sT1}, s{sWAVE}, 2")
    a(f"s_mul_i32 s{sT1}, s{sT1}, 1536")
    a(f"s_mul_i32 s{sT2}, s{sJ}, 3072")
    a(f"s_add_u32 s{sT0}, s{sT0}, s{sT1}")
    a(f"s_add_u32 s{sT0}, s{sT0}, s{sT2}")
    a(f"s_cmp_ge_u32 s{sJ}, 8")
    a(f"s_cselect_b32 s{sT1}, 10240, 0")
    a(f"s_add_u32 s{sT0}, s{sT0}, s{sT1}")
    a(f"s_add_u32 s{sEPI}, s{sT0}, {AF_OFF}")
    a(f"v_bfe_u32 v{t0}, v0, 4, 1")
    a(f"v_mul_u32_u24 v{t0}, {AF_T}, v{t0}")
    a(f"v_lshrrev_b32 v{t1}, 5, v0")
    a(f"v_lshl_add_u32 v{t0}, v{t1}, 8, v{t0}")
    a(f"v_and_b32 v{t1}, 15, v0")
    a(f"v_lshl_add_u32 v{t0}, v{t1}, 4, v{t0}")
    for T in range(3):
        o = HS + T*4
        for b in range(2):
            for r in range(4):
                x = ACC + (b*4+T)*4 + r
                a(f"v_max_f32 v{x}, 0, v{x}")
        for b in range(2):
            for r in range(4):
                x = ACC + (b*4+T)*4 + r
                a(f"v_mul_f32 v{x}, v{x}, v{x}")
        for b in range(2):
            x = ACC + (b*4+T)*4
            a(f"v_cvt_pk_bf16_f32 v{o+2*b}, v{x}, v{x+1}")
            a(f"v_cvt_pk_bf16_f32 v{o+2*b+1}, v{x+2}, v{x+3}")
        a("s_nop 1")
        a(f"v_permlane16_swap_b32 v{o}, v{o+2}")
        a(f"v_permlane16_swap_b32 v{o+1}, v{o+3}")
        if not OPT["hlate"]: emit_list(a, h_store(T))

HS = 200
def h_store(T):
    return [("v", f"buffer_store_dwordx4 {vr(HS+4*T,4)}, v{HS+12}, {srd(S_WS)}, s{sEPI} offen offset:{512*T} sc1", "st1")]

def phase1(a):
    a.stamp("start")
    a.pend = []
    rot_setup(a)
    emit_list(a, p1_dma_list(0))
    pf_setup(a)
    flags_clear(a, 38)
    p1_setup2(a)
    if not OPT["c1late"]: emit_list(a, p1_dma_list(1))
    a.stamp("setup done")
    LV = a.newlabel("vpass"); LX = a.newlabel("xpass"); LJ = a.newlabel("join")
    a(f"s_cmp_eq_u32 s{sJ}, 15")
    a(f"s_cbranch_scc1 {LX}")
    a(f"s_cmp_ge_u32 s{sJ}, 10")
    a(f"s_cbranch_scc1 {LV}")
    save = (list(a.vm), list(a.lg), a.nstamp, len(a.stampnames))
    ends = []
    for mode, lab in (("q", None), ("v", LV), ("x", LX)):
        a.vm, a.lg, a.nstamp = list(save[0]), list(save[1]), save[2]; del a.stampnames[save[3]:]
        if lab: a.label(lab)
        if mode == "x": gate_start(a)
        for s in range(21):
            pre = post = None
            if s == 0:
                if mode == "x": pre = lambda: a.wait_vm("gw")
                post = lambda: (p1_dma_list(1, mode) if OPT["c1late"] else [])
            if s == 2: post = lambda: [("f", lambda: flags_count_in(a, 28))] + ([("f", lambda: pf_x(a, 4, 3, 252))] if OPT["pf"] else [])
            if s == 4 and OPT["pf"]: post = lambda: [("f", lambda: pf_w(a, 5, 4, 253)), ("f", lambda: pf_x(a, 7, 3, 252))]
            if s == 2 * OPT["pf2"]: post = pf_w1
            if s == 12: post = lambda: [("f", lambda: poll(a, "init", 28, 30, "issue"))]
            if s == 18: pre = lambda: poll(a, "init", 28, 30, "check")
            p1_stage(a, s, mode, pre=pre, post=post, budget=(3 if s < 8 else None))
            if s == 0:
                for _ in range(3):
                    if a.pend: emit_list(a, take(a.pend))
            if s == 8 and mode != "x": epi_setup(a, mode)
        emit_list(a, a.pend); a.pend = []
        a("s_nop 5")
        if mode != "x":
            qkv_pack(a, mode)
            a(f"s_branch {LJ}")
        else:
            gate_finish(a)
        ends.append((list(a.vm), list(a.lg)))
    a.label(LJ)
    common = set.intersection(*[set(t for t, d in e[0] if d) for e in ends])
    a.vm = [(t, d if t in common else False) for t, d in ends[0][0]] + [("st1", False)]
    a.lg = list(ends[0][1])
    assert ends[2][1] == a.lg and ends[1][1] == a.lg, (ends[2][1], a.lg)
    a.stamp("p1 qkv done")
    a("s_nop 1")
    ffn1_init(a)
    sA = 20 + 4 * (OPT["abar"] - 10)
    for s in range(21, 41):
        pre = post = None
        if OPT["spread"] and s in (21, 22): a.pend.insert(0, ("f", (lambda T: lambda: late_store(a, T))(3 if s == 21 else 2)))
        if s == sA:
            pre = lambda: wait_st(a, "stq")
            post = lambda: [("f", lambda: flag_set(a, 0, 92))]
        if s == OPT["apoll"]: a.pend.append(("f", lambda: poll(a, "A", 28, 92, "issue")))
        if s == 40:
            emit_list(a, a.pend); a.pend = []
            att_setup(a)
            poll(a, "A", 28, 92, "check")
            a("s_barrier")
            a.stamp("p1 A seen")
            att_dma(a, 0)
            att_qload(a)
            att_dma(a, 1)
        p1_stage(a, s, "q", pre, post, budget=2)
    a("s_nop 7")
    a.stamp("p1 ffn1 mfma done")
    ffn1_epilogue(a)
    a.stamp("p1 end")

def second_unit(a, part):
    L = a.newlabel("su")
    a(f"s_cmp_lg_u32 s{sJ}, 15")
    a(f"s_cbranch_scc1 {L}")
    st = list(a.vm); lg = list(a.lg)
    if part == 0:
        a(f"s_add_u32 s{sT3}, s{sM}, 256")
        pp_setup(a, PP_LDS + 10240, (232, 233, 234, 235, 236))
        pp_dma(a, PP_LDS + 10240)
        a.vm = st + [("pp2", False), ("pp2", False)]
    else:
        pp_finish(a, 244, 248)
        a.vm = st + [("st1", False), ("st1", False)]
    a.lg = lg
    a.label(L)

SA, SB, OA, OB, PB, VB, KB, QA, QB = 8, 24, 40, 56, 72, 80, 96, 108, 114
vKA, vKB, vVA, vD4, vD1, vAT0, vAT1 = 1, 2, 3, 4, 5, 6, 7
vVB = vAT1
KVL = 0
KVR = 3
KV_C = 4 * KV_T
XCH = 12288

def att_dma_list(c):
    slot = KVL + (c % KVR) * 4 * KV_L
    return [("s", f"s_add_u32 m0, s{sKVM}, {slot}"),
            ("s", f"s_add_u32 s{sT0}, s{sKVG}, {c*KV_C}"),
            ("v", f"buffer_load_dwordx4 v{vD4}, {srd(S_WS)}, s{sT0} offen sc1 lds", f"kv{c}"),
            ("v", f"buffer_load_dword v{vD1}, {srd(S_WS)}, s{sT0} offen offset:1024 sc1 lds", f"kv{c}")]
def att_dma(a, c): emit_list(a, att_dma_list(c))

def att_setup(a):
    a.c("---- attention setup")
    a(f"s_lshl_b32 s{sH}, s{sXCD}, 2")
    a(f"s_add_u32 s{sH}, s{sH}, s{sHI}")
    a(f"s_mov_b32 s{sQB}, s{sLO}")
    a(f"s_lshr_b32 s{sKVM}, s{sWAVE}, 1")
    a(f"s_lshl_b32 s{sKVM}, s{sKVM}, 9")
    a(f"s_mul_i32 s{sT0}, s{sWAVE}, 1280")
    a(f"s_add_u32 s{sKVM}, s{sKVM}, s{sT0}")
    a(f"s_mul_i32 s{sKVG}, s{sH}, {KV_H}")
    a(f"s_add_u32 s{sKVG}, s{sKVG}, s{sT0}")
    a(f"s_add_u32 s{sKVG}, s{sKVG}, {KV_OFF}")
    a(f"s_lshr_b32 s{sKH}, s{sWAVE}, 2")
    a(f"v_lshlrev_b32 v{vD4}, 4, v0")
    a(f"v_lshlrev_b32 v{vD1}, 2, v0")
    a(f"s_mov_b32 s{sEXV}, 0x000fffff")
    a(f"s_mov_b32 s{sEXV+1}, 0x000fffff")

QL = 40960
def att_qload(a):
    a(f"s_lshl_b32 s{sT1}, s{sQB}, 3")
    a(f"s_add_u32 s{sT1}, s{sT1}, s{sWAVE}")
    a(f"s_mul_i32 s{sT1}, s{sT1}, 1280")
    a(f"s_mul_i32 s{sT3}, s{sH}, 81920")
    a(f"s_add_u32 s{sT1}, s{sT1}, s{sT3}")
    a(f"s_mul_i32 s{sT0}, s{sWAVE}, 1280")
    a(f"s_add_u32 m0, s{sT0}, {QL}")
    if QF_OFF: a(f"s_add_u32 s{sT1}, s{sT1}, {QF_OFF}")
    a("s_nop 0")
    a.vmem(f"buffer_load_dwordx4 v{vD4}, {srd(S_WS)}, s{sT1} offen sc1 lds", "kv0")
    a.vmem(f"buffer_load_dword v{vD1}, {srd(S_WS)}, s{sT1} offen offset:1024 sc1 lds", "kv0")

def att_qread(a):
    t0, t1 = SA, SA + 1
    a(f"v_and_b32 v{t0}, 9, v0")
    a(f"v_bfe_u32 v{t1}, v0, 1, 1")
    a(f"v_lshl_add_u32 v{t0}, v{t1}, 2, v{t0}")
    a(f"v_bfe_u32 v{t1}, v0, 2, 1")
    a(f"v_lshl_add_u32 v{t0}, v{t1}, 1, v{t0}")
    a(f"v_lshlrev_b32 v{t0}, 4, v{t0}")
    a(f"v_bfe_u32 v{t1}, v0, 4, 1")
    a(f"v_lshl_add_u32 v{t0}, v{t1}, 3, v{t0}")
    a(f"v_lshrrev_b32 v{t1}, 5, v0")
    a(f"v_lshl_add_u32 v{t1}, v{t1}, 8, v{t0}")
    a(f"s_and_b32 s{sT0}, s{sWAVE}, 3")
    a(f"s_lshl_b32 s{sT0}, s{sT0}, 1")
    a(f"s_add_u32 s{sT1}, s{sT0}, s{sKH}")
    a(f"s_xor_b32 s{sT2}, s{sT1}, 1")
    a(f"s_mul_i32 s{sT1}, s{sT1}, 1280")
    a(f"s_mul_i32 s{sT2}, s{sT2}, 1280")
    a(f"v_add_u32 v{SA+2}, s{sT1}, v{t0}")
    a(f"v_add_u32 v{SA+3}, s{sT1}, v{t1}")
    a(f"v_add_u32 v{SA+4}, s{sT2}, v{t0}")
    a(f"v_add_u32 v{SA+5}, s{sT2}, v{t1}")
def q_reads():
    out = []
    for k, Q in ((0, QA), (1, QB)):
        out += [("d", f"ds_read2st64_b64 {vr(Q,4)}, v{SA+3+2*k} offset0:{QL//512} offset1:{QL//512+1}", "q"),
                ("d", f"ds_read_b64 {vr(Q+4,2)}, v{SA+2+2*k} offset:{QL+1024}", "q")]
    return out

def att_setup2(a):
    a(f"s_mul_i32 s{sT0}, s{sKH}, {2*KV_L}")
    if KVL: a(f"s_add_u32 s{sT0}, s{sT0}, {KVL}")
    a(f"v_and_b32 v{vKB}, 31, v0")
    a(f"v_lshrrev_b32 v{vKA}, 5, v0")
    a(f"v_mul_u32_u24 v{PB}, 320, v{vKA}")
    a(f"v_lshl_add_u32 v{vVA}, v{vKB}, 4, v{PB}")
    a(f"v_add_u32 v{vVB}, 640, v{vVA}")
    a(f"v_cmp_gt_u32 vcc, 20, v{vKB}")
    a(f"v_mov_b32 v{PB}, 1280")
    a(f"v_lshlrev_b32 v{vKB}, 3, v{vKB}")
    a(f"v_cndmask_b32 v{vVA}, v{PB}, v{vVA}, vcc")
    a(f"v_cndmask_b32 v{vVB}, v{PB}, v{vVB}, vcc")
    a(f"v_add_u32 v{vVA}, s{sT0}, v{vVA}")
    a(f"v_add_u32 v{vVB}, s{sT0}, v{vVB}")
    a(f"v_add_u32 v{vKB}, s{sT0}, v{vKB}")
    a(f"v_lshl_add_u32 v{vKA}, v{vKA}, 8, v{vKB}")
    for r in range(4): a(f"v_mov_b32 v{PB+4+r}, 0x3f803f80")
    a(f"v_min_u32 v{PB}, 11, v0")
    a(f"v_mul_u32_u24 v{PB}, {KV_L}, v{PB}")
    a.ds(f"ds_write_b128 v{PB}, {vr(PB+4,4)} offset:{KVL+2560}", "ones")
    for r in range(16):
        a(f"v_mov_b32 v{OA+r}, 0")
        a(f"v_mov_b32 v{OB+r}, 0")

def k_reads(t):
    c, e = t >> 1, t & 1
    tp = (c % KVR) * 4 + e
    kb = KB + (t % 2) * 6
    return [("d", f"ds_read2st64_b64 {vr(kb,4)}, v{vKA} offset0:{6*tp} offset1:{6*tp+1}", f"k{t}"),
            ("d", f"ds_read_b64 {vr(kb+4,2)}, v{vKB} offset:{tp*KV_L+1024}", f"k{t}")]
def v_reads(t):
    c, e = t >> 1, t & 1
    tp = (c % KVR) * 4 + e
    vb = VB + (t % 2) * 8
    return [("d", f"ds_read_b128 {vr(vb+4*kk,4)}, v{(vVA, vVB)[kk]} offset:{tp*KV_L+1280}", f"v{t}") for kk in range(2)]
def qk8(t, S, Q):
    kb = KB + (t % 2) * 6
    return f"v_mfma_f32_32x32x8_bf16 {vr(S,16)}, {vr(kb+4,2)}, {vr(Q+4,2)}, 0"
def qk16(t, S, Q):
    kb = KB + (t % 2) * 6
    return f"v_mfma_f32_32x32x16_bf16 {vr(S,16)}, {vr(kb,4)}, {vr(Q,4)}, {vr(S,16)}"
def pv(t, O, kk, pbuf):
    vb = VB + (t % 2) * 8 + 4 * kk
    return f"v_mfma_f32_32x32x16_bf16 {vr(O,16)}, {vr(vb,4)}, {vr(PB+4*pbuf,4)}, {vr(O,16)}"

def att_group(a, S, pbuf, m1, m2, s1, s2):
    p = PB + 4 * pbuf
    if m1: a(m1)
    emit_list(a, s1)
    for r in range(4): a(f"v_exp_f32 v{S+r}, v{S+r}")
    a(f"v_cvt_pk_bf16_f32 v{p}, v{S}, v{S+1}")
    a(f"v_cvt_pk_bf16_f32 v{p+1}, v{S+2}, v{S+3}")
    if m2: a(m2)
    emit_list(a, s2)
    for r in range(4, 8): a(f"v_exp_f32 v{S+r}, v{S+r}")
    a(f"v_cvt_pk_bf16_f32 v{p+2}, v{S+4}, v{S+5}")
    a(f"v_cvt_pk_bf16_f32 v{p+3}, v{S+6}, v{S+7}")

def attention_main(a, extra=None, pre=None):
    NT = 32
    def bar(c):
        def f():
            if pre: pre(c)
            a.wait_vm(f"kv{c}", lg0=True)
            a("s_barrier")
            if c in (0, 1, 15) or OPT["fine"]: a.stamp(f"att chunk{c}")
        return ("f", f)
    att_qread(a)
    emit_list(a, [bar(0)])
    emit_list(a, q_reads() + k_reads(0) + v_reads(0) + k_reads(1))
    pp_dma(a, PP_LDS)
    att_dma(a, 2)
    a.wait_lg("q")
    a("s_mov_b32 exec_lo, 0")
    for Q in (QA, QB):
        a(f"v_mov_b32 v{Q+4}, 0")
        a(f"v_mov_b32 v{Q+5}, 0")
    a("s_mov_b32 exec_lo, -1")
    a.wait_lg("k0")
    a("s_nop 0")
    a(qk8(0, SA, QA))
    a("s_nop 9")
    a(qk16(0, SA, QA))
    a("s_nop 11")
    pend = []
    for t in range(NT):
        sl = {k: [] for k in ("g0", "a", "b", "c", "g2", "d", "e", "f")}
        if t + 1 < NT:
            vv = v_reads(t + 1)
            sl["a"].append(vv[0]); sl["c"].append(vv[1])
        sl["b"].append(("f", (lambda tt: lambda: a.wait_lg([f"v{tt}", f"k{tt+1}"]))(t)))
        if t + 2 < NT:
            kk = k_reads(t + 2)
            if t % 2 == 0:
                c = t // 2 + 1
                sl["e"].append(bar(c))
                if extra and c == 2: pend += extra(c)
                if c + 2 < 16: pend += att_dma_list(c + 2)
                if extra and c != 2: pend += extra(c)
            sl["e"].append(kk[0]); sl["f"].append(kk[1])
        if OPT["prio"]:
            if t % 2 == 1:
                sl["g0"].append(("s", "s_setprio 3")); sl["g2"].append(("s", "s_setprio 2"))
            else:
                sl["g0"].append(("s", "s_setprio 1")); sl["g2"].append(("s", "s_setprio 0"))
        order = ["f"] if t % 2 == 0 else ["g0", "a", "b", "c", "g2", "d", "e", "f"]
        while pend and order:
            k = order.pop(0)
            nops = sum(1 for it in pend if it[0] != "s")
            sl[k] += take(pend)
            if t % 2 == 1 and nops > len(order) + 1 and pend: sl[k] += take(pend)
        assert not (t % 2 == 1 and pend), pend
        last = (t == NT - 1)
        att_group(a, SA, 0, qk8(t, SB, QB), pv(t-1, OB, 1, 1) if t > 0 else None, sl["g0"], sl["a"])
        att_group(a, SA+8, 1, qk16(t, SB, QB), pv(t, OA, 0, 0), sl["b"], sl["c"])
        att_group(a, SB, 0, None if last else qk8(t+1, SA, QA), pv(t, OA, 1, 1), sl["g2"], sl["d"])
        att_group(a, SB+8, 1, None if last else qk16(t+1, SA, QA), pv(t, OB, 0, 0), sl["e"], sl["f"])
    a("s_nop 1")
    a(pv(NT-1, OB, 1, 1))
    if OPT["prio"]: a("s_setprio 0")

def att_finish_store(a):
    r = SB
    a(f"v_rcp_f32 v{r}, v{OA+12}")
    a("s_nop 0")
    for i in range(12): a(f"v_mul_f32 v{OA+i}, v{r}, v{OA+i}")
    for i in range(6): a(f"v_cvt_pk_bf16_f32 v{SA+i}, v{OA+2*i}, v{OA+2*i+1}")
    a.vmem(f"buffer_store_dwordx4 {vr(SA,4)}, v{vAT0}, {srd(S_WS)}, s{sT4} offen sc1", "sto")
    a("s_mov_b32 exec_hi, 0")
    a.vmem(f"buffer_store_dwordx2 {vr(SA+4,2)}, v{vAT1}, {srd(S_WS)}, s{sT5} offen sc1", "sto")
    a("s_mov_b32 exec_hi, -1")

def att_epilogue(a):
    a.c("---- attention epilogue")
    t0, t1 = vAT0, vAT1
    a(f"s_mul_i32 s{sT0}, s{sWAVE}, 3328")
    a(f"s_add_u32 s{sT0}, s{sT0}, {XCH}")
    a(f"v_add_u32 v{t0}, s{sT0}, v{vD4}")
    a(f"v_lshlrev_b32 v{PB}, 2, v0")
    a(f"v_add_u32 v{PB+1}, s{sT0}, v{PB}")
    a(f"s_xor_b32 s{sT1}, s{sWAVE}, 4")
    a(f"s_mul_i32 s{sT1}, s{sT1}, 3328")
    a(f"s_add_u32 s{sT1}, s{sT1}, {XCH}")
    a(f"v_add_u32 v{t1}, s{sT1}, v{vD4}")
    a(f"v_add_u32 v{PB+2}, s{sT1}, v{PB}")
    a("s_nop 3")
    for i in range(3): a.ds(f"ds_write_b128 v{t0}, {vr(OB+4*i,4)} offset:{1024*i}", "x")
    a.ds(f"ds_write_b32 v{PB+1}, v{OB+12} offset:3072", "x")
    a.lg_all()
    a("s_barrier")
    for i in range(3): a.ds(f"ds_read_b128 {vr(SA+4*i,4)}, v{t1} offset:{1024*i}", "x")
    a.ds(f"ds_read_b32 v{SA+12}, v{PB+2} offset:3072", "x")
    a(f"s_and_b32 s{sT0}, s{sWAVE}, 3")
    a(f"s_lshl_b32 s{sT0}, s{sT0}, 1")
    a(f"s_lshl_b32 s{sT1}, s{sQB}, 3")
    a(f"s_add_u32 s{sT0}, s{sT0}, s{sT1}")
    a(f"s_add_u32 s{sT0}, s{sT0}, s{sKH}")
    a(f"s_mul_i32 s{sT0}, s{sT0}, {2*AF_T}")
    a(f"s_add_u32 s{sT0}, s{sT0}, {AF_OFF}")
    a(f"s_lshl_b32 s{sT4}, s{sH}, 9")
    a(f"s_add_u32 s{sT4}, s{sT4}, s{sT0}")
    a(f"s_cmp_ge_u32 s{sH}, 20")
    a(f"s_cselect_b32 s{sT1}, 24576, 0")
    a(f"s_add_u32 s{sT4}, s{sT4}, s{sT1}")
    a(f"s_add_u32 s{sT4}, s{sT4}, {24*1024}")
    a(f"s_lshr_b32 s{sT5}, s{sH}, 1")
    a(f"s_lshl_b32 s{sT5}, s{sT5}, 8")
    a(f"s_and_b32 s{sT1}, s{sH}, 1")
    a(f"s_lshl_b32 s{sT1}, s{sT1}, 3")
    a(f"s_add_u32 s{sT5}, s{sT5}, s{sT1}")
    a(f"s_add_u32 s{sT5}, s{sT5}, s{sT0}")
    a(f"s_add_u32 s{sT5}, s{sT5}, {64*1024}")
    a(f"v_bfe_u32 v{t1}, v0, 4, 1")
    a(f"v_mul_u32_u24 v{t1}, {AF_T}, v{t1}")
    a(f"v_and_b32 v{t0}, 15, v0")
    a(f"v_lshl_add_u32 v{t1}, v{t0}, 4, v{t1}")
    a(f"v_lshrrev_b32 v{t0}, 5, v0")
    a(f"v_lshl_add_u32 v{t0}, v{t0}, 8, v{t1}")
    a.lg_all()
    for i in range(13): a(f"v_add_f32 v{OA+i}, v{OA+i}, v{SA+i}")
    chk = SB + 1
    a(f"v_mul_f32 v{chk}, 0, v{OA}")
    for i in range(1, 12): a(f"v_fma_f32 v{chk}, v{OA+i}, 0, v{chk}")
    a(f"v_add_f32 v{chk}, v{chk}, v{OA+12}")
    a(f"s_mov_b32 s{sT0}, {f32hex(2.0**40)}")
    a(f"v_cmp_le_f32 vcc, {f32hex(2.0**-24)}, v{chk}")
    a(f"v_cmp_ge_f32 s[{sSAVE}:{sSAVE+1}], s{sT0}, v{chk}")
    a("s_nop 1")
    a(f"s_and_b64 vcc, vcc, s[{sSAVE}:{sSAVE+1}]")
    a(f"s_cmp_eq_u64 vcc, -1")
    LF = a.newlabel("fast")
    a(f"s_cbranch_scc1 {LF}")
    att_fallback(a)
    a.label(LF)
    att_finish_store(a)

def att_fallback(a):
    a.c("---- fallback: exact row max, then shifted exponentials")
    NEG = OB; mx = PB + 7
    kb = KB; vb = VB
    save = (list(a.vm), list(a.lg))
    a.vm_all()
    for r in range(8): a(f"v_mov_b32 v{VB+r}, 0x3f803f80")
    a(f"s_mul_i32 s{sT0}, s{sKH}, {2*KV_L}")
    if KVL: a(f"s_add_u32 s{sT0}, s{sT0}, {KVL}")
    a(f"v_subrev_u32 v{vKA}, s{sT0}, v{vKA}")
    a(f"v_subrev_u32 v{vKB}, s{sT0}, v{vKB}")
    a(f"v_subrev_u32 v{vVA}, s{sT0}, v{vVA}")
    a(f"s_mul_i32 s{sT2}, s{sH}, {KV_H}")
    a(f"s_add_u32 s{sT2}, s{sT2}, {KV_OFF}")
    a(f"v_mov_b32 v{mx}, 0xff800000")
    L1 = a.newlabel("fb1"); L2 = a.newlabel("fb2")
    a(f"s_mov_b32 s{sT1}, 0")
    a.label(L1)
    a(f"s_add_u32 s{sT0}, s{sT2}, s{sT1}")
    a(f"buffer_load_dwordx2 {vr(kb,2)}, v{vKA}, {srd(S_WS)}, s{sT0} offen sc1")
    a(f"buffer_load_dwordx2 {vr(kb+2,2)}, v{vKA}, {srd(S_WS)}, s{sT0} offen offset:512 sc1")
    a(f"buffer_load_dwordx2 {vr(kb+4,2)}, v{vKB}, {srd(S_WS)}, s{sT0} offen offset:1024 sc1")
    a("s_waitcnt vmcnt(0)")
    a(qk8(0, SA, QA))
    a("s_nop 9")
    a(qk16(0, SA, QA))
    a("s_nop 11")
    for i in range(8): a(f"v_max3_f32 v{mx}, v{mx}, v{SA+2*i}, v{SA+2*i+1}")
    a(f"s_add_u32 s{sT1}, s{sT1}, {KV_T}")
    a(f"s_cmp_lt_u32 s{sT1}, {KV_H}")
    a(f"s_cbranch_scc1 {L1}")
    a(f"v_mov_b32 v{mx-1}, v{mx}")
    a("s_nop 1")
    a(f"v_permlane32_swap_b32 v{mx}, v{mx-1}")
    a("s_nop 1")
    a(f"v_max_f32 v{mx}, v{mx}, v{mx-1}")
    for i in range(16):
        a(f"v_sub_f32 v{NEG+i}, 0, v{mx}")
        a(f"v_mov_b32 v{OA+i}, 0")
    a(f"s_mov_b32 s{sT1}, 0")
    a.label(L2)
    a(f"s_add_u32 s{sT0}, s{sT2}, s{sT1}")
    a(f"buffer_load_dwordx2 {vr(kb,2)}, v{vKA}, {srd(S_WS)}, s{sT0} offen sc1")
    a(f"buffer_load_dwordx2 {vr(kb+2,2)}, v{vKA}, {srd(S_WS)}, s{sT0} offen offset:512 sc1")
    a(f"buffer_load_dwordx2 {vr(kb+4,2)}, v{vKB}, {srd(S_WS)}, s{sT0} offen offset:1024 sc1")
    a(f"s_mov_b64 exec, s[{sEXV}:{sEXV+1}]")
    a(f"buffer_load_dwordx4 {vr(vb,4)}, v{vVA}, {srd(S_WS)}, s{sT0} offen offset:1280 sc1")
    a(f"buffer_load_dwordx4 {vr(vb+4,4)}, v{vVA}, {srd(S_WS)}, s{sT0} offen offset:1920 sc1")
    a("s_mov_b64 exec, -1")
    a("s_waitcnt vmcnt(0)")
    a(f"v_mfma_f32_32x32x8_bf16 {vr(SA,16)}, {vr(kb+4,2)}, {vr(QA+4,2)}, {vr(NEG,16)}")
    a("s_nop 9")
    a(qk16(0, SA, QA))
    a("s_nop 11")
    for i in range(16): a(f"v_exp_f32 v{SA+i}, v{SA+i}")
    a("s_nop 0")
    for i in range(8): a(f"v_cvt_pk_bf16_f32 v{PB+i}, v{SA+2*i}, v{SA+2*i+1}")
    a("s_nop 1")
    a(pv(0, OA, 0, 0))
    a(pv(0, OA, 1, 1))
    a(f"s_add_u32 s{sT1}, s{sT1}, {KV_T}")
    a(f"s_cmp_lt_u32 s{sT1}, {KV_H}")
    a(f"s_cbranch_scc1 {L2}")
    a("s_nop 11")
    a.vm, a.lg = save

AC1, AC2, TW = 8, 28, 48
vWL, vWH, vG, vTT0, vTT1 = 1, 2, 3, 6, 7
vB2 = 88
TSLOT = [40960, 81920, 122880, 0]
NS = 34
def HR(s): return 120 + 4*s

def tail_setup(a):
    a.c("---- tail setup")
    a(f"s_lshr_b32 s{sRB}, s{sXCD}, 1")
    a(f"s_lshl_b32 s{sRB}, s{sRB}, 3")
    a(f"s_add_u32 s{sRB}, s{sRB}, s{sLO}")
    a(f"s_and_b32 s{sCG}, s{sXCD}, 1")
    a(f"s_lshl_b32 s{sCG}, s{sCG}, 2")
    a(f"s_add_u32 s{sCG}, s{sCG}, s{sHI}")
    a(f"s_lshr_b32 s{sKH}, s{sWAVE}, 2")
    a(f"s_and_b32 s{sT0}, s{sWAVE}, 3")
    a(f"s_mul_i32 s{sWG}, s{sCG}, 68")
    a(f"s_mul_i32 s{sT1}, s{sKH}, {NS}")
    a(f"s_add_u32 s{sWG}, s{sWG}, s{sT1}")
    a(f"s_add_u32 s{sWG}, s{sWG}, s{sT0}")
    a(f"s_mul_i32 s{sWG}, s{sWG}, 5120")
    a(f"s_add_u32 s{sWG}, s{sWG}, {WF_OFF}")
    a(f"s_lshl_b32 s{sAG}, s{sRB}, 2")
    a(f"s_add_u32 s{sAG}, s{sAG}, s{sT0}")
    a(f"s_mul_i32 s{sAG}, s{sAG}, {AF_T}")
    a(f"s_lshl_b32 s{sT1}, s{sT1}, 10")
    a(f"s_add_u32 s{sAG}, s{sAG}, s{sT1}")
    a(f"s_add_u32 s{sAG}, s{sAG}, {AF_OFF}")
    a(f"s_mul_i32 s{sTWM}, s{sWAVE}, 5120")

def tail_dma_list(u, sreg=None):
    sr = sreg if sreg is not None else sT0
    d = (u != 8)
    out = [("s", f"s_add_u32 m0, s{sTWM}, {TSLOT[u%4]}"), ("s", f"s_add_u32 s{sr}, s{sWG}, {u*20480}")]
    for e in range(4):
        off = f" offset:{e*1024}" if e else ""
        out.append(("v", f"buffer_load_dwordx4 v{vD4}, {srd(S_WS)}, s{sr} offen{off} sc1 lds", f"w{u}", d))
    out += [("s", f"s_add_u32 m0, s{sTWM}, {TSLOT[u%4]+4096}"), ("s", f"s_add_u32 s{sr}, s{sWG}, {u*20480+4096}")]
    out.append(("v", f"buffer_load_dwordx4 v{vD4}, {srd(S_WS)}, s{sr} offen sc1 lds", f"w{u}", d))
    return out
def tail_dma(a, u):
    L = None
    if u == 8:
        L = a.newlabel("nod")
        a(f"s_bitcmp1_b32 s{sWAVE}, 1")
        a(f"s_cbranch_scc1 {L}")
    emit_list(a, tail_dma_list(u))
    if L: a.label(L)

def tail_aload_list(s0, n, sreg=None):
    sr = sreg if sreg is not None else sT0
    out = [("s", f"s_add_u32 s{sr}, s{sAG}, {(s0//4)*4096}")]
    for s in range(s0, s0+n):
        assert s // 4 == s0 // 4
        off = f" offset:{(s%4)*1024}" if s % 4 else ""
        out.append(("v", f"buffer_load_dwordx4 {vr(HR(s),4)}, v{vD4}, {srd(S_WS)}, s{sr} offen{off} sc1", f"a{s}"))
    return out

def tail_small_loads(a):
    mk_srd(a, S_M1, P_B2, 1280)
    a(f"v_lshrrev_b32 v{vTT0}, 4, v0")
    a(f"v_lshlrev_b32 v{vTT1}, 3, v{vTT0}")
    a(f"v_lshlrev_b32 v{vTT0}, 4, v{vTT0}")
    a(f"s_mul_i32 s{sT0}, s{sCG}, 160")
    a.vmem(f"buffer_load_dwordx4 {vr(vB2,4)}, v{vTT0}, {srd(S_M1)}, s{sT0} offen", "b2")
    a.vmem(f"buffer_load_dwordx4 {vr(vB2+4,4)}, v{vTT0}, {srd(S_M1)}, s{sT0} offen offset:64", "b2")
    a.vmem(f"buffer_load_dwordx2 {vr(vB2+8,2)}, v{vTT1}, {srd(S_M1)}, s{sT0} offen offset:128", "b2")
    a(f"s_and_b32 s{sT0}, s{sWAVE}, 3")
    a(f"s_lshl_b32 s{sT1}, s{sRB}, 2")
    a(f"s_add_u32 s{sT0}, s{sT0}, s{sT1}")
    a(f"s_lshl_b32 s{sT0}, s{sT0}, 6")
    a(f"s_add_u32 s{sT0}, s{sT0}, {G_OFF}")
    a(f"v_and_b32 v{vG}, 15, v0")
    a(f"v_lshlrev_b32 v{vG}, 2, v{vG}")
    a.vmem(f"buffer_load_dword v{vG}, v{vG}, {srd(S_WS)}, s{sT0} offen sc1", "g")

def tail_reads(s):
    u = s // 4
    base = TSLOT[u % 4]
    reg = vWL if base < 81920 else vWH
    base = base if base < 81920 else base - 81920
    return [f"ds_read_b128 {vr(TW+(s%2)*20+4*T,4)}, v{reg} offset:{base+(s%4)*5120+T*1024}" for T in range(5)]
def tail_mfmas(s):
    acc = AC1 if s < 24 else AC2
    out = []
    for T in range(5):
        d = vr(acc+4*T, 4)
        cin = "0" if s in (0, 24) else d
        out.append(f"v_mfma_f32_16x16x32_bf16 {d}, {vr(TW+(s%2)*20+4*T,4)}, {vr(HR(s),4)}, {cin}")
    return out

def tail_main(a, issued, pre=None, post=None):
    pre = pre or {}; post = post or {}
    a(f"s_mul_i32 s{sT0}, s{sKH}, 20480")
    a(f"v_add_u32 v{vWL}, s{sT0}, v{vD4}")
    a(f"v_add_u32 v{vWH}, 81920, v{vWL}")
    pend = []
    for s in range(NS + 1):
        if s % 4 == 0 and s < NS:
            u = s // 4
            if u in pre: pre[u]()
            a.wait_vm(f"w{u}", lg0=True)
            a("s_barrier")
            a.stamp(f"tail chunk{u}")
            if u in post: pend += post[u]()
            if u + 3 < 9 and u + 3 >= issued:
                if u + 3 == 8: pend.append(("f", lambda: tail_dma(a, 8)))
                else: pend += tail_dma_list(u + 3)
        else:
            a.lg_all()
        rd = tail_reads(s) if s < NS else []
        mf = tail_mfmas(s-1) if s > 0 else []
        if s > 0: a.wait_vm(f"a{s-1}")
        for i in range(5):
            if i < len(mf): a(mf[i])
            for r in rd[2*i:2*i+2]: a.ds(r, f"t{s}")
            if i >= 3 and pend:
                n = 1
                while n < len(pend) and pend[n-1][0] == "s": n += 1
                emit_list(a, pend[:n]); pend = pend[n:]
    assert not pend
    a.c("---- mix, exchange, store")
    a.wait_vm(["g", "b2"])
    omg = vWH
    a(f"v_sub_f32 v{omg}, 1.0, v{vG}")
    a(f"v_cvt_pk_bf16_f32 v{omg}, v{omg}, v{omg}")
    a(f"v_and_b32 v{omg}, 0xffff0000, v{omg}")
    a(f"s_mul_i32 s{sT1}, s{sWAVE}, 3072")
    a(f"v_add_u32 v{vTT0}, s{sT1}, v{vD4}")
    a(f"s_xor_b32 s{sT1}, s{sWAVE}, 4")
    a(f"s_mul_i32 s{sT1}, s{sT1}, 3072")
    a(f"v_add_u32 v{vTT1}, s{sT1}, v{vD4}")
    for i in range(20): a(f"v_mul_f32 v{AC1+i}, v{omg}, v{AC1+i}")
    for i in range(20): a(f"v_fma_f32 v{AC1+i}, v{vG}, v{AC2+i}, v{AC1+i}")
    XB = 40960 + 40960
    a(f"s_and_b32 s{sT0}, s{sWAVE}, 3")
    a(f"s_lshl_b32 s{sT1}, s{sRB}, 2")
    a(f"s_add_u32 s{sT0}, s{sT0}, s{sT1}")
    a(f"s_mul_i32 s{sT0}, s{sT0}, {16*1280}")
    a(f"s_mul_i32 s{sT1}, s{sCG}, 160")
    a(f"s_add_u32 s{sT0}, s{sT0}, s{sT1}")
    a(f"v_add_u32 v{vTT0}, {XB}, v{vTT0}")
    a(f"v_add_u32 v{vTT1}, {XB}, v{vTT1}")
    LB = a.newlabel("mixB"); LE = a.newlabel("mixE")
    a(f"s_cmp_eq_u32 s{sKH}, 1")
    a(f"s_cbranch_scc1 {LB}")
    for own, send in (((0, 1), (2, 3, 4)), ((2, 3, 4), (0, 1))):
        for k, T in enumerate(send): a.ds(f"ds_write_b128 v{vTT0}, {vr(AC1+4*T,4)} offset:{k*1024}", "x")
        a(f"v_and_b32 v{vWL}, 15, v0")
        a(f"v_mul_u32_u24 v{vWL}, 1280, v{vWL}")
        a(f"v_lshrrev_b32 v{vD4}, 4, v0")
        a(f"v_lshl_add_u32 v{vG}, v{vD4}, 3, v{vWL}")
        a(f"v_lshl_add_u32 v{vWL}, v{vD4}, 4, v{vWL}")
        for T in own:
            for r in range(4):
                src = vB2 + 2*T + r//2
                tmp = TW + T*4 + r
                if r % 2 == 0: a(f"v_lshlrev_b32 v{tmp}, 16, v{src}")
                else: a(f"v_and_b32 v{tmp}, 0xffff0000, v{src}")
                a(f"v_fma_f32 v{AC1+4*T+r}, v{omg}, v{tmp}, v{AC1+4*T+r}")
        a.lg_all()
        a("s_barrier")
        for k, T in enumerate(own): a.ds(f"ds_read_b128 {vr(TW+4*T,4)}, v{vTT1} offset:{k*1024}", f"x{T}")
        for T in own:
            a.wait_lg(f"x{T}")
            for r in range(4): a(f"v_add_f32 v{AC1+4*T+r}, v{AC1+4*T+r}, v{TW+4*T+r}")
            o = TW + 20 + 2*T
            a(f"v_cvt_pk_bf16_f32 v{o}, v{AC1+4*T}, v{AC1+4*T+1}")
            a(f"v_cvt_pk_bf16_f32 v{o+1}, v{AC1+4*T+2}, v{AC1+4*T+3}")
            if T == 1: a(f"buffer_store_dwordx4 {vr(TW+20,4)}, v{vWL}, {srd(S_OUT)}, s{sT0} offen" + OUTF())
            if T == 3: a(f"buffer_store_dwordx4 {vr(TW+24,4)}, v{vWL}, {srd(S_OUT)}, s{sT0} offen offset:64" + OUTF())
            if T == 4: a(f"buffer_store_dwordx2 {vr(TW+28,2)}, v{vG}, {srd(S_OUT)}, s{sT0} offen offset:128" + OUTF())
        if own == (0, 1):
            a(f"s_branch {LE}")
            a.label(LB)
    a.label(LE)
    a.stamp("tail end")


def att_extra(a):
    pieces = []
    for u in range(3):
        for e in range(5):
            pieces.append([("s", f"s_add_u32 m0, s{sTWM}, {TSLOT[u] + e*1024}"),
                           ("s", f"s_add_u32 s{sDM2}, s{sWG}, {u*20480 + e*1024}"),
                           ("v", f"buffer_load_dwordx4 v{vD4}, {srd(S_WS)}, s{sDM2} offen sc1 lds", f"w{u}")])
    def extra(c):
        out = []
        if c == 1 and OPT["hlate"]: out += h_store(0) + h_store(1) + h_store(2)
        if c == 2: out.append(("f", lambda: (pp_finish(a, 244, 248), second_unit(a, 0))))
        if c == 4: out.append(("f", lambda: second_unit(a, 1)))
        if c == 6: out.append(("f", lambda: flag_set(a, 1, 120)))
        if c == 7: out.append(("f", lambda: poll(a, "B", 120, 122, "issue")))
        if 8 <= c < 16:
            i = c - 8
            if i % 4 == 0: out += tail_aload_list(3*i, 3, sDM)
            elif i % 4 == 1: out += tail_aload_list(3*i, 1, sDM) + tail_aload_list(3*i+1, 2, sDM)
            elif i % 4 == 2: out += tail_aload_list(3*i, 2, sDM) + tail_aload_list(3*i+2, 1, sDM)
            else: out += tail_aload_list(3*i, 3, sDM)
            for _ in range(2):
                if pieces: out += pieces.pop(0)
            if c == 15: out.append(("f", lambda: tail_warm(a)))
        return out
    def pre(c):
        if c == 6: wait_st(a, "st1")
        if c == 8: poll(a, "B", 120, 122, "check")
    return extra, pre

def tail_warm(a):
    t = 250
    a(f"s_lshl_b32 s{sT0}, s{sLO}, 3")
    a(f"s_add_u32 s{sT0}, s{sT0}, s{sWAVE}")
    a(f"s_and_b32 s{sT1}, s{sT0}, 31")
    a(f"s_mul_i32 s{sT1}, s{sT1}, {28*128}")
    a(f"s_lshr_b32 s{sT0}, s{sT0}, 5")
    a(f"s_mul_i32 s{sT0}, s{sT0}, {NS*5120}")
    a(f"s_add_u32 s{sT0}, s{sT0}, s{sT1}")
    a(f"s_mul_i32 s{sT1}, s{sCG}, {68*5120}")
    a(f"s_add_u32 s{sT0}, s{sT0}, s{sT1}")
    a(f"s_add_u32 s{sT0}, s{sT0}, {WF_OFF + 12*5120}")
    a(f"v_min_u32 v{t}, 27, v0")
    a(f"v_lshlrev_b32 v{t}, 7, v{t}")
    a.vmem(f"buffer_load_dword v{t}, v{t}, {srd(S_WS)}, s{sT0} offen sc1", "warm")

def mega(a):
    phase1(a)
    a.stamp_move(255)
    tail_setup(a)
    a(f"s_mov_b32 s{sT3}, s2")
    pp_setup(a, PP_LDS, (232, 233, 234, 235, 236))
    att_setup2(a)
    extra, pre = att_extra(a)
    attention_main(a, extra, pre)
    a.stamp("att main done")
    att_epilogue(a)
    a.stamp("att end")
    a.stamp_move(110)
    tail_small_loads(a)
    pre = {1: lambda: wait_st(a, "sto"), 4: lambda: poll(a, "C", 98, 100, "check")}
    post = {1: lambda: [("f", lambda: flag_set(a, 2, 98))],
            3: lambda: [("f", lambda: poll(a, "C", 98, 100, "issue"))],
            4: lambda: tail_aload_list(24, 4, sDM) + tail_aload_list(28, 4, sDM) + tail_aload_list(32, 2, sDM)}
    tail_main(a, 3, pre, post)

def dbg_out(a):
    want = ["setup done", "p1 chunk0", "p1 chunk1", "p1 chunk5", "p1 chunk10", "p1 chunk14", "p1 A seen", "att chunk0", "att chunk1", "att chunk15", "att end", "tail chunk1", "tail chunk6", "tail end"]
    r = a.stampreg
    def body():
        a.rstamp(63)
        a(f"v_readlane_b32 s97, v{r}, 62")
        a(f"s_not_b32 s97, s97")
        a(f"v_mov_b32 v1, s98")
        a(f"v_writelane_b32 v1, s97, 1")
        a(f"v_lshlrev_b32 v2, 2, v0")
        a("s_mov_b64 exec, 3")
        a(f"buffer_atomic_umax v1, v2, {srd(S_DBG)}, 0 offen sc1")
        a("s_mov_b64 exec, -1")
        L = a.newlabel("dbg")
        a("s_cmp_lg_u32 s2, 5")
        a(f"s_cbranch_scc1 {L}")
        a(f"v_readlane_b32 s97, v{r}, 0")
        for k, n in enumerate(want):
            a(f"v_readlane_b32 s98, v{r}, {a.stampnames.index(n)}")
            a("s_nop 3")
            a("s_sub_u32 s98, s98, s97")
            a(f"v_writelane_b32 v1, s98, {2+k}")
        a("s_mov_b64 exec, 0xfffc")
        a(f"buffer_store_dword v1, v2, {srd(S_DBG)}, 0 offen sc1")
        a("s_mov_b64 exec, -1")
        a.label(L)
    wave0(a, body)

HEADER = open("cdna_kernels/" + NAME + ".s.ref").read().split("; Override launch")[0]

def build(fn, stamps=False):
    a = Asm()
    a.stamps = stamps
    name = NAME + "_kernel"
    a.stampreg = 17; a.nstamp = 0; a.stampnames = []; a.stampbase = STAMP_OFF
    a('.amdgcn_target "amdgcn-amd-amdhsa--gfx950"')
    a(".text")
    a(f".globl {name}")
    a(".p2align 8")
    a(f".type {name},@function")
    a.label(name)
    prologue(a)
    a.rstamp(62)
    mega(a)
    if OPT.get("dbg"): dbg_out(a)
    a.stamp_flush(srd(S_WS), a.stampbase)
    a.label("L_exit")
    a("s_endpgm")
    a('.section .rodata,"a"')
    a(".p2align 6")
    a(f".amdhsa_kernel {name}")
    a(".amdhsa_next_free_vgpr 256")
    a(".amdhsa_next_free_sgpr 102")
    a(".amdhsa_accum_offset 256")
    a(".amdhsa_group_segment_fixed_size 0")
    a(".amdhsa_kernarg_size 96")
    a(".amdhsa_user_sgpr_count 2")
    a(".amdhsa_user_sgpr_kernarg_segment_ptr 1")
    a(".amdhsa_system_sgpr_workgroup_id_x 1")
    a(".end_amdhsa_kernel")
    for e in check_hazards(a.lines): print("HAZARD", e)
    if stamps: json.dump({"mega": a.stampnames}, open(fn + ".names", "w"))
    open(fn, "w").write(HEADER + "; @launch grid=(256,1,1) block=(512,1,1) lds=163840\n" + a.text())

if __name__ == "__main__":
    for o in sys.argv[2:]:
        if o.startswith("no"): OPT[o[2:]] = False
        elif "=" in o: k, v = o.split("="); OPT[k] = int(v)
        else: OPT[o] = True
    build(sys.argv[1], stamps=OPT.get("stamps", False))
```

```python
import sys, math, struct, json
from emit import Asm, check_hazards

NAME = "gated_mix__softmax_full_mha__dense_activation_squared_relu__prompt"
QF_OFF = 0
KV_OFF = 2621440
KV_T = 2560
KV_L = 3072
KV_H = 64 * KV_T
AF_OFF = KV_OFF + 32 * KV_H
AF_T = 68 * 1024
WF_OFF = AF_OFF + 128 * AF_T
G_OFF = WF_OFF + 8 * 68 * 5120
FLAG_OFF = G_OFF + 8192
STAMP_OFF = FLAG_OFF + 3 * 32768
WS_USED = STAMP_OFF + 3 * 2048 * 256
QSCALE = (20 ** -0.5) * math.log2(math.e)
def f32hex(x): return "0x%08x" % struct.unpack("<I", struct.pack("<f", x))[0]

OPT = dict(fine=False, prio=True, pf=True, spread=True, abar=12, pf2=4, rot=True, hlate=False, c1late=False, cpf=True, pfx0=True, pfl=True, zrows=True, zk=True, apoll=36)

S_X, S_WQ, S_W1, S_WS, S_OUT, S_M1, S_M2 = 8, 12, 16, 20, 24, 28, 32
P_WO, P_B1, P_W2, P_B2, P_GW, P_DBG = 36, 38, 40, 42, 44, 46
sWAVE, sM, sJ, sT0, sT1, sT2, sT3, sT4, sT5 = 48, 49, 50, 51, 52, 53, 54, 55, 56
sLDSW, sOffX, sOffW, sScale, sXCD, sLO, sHI = 57, 58, 59, 60, 61, 62, 63
sEXV, sSAVE = 64, 66
sH, sQB, sKVG, sKH, sKVM = 68, 69, 70, 71, 72
sRB, sCG, sWG, sAG, sTWM = 73, 74, 75, 76, 77
sDM, sW1M, sW1G, sEPI, sPPC, sPD0, sPD1, sPFX, sPFW, sDM2 = 78, 79, 80, 81, 82, 83, 84, 85, 86, 87
sSPIN = 96
sCK, sCK1, sROT = 88, 89, 90
S_DBG = 92
def srd(b): return f"s[{b}:{b+3}]"
def vr(b, n=1): return f"v{b}" if n == 1 else f"v[{b}:{b+n-1}]"

def mk_srd(a, base, ptr, size):
    a(f"s_mov_b32 s{base}, s{ptr}")
    a(f"s_mov_b32 s{base+1}, s{ptr+1}")
    a(f"s_mov_b32 s{base+2}, {size}")
    a(f"s_mov_b32 s{base+3}, 0x00020000")

def emit_list(a, lst):
    for it in lst:
        if it[0] == "s": a(it[1])
        elif it[0] == "v": a.vmem(it[1], it[2], definite=(it[3] if len(it) > 3 else True))
        elif it[0] == "d": a.ds(it[1], it[2])
        elif it[0] == "f": it[1]()
def take(pend):
    k = 1
    while k < len(pend) and pend[k-1][0] == "s": k += 1
    out = pend[:k]; del pend[:k]
    return out

def wait_st(a, tag):
    if OPT.get("strict"): a.vm_all()
    else: a.wait_vm(tag)

def OUTF(): return " sc1" if OPT.get("outsc1") else ""

def prologue(a):
    a("s_cmp_ge_u32 s2, 256")
    a("s_cbranch_scc1 L_exit")
    a("s_load_dwordx16 s[68:83], s[0:1], 0")
    a("s_load_dwordx8 s[84:91], s[0:1], 64")
    a(f"v_lshrrev_b32 v1, 6, v0")
    a(f"s_and_b32 s{sXCD}, s2, 7")
    a(f"v_readfirstlane_b32 s{sWAVE}, v1")
    a(f"s_lshr_b32 s{sLO}, s2, 3")
    a(f"s_and_b32 s{sLO}, s{sLO}, 7")
    a(f"s_lshr_b32 s{sHI}, s2, 6")
    a(f"v_and_b32 v0, 63, v0")
    a(f"s_mov_b32 s{sSPIN}, 0")
    a(f"s_and_b32 s{sM}, s{sXCD}, 1")
    a(f"s_lshl_b32 s{sM}, s{sM}, 3")
    a(f"s_add_u32 s{sM}, s{sM}, s{sLO}")
    a(f"s_lshr_b32 s{sJ}, s{sXCD}, 1")
    a(f"s_lshl_b32 s{sJ}, s{sJ}, 2")
    a(f"s_add_u32 s{sJ}, s{sJ}, s{sHI}")
    p1_setup(a)
    a("s_waitcnt lgkmcnt(0)")
    mk_srd(a, S_X, 68, 2621440)
    mk_srd(a, S_WQ, 70, 2457600)
    mk_srd(a, S_M1, 84, 1280)
    mk_srd(a, S_W1, 76, 1966080)
    mk_srd(a, S_WS, 90, WS_USED)
    mk_srd(a, S_OUT, 86, 2621440)
    mk_srd(a, S_DBG, 88, 256)
    for dst, src in ((P_WO, 72), (P_B1, 78), (P_W2, 80), (P_B2, 82)):
        a(f"s_mov_b64 s[{dst}:{dst+1}], s[{src}:{src+1}]")

def wave0(a, body, w=0):
    L = a.newlabel("w0")
    a(f"s_cmp_lg_u32 s{sWAVE}, {w}")
    a(f"s_cbranch_scc1 {L}")
    a.inw0 = True
    body()
    a.inw0 = False
    a.label(L)

def flags_clear(a, t):
    def body():
        a(f"v_lshlrev_b32 v{t}, 15, v0")
        a(f"v_mov_b32 v{t+1}, 0")
        a(f"s_lshl_b32 s{sT0}, s2, 7")
        a(f"s_add_u32 s{sT0}, s{sT0}, {FLAG_OFF}")
        a("s_mov_b64 exec, 7")
        a.vmem(f"buffer_store_dword v{t+1}, v{t}, {srd(S_WS)}, s{sT0} offen sc1", "clr", definite="w0")
        a("s_mov_b64 exec, -1")
    wave0(a, body)

def flags_count_in(a, t):
    def body():
        st = list(a.vm)
        a.wait_vm("clr")
        a.vm = st
        a(f"s_and_b32 s{sT0}, s2, 31")
        a(f"s_lshl_b32 s{sT0}, s{sT0}, 2")
        a(f"s_add_u32 s{sT0}, s{sT0}, 128")
        a(f"v_mov_b32 v{t}, s{sT0}")
        a(f"v_mov_b32 v{t+1}, 1")
        a("s_mov_b64 exec, 1")
        a.vmem(f"buffer_atomic_add v{t+1}, v{t}, {srd(S_DBG)}, 0 offen sc1", "cnt", definite="w0")
        a("s_mov_b64 exec, -1")
    wave0(a, body)

def flag_set(a, which, t):
    def body():
        a(f"v_mov_b32 v{t}, 0")
        a(f"v_mov_b32 v{t+1}, 1")
        a(f"s_lshl_b32 s{sT0}, s2, 7")
        a(f"s_add_u32 s{sT0}, s{sT0}, {FLAG_OFF + which * 32768}")
        a(f"s_mov_b64 exec, 1")
        a.vmem(f"buffer_store_dword v{t+1}, v{t}, {srd(S_WS)}, s{sT0} offen sc1", "flag", definite="w0")
        a("s_mov_b64 exec, -1")
    wave0(a, body)

def poll(a, kind, t, d, stage):
    def addr():
        if kind == "init" :
            a(f"v_lshlrev_b32 v{t}, 2, v0")
            a(f"v_or_b32 v{t}, 128, v{t}")
        elif kind == "B":
            a(f"v_lshlrev_b32 v{t}, 7, v0")
        elif kind == "C":
            a(f"v_bfe_u32 v{t}, v0, 2, 3")
            a(f"v_and_b32 v{d}, 3, v0")
            a(f"v_lshl_add_u32 v{t}, v{d}, 6, v{t}")
            a(f"v_lshlrev_b32 v{t}, 7, v{t}")
            a(f"s_lshr_b32 s{sT5}, s{sRB}, 2")
            a(f"s_lshl_b32 s{sT5}, s{sT5}, 10")
            a(f"v_add_u32 v{t}, s{sT5}, v{t}")
        else:
            a(f"s_lshl_b32 s{sT3}, s{sXCD}, 2")
            a(f"s_add_u32 s{sT3}, s{sT3}, s{sHI}")
            a(f"s_mul_i32 s{sT3}, s{sT3}, 20")
            a(f"s_add_u32 s{sT4}, s{sT3}, 19")
            a(f"s_lshr_b32 s{sT3}, s{sT3}, 7")
            a(f"s_lshr_b32 s{sT4}, s{sT4}, 7")
            a(f"s_sub_u32 s{sT4}, s{sT4}, s{sT3}")
            for k in range(2):
                if k == 0:
                    a(f"v_bfe_u32 v{d}, v0, 4, 1")
                    a(f"v_mul_u32_u24 v{d}, s{sT4}, v{d}")
                    a(f"v_lshrrev_b32 v{d+1}, 5, v0")
                    a(f"v_mad_u32_u24 v{d}, v{d+1}, 5, v{d}")
                    a(f"v_add3_u32 v{d}, v{d}, s{sT3}, 5")
                    a(f"v_and_b32 v{d+1}, 15, v0")
                else:
                    a(f"v_and_b32 v{d}, 1, v0")
                    a(f"v_mul_u32_u24 v{d}, s{sT4}, v{d}")
                    a(f"v_add_u32 v{d}, s{sT3}, v{d}")
                    a(f"v_bfe_u32 v{d+1}, v0, 1, 1")
                    a(f"s_lshl_b32 s{sT5}, s{sLO}, 1")
                    a(f"v_add_u32 v{d+1}, s{sT5}, v{d+1}")
                a(f"v_lshrrev_b32 v{d+2}, 3, v{d+1}")
                a(f"v_lshrrev_b32 v{d+3}, 2, v{d}")
                a(f"v_lshl_add_u32 v{d+2}, v{d+3}, 1, v{d+2}")
                a(f"v_and_b32 v{d+1}, 7, v{d+1}")
                a(f"v_lshl_add_u32 v{d+2}, v{d+1}, 3, v{d+2}")
                a(f"v_and_b32 v{d}, 3, v{d}")
                a(f"v_lshl_add_u32 v{d+2}, v{d}, 6, v{d+2}")
                a(f"v_lshlrev_b32 v{t+k}, 7, v{d+2}")
    def loads():
        if kind == "init": return [f"buffer_load_dword v{d}, v{t}, {srd(S_DBG)}, 0 offen sc1"]
        out = []
        n = {"A": 2, "B": 4, "C": 1}[kind]
        for k in range(n):
            base = FLAG_OFF + "ABC".index(kind) * 32768 + (k * 8192 if kind == "B" else 0)
            out.append(f"s_mov_b32 s{sT5}, {base}")
            out.append(f"buffer_load_dword v{d+k}, v{t + (k if kind == 'A' else 0)}, {srd(S_WS)}, s{sT5} offen sc1")
        return out
    def issue():
        addr()
        for l in loads():
            if l.startswith("s_"): a(l)
            else: a.vmem(l, "poll" + kind, definite="w0")
    def check():
        L = a.newlabel("spin"); LD = a.newlabel("got")
        st = list(a.vm)
        a.wait_vm("poll" + kind)
        a.label(L)
        if kind in ("A", "B"): a(f"v_and_b32 v{d}, v{d}, v{d+1}")
        if kind == "B":
            a(f"v_and_b32 v{d+2}, v{d+2}, v{d+3}")
            a(f"v_and_b32 v{d}, v{d}, v{d+2}")
        a(f"v_cmp_le_u32 vcc, 8, v{d}" if kind == "init" else f"v_cmp_eq_u32 vcc, 1, v{d}")
        a("s_nop 1")
        a("s_cmp_eq_u64 vcc, -1")
        a(f"s_cbranch_scc1 {LD}")
        a(f"s_add_u32 s{sSPIN}, s{sSPIN}, 1")
        a(f"s_cmp_gt_u32 s{sSPIN}, 0x100000")
        a(f"s_cbranch_scc1 {LD}")
        a("s_sleep 1")
        for l in loads(): a(l)
        a("s_waitcnt vmcnt(0)")
        a(f"s_branch {L}")
        a.label(LD)
        a.vm = [(t_, False if d_ == "w0" else d_) for t_, d_ in st if t_ != "poll" + kind]
    wave0(a, issue if stage == "issue" else check)

XR, ACC, WF = 96, 64, 32
vX0, vX1, vW0, vW1, vU0, vU1, vU2 = 1, 2, 3, 4, 5, 6, 7
vXA, vTA, vTB, vB1, vEA, vPP, vPF = 8, 10, 14, 18, 24, 240, 242
PK = [44, 60, 92, 76]
PP_LDS = 131072

def p1_setup(a):
    t0, t1, t2, t3 = 32, 33, 34, 35
    a(f"s_lshl_b32 s{sLDSW}, s{sWAVE}, 12")
    a(f"s_mul_i32 s{sOffX}, s{sM}, {128*1280}")
    a(f"s_lshl_b32 s{sOffW}, s{sJ}, 8")
    a(f"v_lshrrev_b32 v{t0}, 3, v0")
    a(f"s_lshl_b32 s{sT0}, s{sWAVE}, 4")
    a(f"v_add_u32 v{t0}, s{sT0}, v{t0}")
    a(f"v_mul_u32_u24 v{t0}, 1280, v{t0}")
    a(f"v_and_b32 v{t1}, 7, v0")
    a(f"v_lshrrev_b32 v{t2}, 4, v0")
    a(f"v_xor_b32 v{t1}, v{t1}, v{t2}")
    a(f"v_lshl_add_u32 v{vX0}, v{t1}, 4, v{t0}")
    a(f"v_xor_b32 v{t1}, 4, v{t1}")
    a(f"v_lshl_add_u32 v{vX1}, v{t1}, 4, v{t0}")
    a(f"v_add_u32 v{vX1}, {8*1280-1024}, v{vX1}")
    a(f"s_lshl_b32 s{sT0}, s{sWAVE}, 3")
    a(f"v_add_u32 v{t0}, s{sT0}, v{t2}")
    a(f"v_mul_u32_u24 v{t0}, 3840, v{t0}")
    a(f"s_and_b32 s{sT0}, s{sWAVE}, 1")
    a(f"s_lshl_b32 s{sT0}, s{sT0}, 2")
    a(f"v_or_b32 v{t1}, s{sT0}, v{t2}")
    a(f"v_bfe_u32 v{t3}, v0, 1, 3")
    a(f"v_xor_b32 v{t1}, v{t1}, v{t3}")
    a(f"v_lshlrev_b32 v{t1}, 5, v{t1}")
    a(f"v_and_b32 v{t3}, 1, v0")
    a(f"v_lshl_add_u32 v{t1}, v{t3}, 4, v{t1}")
    a(f"v_add_u32 v{vW0}, v{t0}, v{t1}")
    a(f"v_add_u32 v{vW1}, {4*3840-1024}, v{vW0}")
    a(f"v_mov_b32 v28, 0")
    a(f"v_mov_b32 v29, 0")
    a(f"v_lshlrev_b32 v36, 4, v0")
    a(f"v_lshlrev_b32 v37, 2, v0")

def p1_dma_list(c, mode="q"):
    slot = (c % 4) * 32768
    if c < 10:
        out = [("s", f"s_add_u32 m0, s{sLDSW}, {slot}"),
               ("s", f"s_lshl_b32 s{sDM}, s{sCK}, 7"),
               ("s", f"s_add_u32 s{sDM}, s{sDM}, s{sOffX}"),
               ("v", f"buffer_load_dwordx4 v{vX0}, {srd(S_X)}, s{sDM} offen lds", f"c{c}"),
               ("v", f"buffer_load_dwordx4 v{vX1}, {srd(S_X)}, s{sDM} offen offset:1024 lds", f"c{c}")]
        adv = [("s", f"s_add_u32 s{sCK}, s{sCK}, 1"), ("s", f"s_cmp_eq_u32 s{sCK}, 10"), ("s", f"s_cselect_b32 s{sCK}, 0, s{sCK}")]
        if mode != "x":
            out += [("s", f"s_add_u32 m0, s{sLDSW}, {slot+2048}"),
                    ("s", f"s_mul_i32 s{sDM}, s{sCK}, {64*3840}"),
                    ("s", f"s_add_u32 s{sDM}, s{sDM}, s{sOffW}"),
                    ("v", f"buffer_load_dwordx4 v{vW0}, {srd(S_WQ)}, s{sDM} offen lds", f"c{c}")] + adv + \
                   [("v", f"buffer_load_dwordx4 v{vW1}, {srd(S_WQ)}, s{sDM} offen offset:1024 lds", f"c{c}")]
        else:
            out = out[:4] + adv + out[4:]
        return out
    out = [("s", f"s_add_u32 m0, s{sW1M}, {slot}"),
           ("s", f"s_mul_i32 s{sDM}, s{sCK1}, {64*3072}"),
           ("s", f"s_add_u32 s{sDM}, s{sDM}, s{sW1G}")]
    for e, v in enumerate((vU0, vU1, vU2)):
        off = f" offset:{e*1024}" if e else ""
        out.append(("v", f"buffer_load_dwordx4 v{v}, {srd(S_W1)}, s{sDM} offen{off} lds", f"c{c}"))
        if e == 0: out += [("s", f"s_add_u32 s{sCK1}, s{sCK1}, 2"), ("s", f"s_sub_u32 s{sDM2}, s{sCK1}, 10"), ("s", f"s_min_u32 s{sCK1}, s{sCK1}, s{sDM2}")]
    return out

def rot_setup(a):
    a(f"s_lshr_b32 s{sCK}, s{sXCD}, 1")
    a(f"s_and_b32 s{sT0}, s{sXCD}, 1")
    a(f"s_mul_i32 s{sT0}, s{sT0}, 5")
    a(f"s_add_u32 s{sCK}, s{sCK}, s{sT0}")
    if not OPT["rot"]: a(f"s_mov_b32 s{sCK}, 0")
    a(f"s_mov_b32 s{sROT}, s{sCK}")
    a(f"s_lshr_b32 s{sCK1}, s{sWAVE}, 2")
    a(f"s_add_u32 s{sCK1}, s{sCK1}, s{sCK}")

vPX, vPW, vP1 = 248, 249, 250
def mod10(a, t0, t1):
    a(f"v_subrev_u32 v{t1}, 10, v{t0}")
    a(f"v_min_u32 v{t0}, v{t0}, v{t1}")
def pf_w(a, first, n, dst):
    t0, t1 = 26, 27
    a(f"v_lshrrev_b32 v{t0}, 1, v0")
    a(f"v_min_u32 v{t0}, {n-1}, v{t0}")
    a(f"v_add3_u32 v{t0}, s{sROT}, v{t0}, {first}")
    mod10(a, t0, t1)
    a(f"v_mul_u32_u24 v{t0}, {64*3840}, v{t0}")
    a(f"v_and_b32 v{t1}, 1, v0")
    a(f"v_lshl_add_u32 v{t0}, v{t1}, 7, v{t0}")
    a.vmem(f"buffer_load_dword v{dst}, v{t0}, {srd(S_WQ)}, s{sPFW} offen", "pf")
def pf_x(a, first, n, dst, definite=True):
    t0, t1 = 26, 27
    a(f"v_lshrrev_b32 v{t0}, 2, v0")
    a(f"v_min_u32 v{t0}, {n-1}, v{t0}")
    a(f"v_add3_u32 v{t0}, s{sROT}, v{t0}, {first}")
    mod10(a, t0, t1)
    a(f"v_and_b32 v{t1}, 3, v0")
    a(f"v_mul_u32_u24 v{t1}, 1280, v{t1}")
    a(f"v_lshl_add_u32 v{t0}, v{t0}, 7, v{t1}")
    a.vmem(f"buffer_load_dword v{dst}, v{t0}, {srd(S_X)}, s{sPFX} offen", "pf", definite=definite)
def pf_setup(a):
    t0, t1 = 32, 33
    a(f"s_lshr_b32 s{sT0}, s2, 3")
    a(f"s_lshl_b32 s{sT0}, s{sT0}, 3")
    a(f"s_add_u32 s{sT0}, s{sT0}, s{sWAVE}")
    a(f"s_lshr_b32 s{sT1}, s{sT0}, 2")
    a(f"s_mul_i32 s{sPFW}, s{sT1}, 3840")
    a(f"s_and_b32 s{sT1}, s{sT0}, 3")
    a(f"s_lshl_b32 s{sT1}, s{sT1}, 8")
    a(f"s_add_u32 s{sPFW}, s{sPFW}, s{sT1}")
    a(f"s_lshr_b32 s{sT2}, s{sXCD}, 1")
    a(f"s_lshl_b32 s{sT1}, s{sT2}, 10")
    a(f"s_add_u32 s{sPFW}, s{sPFW}, s{sT1}")
    a(f"s_and_b32 s{sT1}, s{sXCD}, 1")
    a(f"s_lshl_b32 s{sT1}, s{sT1}, 8")
    a(f"s_add_u32 s{sT1}, s{sT1}, s{sT0}")
    a(f"s_mul_i32 s{sPFX}, s{sT1}, {4*1280}")
    if OPT["cpf"]:
        a(f"s_getpc_b64 s[{sSAVE}:{sSAVE+1}]")
        a.label("L_here")
        a(f"s_lshl_b32 s{sT1}, s{sT0}, 8")
        a(f"v_and_b32 v{t0}, 1, v0")
        a(f"v_lshlrev_b32 v{t0}, 7, v{t0}")
        a(f"v_add_u32 v{t0}, s{sT1}, v{t0}")
        a(f"v_min_u32 v{t0}, L_exit-L_here, v{t0}")
        a.vmem(f"global_load_dword v251, v{t0}, s[{sSAVE}:{sSAVE+1}]", "pf")
    if OPT["pf"]:
        pf_w(a, 1, 4, 253)
        a(f"s_sub_u32 s{sT1}, s{sROT}, s{sT2}")
        a(f"s_add_u32 s{sT3}, s{sT1}, s{sT2}")
        a(f"s_add_u32 s{sT3}, s{sT3}, 4")
        a(f"s_lshr_b32 s{sT4}, s{sT2}, 1")
        a(f"s_add_u32 s{sT4}, s{sT4}, s{sT1}")
        a(f"s_add_u32 s{sT4}, s{sT4}, 8")
        a(f"v_mov_b32 v26, s{sT3}")
        a(f"v_mov_b32 v27, s{sT4}")
        a(f"v_cmp_gt_u32 vcc, 4, v0")
        a("s_nop 1")
        a(f"v_cndmask_b32 v26, v27, v26, vcc")
        mod10(a, 26, 27)
        a(f"v_and_b32 v27, 3, v0")
        a(f"v_mul_u32_u24 v27, 1280, v27")
        a(f"v_lshl_add_u32 v26, v26, 7, v27")
        if OPT["pfx0"]: a.vmem(f"buffer_load_dword v252, v26, {srd(S_X)}, s{sPFX} offen", "pf")
    a(f"s_mul_i32 s{sT1}, s{sT0}, {3*3072}")
    a(f"s_mul_i32 s{sT2}, s{sT2}, 768")
    a(f"s_add_u32 s{sT1}, s{sT1}, s{sT2}")
    a(f"v_lshrrev_b32 v{t0}, 3, v0")
    a(f"v_min_u32 v{t0}, 2, v{t0}")
    a(f"v_mul_u32_u24 v{t0}, 3072, v{t0}")
    a(f"v_and_b32 v{t1}, 7, v0")
    a(f"v_min_u32 v{t1}, 5, v{t1}")
    a(f"v_lshl_add_u32 v{vP1}, v{t1}, 7, v{t0}")
    a(f"v_add_u32 v{vP1}, s{sT1}, v{vP1}")
def pf_w1(): return [("v", f"buffer_load_dword v254, v{vP1}, {srd(S_W1)}, 0 offen", "pf")]

def p1_setup2(a):
    t0, t1, t2, t3, t4, t5 = 32, 33, 34, 35, 38, 39
    a(f"s_mul_i32 s{sW1M}, s{sWAVE}, 3072")
    a(f"s_mul_i32 s{sW1G}, s{sJ}, 192")
    a(f"s_and_b32 s{sT0}, s{sWAVE}, 3")
    a(f"s_lshl_b32 s{sT0}, s{sT0}, 13")
    a(f"v_bfe_u32 v{t0}, v0, 3, 1")
    a(f"v_lshlrev_b32 v{t0}, 10, v{t0}")
    a(f"v_and_b32 v{t1}, 7, v0")
    a(f"v_lshl_add_u32 v{t0}, v{t1}, 7, v{t0}")
    a(f"v_add_u32 v{t0}, s{sT0}, v{t0}")
    a(f"v_lshrrev_b32 v{t1}, 4, v0")
    a(f"v_bfe_u32 v{t2}, v0, 1, 3")
    a(f"v_xor_b32 v{t2}, v{t1}, v{t2}")
    a(f"v_lshl_add_u32 v{vXA}, v{t2}, 4, v{t0}")
    a(f"v_xor_b32 v{vXA+1}, 64, v{vXA}")
    a(f"v_bfe_u32 v{t2}, v0, 2, 2")
    a(f"v_lshlrev_b32 v{t0}, 12, v{t1}")
    a(f"v_lshl_add_u32 v{t0}, v{t2}, 8, v{t0}")
    a(f"v_and_b32 v{t3}, 3, v0")
    a(f"v_lshl_add_u32 v{t0}, v{t3}, 3, v{t0}")
    a(f"v_bfe_u32 v{t4}, v0, 4, 1")
    a(f"v_lshl_add_u32 v{t5}, v{t4}, 2, v{t2}")
    a(f"s_lshr_b32 s{sT0}, s{sWAVE}, 2")
    a(f"s_lshl_b32 s{sT1}, s{sT0}, 2")
    a(f"v_xor_b32 v{t5}, s{sT1}, v{t5}")
    for T in range(4):
        a(f"v_xor_b32 v{vTA+T}, {T}, v{t5}")
        a(f"v_lshl_add_u32 v{vTA+T}, v{vTA+T}, 5, v{t0}")
    a(f"v_lshrrev_b32 v{t0}, 5, v0")
    a(f"v_lshlrev_b32 v{t0}, 4, v{t0}")
    a(f"v_lshl_add_u32 v{t0}, v{t4}, 2, v{t0}")
    a(f"v_add_u32 v{t0}, v{t0}, v{t2}")
    a(f"v_mul_u32_u24 v{t0}, 192, v{t0}")
    a(f"v_lshl_add_u32 v{t0}, v{t3}, 3, v{t0}")
    a(f"v_add_u32 v{t0}, 0x10000, v{t0}")
    a(f"s_mul_i32 s{sT1}, s{sT0}, 3")
    for T in range(3):
        a(f"s_add_u32 s{sT2}, s{sT1}, {T}")
        a(f"v_xor_b32 v{vTB+T}, s{sT2}, v{t4}")
        a(f"v_lshl_add_u32 v{vTB+T}, v{vTB+T}, 5, v{t0}")
    mk_srd(a, S_M2, P_B1, 3072)
    a(f"s_mul_i32 s{sT2}, s{sT0}, 96")
    a(f"s_add_u32 s{sT1}, s{sW1G}, s{sT2}")
    a(f"v_lshlrev_b32 v{t1}, 3, v{t1}")
    for T in range(3):
        a.vmem(f"buffer_load_dwordx2 {vr(vB1+2*T,2)}, v{t1}, {srd(S_M2)}, s{sT1} offen offset:{32*T}", "b1")
    for e, v in enumerate((vU0, vU1, vU2)):
        a(f"v_add_u32 v{t0}, {e*64}, v0")
        a(f"v_mul_u32_u24 v{t1}, 5462, v{t0}")
        a(f"v_lshrrev_b32 v{t1}, 16, v{t1}")
        a(f"v_mul_u32_u24 v{t2}, 12, v{t1}")
        a(f"v_sub_u32 v{t2}, v{t0}, v{t2}")
        a(f"v_bfe_u32 v{t3}, v{t1}, 2, 1")
        a(f"v_bfe_u32 v{t4}, v{t1}, 3, 1")
        a(f"v_and_b32 v{t5}, 3, v{t1}")
        a(f"v_lshl_add_u32 v{t5}, v{t3}, 3, v{t5}")
        a(f"v_lshl_add_u32 v{t5}, v{t4}, 2, v{t5}")
        a(f"s_and_b32 s{sT0}, s{sWAVE}, 3")
        a(f"s_lshl_b32 s{sT0}, s{sT0}, 4")
        a(f"v_add_u32 v{t5}, s{sT0}, v{t5}")
        a(f"v_mul_u32_u24 v{t5}, 3072, v{t5}")
        a(f"v_lshlrev_b32 v{t3}, 1, v{t3}")
        a(f"v_xor_b32 v{t2}, v{t2}, v{t3}")
        a(f"v_lshl_add_u32 v{v}, v{t2}, 4, v{t5}")
        if e: a(f"v_subrev_u32 v{v}, {e*1024}, v{v}")

def epi_setup(a, mode):
    t0, t1, t2, t3, t4 = 240, 241, 242, 243, 244
    a(f"s_and_b32 s{sT1}, s{sWAVE}, 3")
    a(f"s_lshl_b32 s{sT3}, s{sM}, 2")
    a(f"s_add_u32 s{sT3}, s{sT1}, s{sT3}")
    if mode == "v": return epi_setup_v(a)
    a(f"s_cmp_ge_u32 s{sJ}, 5")
    a(f"s_cselect_b32 s{sT0}, 5, 0")
    a(f"s_cselect_b32 s{sScale}, 1.0, {f32hex(QSCALE)}")
    a(f"s_cselect_b32 s{sT1}, 1, 0")
    a(f"s_cselect_b32 s{sT2}, {KV_OFF}, {QF_OFF}")
    a(f"s_lshl_b32 s{sT4}, 81920, s{sT1}")
    a(f"s_lshl_b32 s{sT5}, 1280, s{sT1}")
    a(f"s_mul_i32 s{sEPI}, s{sT5}, s{sT3}")
    a(f"s_add_u32 s{sEPI}, s{sEPI}, s{sT2}")
    a(f"s_sub_u32 s{sT0}, s{sJ}, s{sT0}")
    a(f"s_lshl_b32 s{sT0}, s{sT0}, 5")
    a(f"s_lshr_b32 s{sT1}, s{sWAVE}, 2")
    a(f"s_lshl_b32 s{sT1}, s{sT1}, 4")
    a(f"s_add_u32 s{sT0}, s{sT0}, s{sT1}")
    a(f"v_and_b32 v{t3}, 9, v0")
    a(f"v_bfe_u32 v{t0}, v0, 1, 1")
    a(f"v_lshl_add_u32 v{t3}, v{t0}, 2, v{t3}")
    a(f"v_bfe_u32 v{t0}, v0, 2, 1")
    a(f"v_lshl_add_u32 v{t3}, v{t0}, 1, v{t3}")
    a(f"v_lshlrev_b32 v{t3}, 4, v{t3}")
    a(f"v_lshrrev_b32 v{t0}, 4, v0")
    a(f"v_add_u32 v{t0}, s{sT0}, v{t0}")
    a(f"s_mov_b32 s{sT3}, 0x43120")
    for T in range(4):
        adr = vEA + T
        a(f"v_add_u32 v{t1}, {4*T}, v{t0}")
        a(f"v_mul_u32_u24 v{t2}, 205, v{t1}")
        a(f"v_lshrrev_b32 v{t2}, 10, v{t2}")
        a(f"v_mul_u32_u24 v{adr}, 5, v{t2}")
        a(f"v_sub_u32 v{t1}, v{t1}, v{adr}")
        a(f"v_lshlrev_b32 v{t1}, 2, v{t1}")
        a(f"v_bfe_u32 v{t1}, s{sT3}, v{t1}, 4")
        a(f"v_mul_lo_u32 v{adr}, v{t2}, s{sT4}")
        a(f"v_lshl_add_u32 v{adr}, v{t1}, 8, v{adr}")
        a(f"v_add_u32 v{adr}, v{adr}, v{t3}")

def epi_setup_v(a):
    t0, t1, t2, t3, t4 = 240, 241, 242, 243, 244
    a(f"s_sub_u32 s{sT0}, s{sJ}, 10")
    a(f"s_lshl_b32 s{sT0}, s{sT0}, 7")
    a(f"s_lshr_b32 s{sT1}, s{sWAVE}, 2")
    a(f"s_lshl_b32 s{sT1}, s{sT1}, 6")
    a(f"s_add_u32 s{sT0}, s{sT0}, s{sT1}")
    a(f"s_mul_i32 s{sEPI}, s{sT3}, {KV_T}")
    a(f"s_add_u32 s{sEPI}, s{sEPI}, {KV_OFF + 1280}")
    a(f"s_mov_b32 s{sT4}, {KV_H}")
    a(f"v_lshrrev_b32 v{t3}, 4, v0")
    a(f"v_mul_u32_u24 v{t3}, 320, v{t3}")
    a(f"v_and_b32 v{t0}, 15, v0")
    a(f"v_add_u32 v{t0}, s{sT0}, v{t0}")
    for T in range(4):
        adr = vEA + T
        a(f"v_add_u32 v{t1}, {16*T}, v{t0}")
        a(f"v_mul_u32_u24 v{t2}, 3277, v{t1}")
        a(f"v_lshrrev_b32 v{t2}, 16, v{t2}")
        a(f"v_mul_u32_u24 v{adr}, 20, v{t2}")
        a(f"v_sub_u32 v{t1}, v{t1}, v{adr}")
        a(f"v_mul_lo_u32 v{adr}, v{t2}, s{sT4}")
        a(f"v_and_b32 v{t2}, 0x13, v{t1}")
        a(f"v_bfe_u32 v{t4}, v{t1}, 2, 1")
        a(f"v_lshl_add_u32 v{t2}, v{t4}, 3, v{t2}")
        a(f"v_bfe_u32 v{t4}, v{t1}, 3, 1")
        a(f"v_lshl_add_u32 v{t2}, v{t4}, 2, v{t2}")
        a(f"v_lshl_add_u32 v{adr}, v{t2}, 4, v{adr}")
        a(f"v_add_u32 v{adr}, v{adr}, v{t3}")

def pp_setup(a, base, tt):
    t0, t1, t2, t3, t4 = tt
    L = a.newlabel("pp")
    a(f"s_lshr_b32 s{sT4}, s{sT3}, 2")
    a(f"s_and_b32 s{sT5}, s{sT3}, 3")
    a(f"s_mul_i32 s{sPPC}, s{sT5}, 320")
    a(f"s_cmp_ge_u32 s{sT4}, 48")
    a(f"s_cselect_b32 s{S_M2}, s{P_WO}, s{P_W2}")
    a(f"s_cselect_b32 s{S_M2+1}, s{P_WO+1}, s{P_W2+1}")
    a(f"s_mov_b32 s{S_M2+2}, 1966080")
    a(f"s_cselect_b32 s{S_M2+2}, 819200, s{S_M2+2}")
    a(f"s_mov_b32 s{S_M2+3}, 0x00020000")
    for rep in range(2):
        a(f"s_lshl_b32 s{sT0}, s{sWAVE}, 6")
        a(f"v_add_u32 v{t0}, s{sT0}, v0")
        if rep: a(f"v_add_u32 v{t0}, 512, v{t0}")
        a(f"v_mul_u32_u24 v{t1}, 3277, v{t0}")
        a(f"v_lshrrev_b32 v{t1}, 16, v{t1}")
        a(f"v_mul_u32_u24 v{t2}, 20, v{t1}")
        a(f"v_sub_u32 v{t2}, v{t0}, v{t2}")
        a(f"s_cmp_ge_u32 s{sT4}, 48")
        a(f"s_cbranch_scc1 {L}_wo{rep}")
        a(f"s_lshl_b32 s{sT0}, s{sT4}, 5")
        a(f"v_add_u32 v{t1}, s{sT0}, v{t1}")
        a(f"s_branch {L}_go{rep}")
        a.label(f"{L}_wo{rep}")
        a(f"v_lshrrev_b32 v{t3}, 3, v{t1}")
        a(f"s_cmp_ge_u32 s{sT4}, 64")
        a(f"s_cbranch_scc1 {L}_rem{rep}")
        a(f"s_sub_u32 s{sT0}, s{sT4}, 48")
        a(f"s_lshl_b32 s{sT0}, s{sT0}, 2")
        a(f"v_add_u32 v{t3}, s{sT0}, v{t3}")
        a(f"v_lshrrev_b32 v{t4}, 1, v{t3}")
        a(f"v_mul_u32_u24 v{t4}, 20, v{t4}")
        a(f"v_and_b32 v{t3}, 1, v{t3}")
        a(f"v_lshl_add_u32 v{t4}, v{t3}, 3, v{t4}")
        a(f"v_and_b32 v{t1}, 7, v{t1}")
        a(f"v_add_u32 v{t1}, v{t4}, v{t1}")
        a(f"s_branch {L}_go{rep}")
        a.label(f"{L}_rem{rep}")
        a(f"s_sub_u32 s{sT0}, s{sT4}, 64")
        a(f"s_lshl_b32 s{sT0}, s{sT0}, 2")
        a(f"v_add_u32 v{t3}, s{sT0}, v{t3}")
        a(f"v_bfe_u32 v{t4}, v{t1}, 2, 1")
        a(f"v_lshl_add_u32 v{t4}, v{t3}, 1, v{t4}")
        a(f"v_mul_u32_u24 v{t4}, 20, v{t4}")
        a(f"v_and_b32 v{t1}, 3, v{t1}")
        a(f"v_add3_u32 v{t1}, v{t4}, v{t1}, 16")
        a.label(f"{L}_go{rep}")
        a(f"v_mul_u32_u24 v{t1}, 1280, v{t1}")
        a(f"v_lshl_add_u32 v{vPP+rep}, v{t2}, 4, v{t1}")
    a(f"s_cmp_ge_u32 s{sT4}, 24")
    a(f"s_cselect_b32 s{sT0}, 10, 0")
    a(f"s_cmp_ge_u32 s{sT4}, 48")
    a(f"s_cselect_b32 s{sT0}, -24, s{sT0}")
    a(f"s_cmp_ge_u32 s{sT4}, 58")
    a(f"s_cselect_b32 s{sT0}, 0, s{sT0}")
    a(f"s_add_u32 s{sT4}, s{sT4}, s{sT0}")
    a(f"s_mul_i32 s{sT5}, s{sT5}, 136")
    a(f"s_add_u32 s{sT4}, s{sT4}, s{sT5}")
    a(f"v_lshrrev_b32 v{t1}, 4, v0")
    a(f"v_bfe_u32 v{t2}, v0, 2, 2")
    a(f"v_lshl_add_u32 v{t1}, v{t1}, 3, v{t2}")
    a(f"v_mul_u32_u24 v{t1}, 320, v{t1}")
    a(f"v_and_b32 v{t0}, 3, v0")
    for rep, sd in enumerate((sPD0, sPD1)):
        a(f"s_add_u32 s{sT0}, s{sWAVE}, {8*rep}")
        a(f"s_cmp_ge_u32 s{sT0}, 5")
        a(f"s_cselect_b32 s{sT1}, 1, 0")
        a(f"s_mul_i32 s{sT2}, s{sT1}, 5")
        a(f"s_sub_u32 s{sT0}, s{sT0}, s{sT2}")
        a(f"s_lshr_b32 s{sT2}, s{sT0}, 1")
        a(f"s_lshl_b32 s{sT2}, s{sT2}, 6")
        a(f"s_and_b32 s{sT5}, s{sT0}, 1")
        a(f"s_lshl_b32 s{sT5}, s{sT5}, 3")
        a(f"s_add_u32 s{sT2}, s{sT2}, s{sT5}")
        a(f"s_mul_i32 s{sT5}, s{sT1}, 160")
        a(f"s_add_u32 s{sT2}, s{sT2}, s{sT5}")
        a(f"s_add_u32 s{sT2}, s{sT2}, {base}")
        a(f"s_cmp_eq_u32 s{sT0}, 4")
        a(f"s_cselect_b32 s{sT5}, 3, 4")
        a(f"v_lshlrev_b32 v{t2}, s{sT5}, v{t0}")
        a(f"v_add3_u32 v{vPF+rep}, v{t2}, v{t1}, s{sT2}")
        a(f"s_mul_i32 s{sT1}, s{sT1}, 68")
        a(f"s_add_u32 s{sT1}, s{sT1}, s{sT4}")
        a(f"s_mul_i32 s{sT1}, s{sT1}, 5120")
        a(f"s_lshl_b32 s{sT0}, s{sT0}, 10")
        a(f"s_add_u32 s{sT1}, s{sT1}, s{sT0}")
        a(f"s_add_u32 s{sd}, s{sT1}, {WF_OFF}")

def lt2(a, body):
    L = a.newlabel("lt2")
    a(f"s_cmp_ge_u32 s{sWAVE}, 2")
    a(f"s_cbranch_scc1 {L}")
    body()
    a.label(L)

def pp_dma(a, base):
    a(f"s_lshl_b32 s{sT0}, s{sWAVE}, 10")
    a(f"s_add_u32 m0, s{sT0}, {base}")
    a("s_nop 0")
    a.vmem(f"buffer_load_dwordx4 v{vPP}, {srd(S_M2)}, s{sPPC} offen lds", "pp")
    def second():
        a(f"s_add_u32 m0, s{sT0}, {base + 8192}")
        a("s_nop 0")
        a.vmem(f"buffer_load_dwordx4 v{vPP+1}, {srd(S_M2)}, s{sPPC} offen lds", "pp", definite=False)
    lt2(a, second)

def pp_finish(a, tmp, l16):
    a(f"v_lshlrev_b32 v{l16}, 4, v0")
    def one(rep):
        a(f"ds_read_b64_tr_b16 {vr(tmp,2)}, v{vPF+rep}")
        a(f"ds_read_b64_tr_b16 {vr(tmp+2,2)}, v{vPF+rep} offset:1280")
        a.lg_all()
        a.vmem(f"buffer_store_dwordx4 {vr(tmp,4)}, v{l16}, {srd(S_WS)}, s{(sPD0, sPD1)[rep]} offen sc1", "st1", definite=(rep == 0))
    one(0)
    lt2(a, lambda: one(1))

GW_LDS = 151552
vGW = vTA
def gate_start(a):
    for rep in range(2):
        a(f"s_mov_b32 m0, {GW_LDS + rep*1280}")
        a(f"v_lshrrev_b32 v{vGW}, 4, v0")
        a.vmem(f"buffer_load_dwordx4 v36, {srd(S_M1)}, 0 offen lds", "gw")
        a.vmem(f"buffer_load_dword v37, {srd(S_M1)}, 0 offen offset:1024 lds", "gw")
    a(f"s_lshl_b32 s{sT0}, s{sROT}, 7")
    a(f"s_add_u32 s{sT0}, s{sT0}, {GW_LDS}")
    a(f"v_lshlrev_b32 v{vGW}, 4, v{vGW}")
    a(f"v_add_u32 v{vGW}, s{sT0}, v{vGW}")

def gate_finish(a):
    a.c("---- gate")
    acc = ACC
    a(f"s_mov_b32 vcc_lo, 0xffff0000")
    a(f"s_mov_b32 vcc_hi, 0")
    a("s_nop 4")
    a(f"v_cndmask_b32 v{acc}, v{ACC}, v{ACC+16}, vcc")
    a(f"v_cvt_pk_bf16_f32 v{acc}, v{acc}, v{acc}")
    a(f"v_and_b32 v{acc}, 0xffff0000, v{acc}")
    a(f"v_mul_f32 v{acc}, {f32hex(-math.log2(math.e))}, v{acc}")
    a(f"v_exp_f32 v{acc}, v{acc}")
    a("s_nop 0")
    a(f"v_add_f32 v{acc}, 1.0, v{acc}")
    a(f"v_rcp_f32 v{acc}, v{acc}")
    a("s_nop 0")
    a(f"v_cvt_pk_bf16_f32 v{acc}, v{acc}, v{acc}")
    a(f"v_and_b32 v76, 0xffff0000, v{acc}")
    a(f"s_and_b32 s{sT0}, s{sWAVE}, 3")
    a(f"s_lshl_b32 s{sT1}, s{sM}, 2")
    a(f"s_add_u32 s{sT0}, s{sT0}, s{sT1}")
    a(f"s_lshl_b32 s{sT0}, s{sT0}, 7")
    a(f"s_add_u32 s{sT0}, s{sT0}, {G_OFF}")
    a(f"v_lshlrev_b32 v77, 2, v0")
    a(f"s_mov_b32 exec_hi, 0")
    a.vmem(f"buffer_store_dword v76, v77, {srd(S_WS)}, s{sT0} offen sc1", "st1", definite=False)
    a("s_mov_b32 exec_hi, -1")

def p1_reads(s, mode):
    out = []
    buf = WF + (s % 2) * 16
    if s < 20:
        c, ks = s // 2, s % 2
        base = (c % 2) * 32768
        for b in range(2):
            out.append(("x", f"ds_read_b128 {vr(XR+(s*2+b)*4,4)}, v{vXA+ks} offset:{base + b*4096}"))
        if mode != "x":
            for T in range(4):
                for r2 in range(2):
                    out.append((T, f"ds_read_b64_tr_b16 {vr(buf+T*4+r2*2,2)}, v{vTA+T} offset:{base + 2048 + ks*16384 + r2*1024}"))
        else:
            out.append((0, f"ds_read_b128 {vr(buf,4)}, v{vGW} offset:{s*64}"))
    else:
        sf = s - 20
        c, ks = 10 + sf // 4, sf % 4
        base = (c % 2) * 32768
        for T in range(3):
            for r2 in range(2):
                out.append((T, f"ds_read_b64_tr_b16 {vr(buf+T*4+r2*2,2)}, v{vTB+T} offset:{base + ks*6144 + r2*1536}"))
    return out

def p1_mfma(s, T, b, mode):
    buf = WF + (s % 2) * 16
    d = vr(ACC + (b*4+T)*4, 4)
    w = vr(buf + T*4, 4); x = vr(XR + ((s % 20)*2+b)*4, 4)
    cin = "0" if s == 0 else d
    if mode == "v" and s < 20: return f"v_mfma_f32_16x16x32_bf16 {d}, {x}, {w}, {cin}"
    return f"v_mfma_f32_16x16x32_bf16 {d}, {w}, {x}, {cin}"

def p1_stage(a, s, mode, pre=None, post=None, budget=None):
    if s < 20: start = (s % 2 == 0); c = s // 2
    elif s < 40: start = ((s - 20) % 4 == 0); c = 10 + (s - 20) // 4
    else: start = False; c = None
    if start:
        emit_list(a, a.pend); a.pend = []
        if pre: pre()
        a.wait_vm(f"c{c}")
        a("s_barrier")
        if OPT["fine"] or c in (0, 1, 5, 10, 11, 14): a.stamp(f"p1 chunk{c}")
        if post and c == 0: a.pend += post()
        if c + 2 < 15: a.pend += p1_dma_list(c + 2, mode)
        if post and c: a.pend += post()
    rd = p1_reads(s, mode) if s < 40 else []
    nT = 0 if s == 0 else ((1 if mode == "x" else 4) if s - 1 < 20 else 3)
    if budget is None: budget = 2 if s <= 20 else 1
    xr = [r for g, r in rd if g == "x"]
    nxt = s + 1
    flip = (nxt < 20 and nxt % 4 == 0) or (20 < nxt < 40 and (nxt - 20) % 8 == 0)
    for r in xr: a.ds(r, f"r{s}x")
    if flip and s < 20:
        a(f"v_xor_b32 v{vXA}, 0x10000, v{vXA}")
        a(f"v_xor_b32 v{vXA+1}, 0x10000, v{vXA+1}")
    for T in range(4):
        if T < nT:
            a.wait_lg([f"r{s-1}x", f"r{s-1}t{T}"])
            a(p1_mfma(s-1, T, 0, mode))
        tr = [r for g, r in rd if g == T]
        for r in tr[:1]: a.ds(r, f"r{s}t{T}")
        if T < nT: a(p1_mfma(s-1, T, 1, mode))
        for r in tr[1:]: a.ds(r, f"r{s}t{T}")
        if flip and tr and mode != "x" and s < 20: a(f"v_xor_b32 v{vTA+T}, 0x10000, v{vTA+T}")
        if flip and tr and s >= 20: a(f"v_xor_b32 v{vTB+T}, 0x10000, v{vTB+T}")
        if T >= 1 and a.pend and budget:
            emit_list(a, take(a.pend)); budget -= 1

def qkv_pack(a, mode):
    for T in (0, 1, 3, 2):
        o = PK[T]
        if mode == "q":
            for b in range(2):
                for r in range(4):
                    x = ACC + (b*4+T)*4 + r
                    a(f"v_mul_f32 v{x}, s{sScale}, v{x}")
            for b in range(2):
                x = ACC + (b*4+T)*4
                a(f"v_cvt_pk_bf16_f32 v{o+2*b}, v{x}, v{x+1}")
                a(f"v_cvt_pk_bf16_f32 v{o+2*b+1}, v{x+2}, v{x+3}")
        else:
            for r in range(4):
                a(f"v_cvt_pk_bf16_f32 v{o+r}, v{ACC + T*4 + r}, v{ACC + (4+T)*4 + r}")
        if T in (0, 1) or not OPT["spread"]: a.vmem(f"buffer_store_dwordx4 {vr(o,4)}, v{vEA+T}, {srd(S_WS)}, s{sEPI} offen sc1", "stq", definite=False)

def late_store(a, T):
    L = a.newlabel("ls")
    a(f"s_cmp_eq_u32 s{sJ}, 15")
    a(f"s_cbranch_scc1 {L}")
    a.vmem(f"buffer_store_dwordx4 {vr(PK[T],4)}, v{vEA+T}, {srd(S_WS)}, s{sEPI} offen sc1", "stq", definite=False)
    a.label(L)

def ffn1_init(a):
    a.wait_vm("b1")
    for T in range(3):
        for r in range(4):
            src = vB1 + 2*T + r//2
            d0 = ACC + T*4 + r; d1 = ACC + (4+T)*4 + r
            if r % 2 == 0: a(f"v_lshlrev_b32 v{d0}, 16, v{src}")
            else: a(f"v_and_b32 v{d0}, 0xffff0000, v{src}")
            a(f"v_mov_b32 v{d1}, v{d0}")

def ffn1_epilogue(a):
    a.c("---- FFN1 epilogue")
    t0, t1 = HS + 12, HS + 13
    a(f"s_and_b32 s{sT0}, s{sWAVE}, 3")
    a(f"s_lshl_b32 s{sT0}, s{sT0}, 1")
    a(f"s_lshl_b32 s{sT1}, s{sM}, 3")
    a(f"s_add_u32 s{sT0}, s{sT0}, s{sT1}")
    a(f"s_mul_i32 s{sT0}, s{sT0}, {AF_T}")
    a(f"s_lshr_b32 s{sT1}, s{sWAVE}, 2")
    a(f"s_mul_i32 s{sT1}, s{sT1}, 1536")
    a(f"s_mul_i32 s{sT2}, s{sJ}, 3072")
    a(f"s_add_u32 s{sT0}, s{sT0}, s{sT1}")
    a(f"s_add_u32 s{sT0}, s{sT0}, s{sT2}")
    a(f"s_cmp_ge_u32 s{sJ}, 8")
    a(f"s_cselect_b32 s{sT1}, 10240, 0")
    a(f"s_add_u32 s{sT0}, s{sT0}, s{sT1}")
    a(f"s_add_u32 s{sEPI}, s{sT0}, {AF_OFF}")
    a(f"v_bfe_u32 v{t0}, v0, 4, 1")
    a(f"v_mul_u32_u24 v{t0}, {AF_T}, v{t0}")
    a(f"v_lshrrev_b32 v{t1}, 5, v0")
    a(f"v_lshl_add_u32 v{t0}, v{t1}, 8, v{t0}")
    a(f"v_and_b32 v{t1}, 15, v0")
    a(f"v_lshl_add_u32 v{t0}, v{t1}, 4, v{t0}")
    for T in range(3):
        o = HS + T*4
        for b in range(2):
            for r in range(4):
                x = ACC + (b*4+T)*4 + r
                a(f"v_max_f32 v{x}, 0, v{x}")
        for b in range(2):
            for r in range(4):
                x = ACC + (b*4+T)*4 + r
                a(f"v_mul_f32 v{x}, v{x}, v{x}")
        for b in range(2):
            x = ACC + (b*4+T)*4
            a(f"v_cvt_pk_bf16_f32 v{o+2*b}, v{x}, v{x+1}")
            a(f"v_cvt_pk_bf16_f32 v{o+2*b+1}, v{x+2}, v{x+3}")
        a("s_nop 1")
        a(f"v_permlane16_swap_b32 v{o}, v{o+2}")
        a(f"v_permlane16_swap_b32 v{o+1}, v{o+3}")
        if not OPT["hlate"]: emit_list(a, h_store(T))

HS = 200
def h_store(T):
    return [("v", f"buffer_store_dwordx4 {vr(HS+4*T,4)}, v{HS+12}, {srd(S_WS)}, s{sEPI} offen offset:{512*T} sc1", "st1")]

def phase1(a):
    a.stamp("start")
    a.pend = []
    rot_setup(a)
    emit_list(a, p1_dma_list(0))
    pf_setup(a)
    flags_clear(a, 38)
    p1_setup2(a)
    if not OPT["c1late"]: emit_list(a, p1_dma_list(1))
    a.stamp("setup done")
    LV = a.newlabel("vpass"); LX = a.newlabel("xpass"); LJ = a.newlabel("join")
    a(f"s_cmp_eq_u32 s{sJ}, 15")
    a(f"s_cbranch_scc1 {LX}")
    a(f"s_cmp_ge_u32 s{sJ}, 10")
    a(f"s_cbranch_scc1 {LV}")
    save = (list(a.vm), list(a.lg), a.nstamp, len(a.stampnames))
    ends = []
    for mode, lab in (("q", None), ("v", LV), ("x", LX)):
        a.vm, a.lg, a.nstamp = list(save[0]), list(save[1]), save[2]; del a.stampnames[save[3]:]
        if lab: a.label(lab)
        if mode == "x": gate_start(a)
        for s in range(21):
            pre = post = None
            if s == 0:
                if mode == "x": pre = lambda: a.wait_vm("gw")
                post = lambda: (p1_dma_list(1, mode) if OPT["c1late"] else [])
            if s == 2: post = lambda: [("f", lambda: flags_count_in(a, 28))] + ([("f", lambda: pf_x(a, 4, 3, 252))] if OPT["pfl"] else [])
            if s == 4 and OPT["pfl"]: post = lambda: [("f", lambda: pf_w(a, 5, 4, 253)), ("f", lambda: pf_x(a, 7, 3, 252))]
            if s == 2 * OPT["pf2"]: post = pf_w1
            if s == 12: post = lambda: [("f", lambda: poll(a, "init", 28, 30, "issue"))]
            if s == 18: pre = lambda: poll(a, "init", 28, 30, "check")
            p1_stage(a, s, mode, pre=pre, post=post, budget=(3 if s < 8 else None))
            if s == 0:
                for _ in range(3):
                    if a.pend: emit_list(a, take(a.pend))
            if s == 8 and mode != "x": epi_setup(a, mode)
        emit_list(a, a.pend); a.pend = []
        a("s_nop 5")
        if mode != "x":
            qkv_pack(a, mode)
            a(f"s_branch {LJ}")
        else:
            gate_finish(a)
        ends.append((list(a.vm), list(a.lg)))
    a.label(LJ)
    common = set.intersection(*[set(t for t, d in e[0] if d) for e in ends])
    a.vm = [(t, d if t in common else False) for t, d in ends[0][0]] + [("st1", False)]
    a.lg = list(ends[0][1])
    assert ends[2][1] == a.lg and ends[1][1] == a.lg, (ends[2][1], a.lg)
    a.stamp("p1 qkv done")
    a("s_nop 1")
    ffn1_init(a)
    sA = 20 + 4 * (OPT["abar"] - 10)
    for s in range(21, 41):
        pre = post = None
        if OPT["spread"] and s in (21, 22): a.pend.insert(0, ("f", (lambda T: lambda: late_store(a, T))(3 if s == 21 else 2)))
        if s == sA:
            pre = lambda: wait_st(a, "stq")
            post = lambda: [("f", lambda: flag_set(a, 0, 92))]
        if s == OPT["apoll"]: a.pend.append(("f", lambda: poll(a, "A", 28, 92, "issue")))
        if s == 40:
            emit_list(a, a.pend); a.pend = []
            att_setup(a)
            poll(a, "A", 28, 92, "check")
            a("s_barrier")
            a.stamp("p1 A seen")
            att_dma(a, 0)
            att_qload(a)
            att_dma(a, 1)
        p1_stage(a, s, "q", pre, post, budget=2)
    a("s_nop 7")
    a.stamp("p1 ffn1 mfma done")
    ffn1_epilogue(a)
    a.stamp("p1 end")

def second_unit(a, part):
    L = a.newlabel("su")
    a(f"s_cmp_lg_u32 s{sJ}, 15")
    a(f"s_cbranch_scc1 {L}")
    st = list(a.vm); lg = list(a.lg)
    if part == 0:
        a(f"s_add_u32 s{sT3}, s{sM}, 256")
        pp_setup(a, PP_LDS + 10240, (232, 233, 234, 235, 236))
        pp_dma(a, PP_LDS + 10240)
        a.vm = st + [("pp2", False), ("pp2", False)]
    else:
        pp_finish(a, 244, 248)
        a.vm = st + [("st1", False), ("st1", False)]
    a.lg = lg
    a.label(L)

SA, SB, OA, OB, PB, VB, KB, QA, QB = 8, 24, 40, 56, 72, 80, 96, 108, 114
vKA, vKB, vVA, vD4, vD1, vAT0, vAT1 = 1, 2, 3, 4, 5, 6, 7
vVB = vAT1
KVL = 0
KVR = 3
KV_C = 4 * KV_T
XCH = 12288

def att_dma_list(c):
    slot = KVL + (c % KVR) * 4 * KV_L
    return [("s", f"s_add_u32 m0, s{sKVM}, {slot}"),
            ("s", f"s_add_u32 s{sT0}, s{sKVG}, {c*KV_C}"),
            ("v", f"buffer_load_dwordx4 v{vD4}, {srd(S_WS)}, s{sT0} offen sc1 lds", f"kv{c}"),
            ("v", f"buffer_load_dword v{vD1}, {srd(S_WS)}, s{sT0} offen offset:1024 sc1 lds", f"kv{c}")]
def att_dma(a, c): emit_list(a, att_dma_list(c))

def att_setup(a):
    a.c("---- attention setup")
    a(f"s_lshl_b32 s{sH}, s{sXCD}, 2")
    a(f"s_add_u32 s{sH}, s{sH}, s{sHI}")
    a(f"s_mov_b32 s{sQB}, s{sLO}")
    a(f"s_lshr_b32 s{sKVM}, s{sWAVE}, 1")
    a(f"s_lshl_b32 s{sKVM}, s{sKVM}, 9")
    a(f"s_mul_i32 s{sT0}, s{sWAVE}, 1280")
    a(f"s_add_u32 s{sKVM}, s{sKVM}, s{sT0}")
    a(f"s_mul_i32 s{sKVG}, s{sH}, {KV_H}")
    a(f"s_add_u32 s{sKVG}, s{sKVG}, s{sT0}")
    a(f"s_add_u32 s{sKVG}, s{sKVG}, {KV_OFF}")
    a(f"s_lshr_b32 s{sKH}, s{sWAVE}, 2")
    a(f"v_lshlrev_b32 v{vD4}, 4, v0")
    a(f"v_lshlrev_b32 v{vD1}, 2, v0")
    a(f"s_mov_b32 s{sEXV}, 0x000fffff")
    a(f"s_mov_b32 s{sEXV+1}, 0x000fffff")

QL = 40960
def att_qload(a):
    a(f"s_lshl_b32 s{sT1}, s{sQB}, 3")
    a(f"s_add_u32 s{sT1}, s{sT1}, s{sWAVE}")
    a(f"s_mul_i32 s{sT1}, s{sT1}, 1280")
    a(f"s_mul_i32 s{sT3}, s{sH}, 81920")
    a(f"s_add_u32 s{sT1}, s{sT1}, s{sT3}")
    a(f"s_mul_i32 s{sT0}, s{sWAVE}, 1280")
    a(f"s_add_u32 m0, s{sT0}, {QL}")
    if QF_OFF: a(f"s_add_u32 s{sT1}, s{sT1}, {QF_OFF}")
    a("s_nop 0")
    a.vmem(f"buffer_load_dwordx4 v{vD4}, {srd(S_WS)}, s{sT1} offen sc1 lds", "kv0")
    a.vmem(f"buffer_load_dword v{vD1}, {srd(S_WS)}, s{sT1} offen offset:1024 sc1 lds", "kv0")

def att_qread(a):
    t0, t1 = SA, SA + 1
    a(f"v_and_b32 v{t0}, 9, v0")
    a(f"v_bfe_u32 v{t1}, v0, 1, 1")
    a(f"v_lshl_add_u32 v{t0}, v{t1}, 2, v{t0}")
    a(f"v_bfe_u32 v{t1}, v0, 2, 1")
    a(f"v_lshl_add_u32 v{t0}, v{t1}, 1, v{t0}")
    a(f"v_lshlrev_b32 v{t0}, 4, v{t0}")
    a(f"v_bfe_u32 v{t1}, v0, 4, 1")
    a(f"v_lshl_add_u32 v{t0}, v{t1}, 3, v{t0}")
    a(f"v_lshrrev_b32 v{t1}, 5, v0")
    a(f"v_lshl_add_u32 v{t1}, v{t1}, 8, v{t0}")
    a(f"s_and_b32 s{sT0}, s{sWAVE}, 3")
    a(f"s_lshl_b32 s{sT0}, s{sT0}, 1")
    a(f"s_add_u32 s{sT1}, s{sT0}, s{sKH}")
    a(f"s_xor_b32 s{sT2}, s{sT1}, 1")
    a(f"s_mul_i32 s{sT1}, s{sT1}, 1280")
    a(f"s_mul_i32 s{sT2}, s{sT2}, 1280")
    a(f"v_add_u32 v{SA+2}, s{sT1}, v{t0}")
    a(f"v_add_u32 v{SA+3}, s{sT1}, v{t1}")
    a(f"v_add_u32 v{SA+4}, s{sT2}, v{t0}")
    a(f"v_add_u32 v{SA+5}, s{sT2}, v{t1}")
def q_reads():
    out = []
    for k, Q in ((0, QA), (1, QB)):
        out += [("d", f"ds_read2st64_b64 {vr(Q,4)}, v{SA+3+2*k} offset0:{QL//512} offset1:{QL//512+1}", "q"),
                ("d", f"ds_read_b64 {vr(Q+4,2)}, v{SA+2+2*k} offset:{QL+1024}", "q")]
    return out

def att_setup2(a):
    a(f"s_mul_i32 s{sT0}, s{sKH}, {2*KV_L}")
    if KVL: a(f"s_add_u32 s{sT0}, s{sT0}, {KVL}")
    a(f"v_and_b32 v{vKB}, 31, v0")
    a(f"v_lshrrev_b32 v{vKA}, 5, v0")
    a(f"v_mul_u32_u24 v{PB}, 320, v{vKA}")
    a(f"v_lshl_add_u32 v{vVA}, v{vKB}, 4, v{PB}")
    a(f"v_add_u32 v{vVB}, 640, v{vVA}")
    a(f"v_cmp_gt_u32 vcc, 20, v{vKB}")
    a(f"v_mov_b32 v{PB}, 1280")
    if OPT["zrows"]:
        a(f"v_and_b32 v{PB+1}, 27, v{vKB}")
        a(f"v_cmp_eq_u32 s[{sSAVE}:{sSAVE+1}], 24, v{PB+1}")
        a(f"v_mov_b32 v{PB+1}, 1296")
        a("s_nop 0")
        a(f"v_cndmask_b32 v{PB}, v{PB+1}, v{PB}, s[{sSAVE}:{sSAVE+1}]")
    a(f"v_lshlrev_b32 v{vKB}, 3, v{vKB}")
    a(f"v_cndmask_b32 v{vVA}, v{PB}, v{vVA}, vcc")
    a(f"v_cndmask_b32 v{vVB}, v{PB}, v{vVB}, vcc")
    a(f"v_add_u32 v{vVA}, s{sT0}, v{vVA}")
    a(f"v_add_u32 v{vVB}, s{sT0}, v{vVB}")
    a(f"v_add_u32 v{vKB}, s{sT0}, v{vKB}")
    a(f"v_lshl_add_u32 v{vKA}, v{vKA}, 8, v{vKB}")
    for r in range(4): a(f"v_mov_b32 v{PB+4+r}, 0x3f803f80")
    a(f"v_min_u32 v{PB}, 11, v0")
    a(f"v_mul_u32_u24 v{PB}, {KV_L}, v{PB}")
    a.ds(f"ds_write_b128 v{PB}, {vr(PB+4,4)} offset:{KVL+2560}", "ones")
    if OPT["zrows"]:
        for r in range(4): a(f"v_mov_b32 v{OA+r}, 0")
        a.ds(f"ds_write_b128 v{PB}, {vr(OA,4)} offset:{KVL+2576}", "ones")
        if OPT["zk"]:
            a(f"v_mov_b32 v{PB}, {2576-1024}")
            a(f"v_add_u32 v{PB}, s{sT0}, v{PB}")
            a("s_mov_b32 exec_lo, 0")
            a(f"v_mov_b32 v{vKB}, v{PB}")
            a("s_mov_b32 exec_lo, -1")
    for r in range(16):
        a(f"v_mov_b32 v{OA+r}, 0")
        a(f"v_mov_b32 v{OB+r}, 0")

def k_reads(t):
    c, e = t >> 1, t & 1
    tp = (c % KVR) * 4 + e
    kb = KB + (t % 2) * 6
    return [("d", f"ds_read2st64_b64 {vr(kb,4)}, v{vKA} offset0:{6*tp} offset1:{6*tp+1}", f"k{t}"),
            ("d", f"ds_read_b64 {vr(kb+4,2)}, v{vKB} offset:{tp*KV_L+1024}", f"k{t}")]
def v_reads(t):
    c, e = t >> 1, t & 1
    tp = (c % KVR) * 4 + e
    vb = VB + (t % 2) * 8
    return [("d", f"ds_read_b128 {vr(vb+4*kk,4)}, v{(vVA, vVB)[kk]} offset:{tp*KV_L+1280}", f"v{t}") for kk in range(2)]
def qk8(t, S, Q):
    kb = KB + (t % 2) * 6
    return f"v_mfma_f32_32x32x8_bf16 {vr(S,16)}, {vr(kb+4,2)}, {vr(Q+4,2)}, 0"
def qk16(t, S, Q):
    kb = KB + (t % 2) * 6
    return f"v_mfma_f32_32x32x16_bf16 {vr(S,16)}, {vr(kb,4)}, {vr(Q,4)}, {vr(S,16)}"
def pv(t, O, kk, pbuf):
    vb = VB + (t % 2) * 8 + 4 * kk
    return f"v_mfma_f32_32x32x16_bf16 {vr(O,16)}, {vr(vb,4)}, {vr(PB+4*pbuf,4)}, {vr(O,16)}"

def att_group(a, S, pbuf, m1, m2, s1, s2):
    p = PB + 4 * pbuf
    if m1: a(m1)
    emit_list(a, s1)
    for r in range(4): a(f"v_exp_f32 v{S+r}, v{S+r}")
    a(f"v_cvt_pk_bf16_f32 v{p}, v{S}, v{S+1}")
    a(f"v_cvt_pk_bf16_f32 v{p+1}, v{S+2}, v{S+3}")
    if m2: a(m2)
    emit_list(a, s2)
    for r in range(4, 8): a(f"v_exp_f32 v{S+r}, v{S+r}")
    a(f"v_cvt_pk_bf16_f32 v{p+2}, v{S+4}, v{S+5}")
    a(f"v_cvt_pk_bf16_f32 v{p+3}, v{S+6}, v{S+7}")

def attention_main(a, extra=None, pre=None):
    NT = 32
    def bar(c):
        def f():
            if pre: pre(c)
            a.wait_vm(f"kv{c}", lg0=True)
            a("s_barrier")
            if c in (0, 1, 15) or OPT["fine"]: a.stamp(f"att chunk{c}")
            if c == 1: a.rstamp(60)
            if c == 15: a.rstamp(61)
        return ("f", f)
    att_qread(a)
    emit_list(a, [bar(0)])
    emit_list(a, q_reads() + k_reads(0) + v_reads(0) + k_reads(1))
    pp_dma(a, PP_LDS)
    att_dma(a, 2)
    a.wait_lg("q")
    a("s_mov_b32 exec_lo, 0")
    for Q in (QA, QB):
        a(f"v_mov_b32 v{Q+4}, 0")
        a(f"v_mov_b32 v{Q+5}, 0")
    a("s_mov_b32 exec_lo, -1")
    a.wait_lg("k0")
    a("s_nop 0")
    a(qk8(0, SA, QA))
    a("s_nop 9")
    a(qk16(0, SA, QA))
    a("s_nop 11")
    pend = []
    for t in range(NT):
        sl = {k: [] for k in ("g0", "a", "b", "c", "g2", "d", "e", "f")}
        if t + 1 < NT:
            vv = v_reads(t + 1)
            sl["a"].append(vv[0]); sl["c"].append(vv[1])
        sl["b"].append(("f", (lambda tt: lambda: a.wait_lg([f"v{tt}", f"k{tt+1}"]))(t)))
        if t + 2 < NT:
            kk = k_reads(t + 2)
            if t % 2 == 0:
                c = t // 2 + 1
                sl["e"].append(bar(c))
                if extra and c == 2: pend += extra(c)
                if c + 2 < 16: pend += att_dma_list(c + 2)
                if extra and c != 2: pend += extra(c)
            sl["e"].append(kk[0]); sl["f"].append(kk[1])
        if OPT["prio"]:
            if t % 2 == 1:
                sl["g0"].append(("s", "s_setprio 3")); sl["g2"].append(("s", "s_setprio 2"))
            else:
                sl["g0"].append(("s", "s_setprio 1")); sl["g2"].append(("s", "s_setprio 0"))
        order = ["f"] if t % 2 == 0 else ["g0", "a", "b", "c", "g2", "d", "e", "f"]
        while pend and order:
            k = order.pop(0)
            nops = sum(1 for it in pend if it[0] != "s")
            sl[k] += take(pend)
            if t % 2 == 1 and nops > len(order) + 1 and pend: sl[k] += take(pend)
        assert not (t % 2 == 1 and pend), pend
        last = (t == NT - 1)
        att_group(a, SA, 0, qk8(t, SB, QB), pv(t-1, OB, 1, 1) if t > 0 else None, sl["g0"], sl["a"])
        att_group(a, SA+8, 1, qk16(t, SB, QB), pv(t, OA, 0, 0), sl["b"], sl["c"])
        att_group(a, SB, 0, None if last else qk8(t+1, SA, QA), pv(t, OA, 1, 1), sl["g2"], sl["d"])
        att_group(a, SB+8, 1, None if last else qk16(t+1, SA, QA), pv(t, OB, 0, 0), sl["e"], sl["f"])
    a("s_nop 1")
    a(pv(NT-1, OB, 1, 1))
    if OPT["prio"]: a("s_setprio 0")

def att_finish_store(a):
    r = SB
    a(f"v_rcp_f32 v{r}, v{OA+12}")
    a("s_nop 0")
    for i in range(12): a(f"v_mul_f32 v{OA+i}, v{r}, v{OA+i}")
    for i in range(6): a(f"v_cvt_pk_bf16_f32 v{SA+i}, v{OA+2*i}, v{OA+2*i+1}")
    a.vmem(f"buffer_store_dwordx4 {vr(SA,4)}, v{vAT0}, {srd(S_WS)}, s{sT4} offen sc1", "sto")
    a("s_mov_b32 exec_hi, 0")
    a.vmem(f"buffer_store_dwordx2 {vr(SA+4,2)}, v{vAT1}, {srd(S_WS)}, s{sT5} offen sc1", "sto")
    a("s_mov_b32 exec_hi, -1")

def att_epilogue(a):
    a.c("---- attention epilogue")
    t0, t1 = vAT0, vAT1
    a(f"s_mul_i32 s{sT0}, s{sWAVE}, 3328")
    a(f"s_add_u32 s{sT0}, s{sT0}, {XCH}")
    a(f"v_add_u32 v{t0}, s{sT0}, v{vD4}")
    a(f"v_lshlrev_b32 v{PB}, 2, v0")
    a(f"v_add_u32 v{PB+1}, s{sT0}, v{PB}")
    a(f"s_xor_b32 s{sT1}, s{sWAVE}, 4")
    a(f"s_mul_i32 s{sT1}, s{sT1}, 3328")
    a(f"s_add_u32 s{sT1}, s{sT1}, {XCH}")
    a(f"v_add_u32 v{t1}, s{sT1}, v{vD4}")
    a(f"v_add_u32 v{PB+2}, s{sT1}, v{PB}")
    a("s_nop 3")
    for i in range(3): a.ds(f"ds_write_b128 v{t0}, {vr(OB+4*i,4)} offset:{1024*i}", "x")
    a.ds(f"ds_write_b32 v{PB+1}, v{OB+12} offset:3072", "x")
    a.lg_all()
    a("s_barrier")
    for i in range(3): a.ds(f"ds_read_b128 {vr(SA+4*i,4)}, v{t1} offset:{1024*i}", "x")
    a.ds(f"ds_read_b32 v{SA+12}, v{PB+2} offset:3072", "x")
    a(f"s_and_b32 s{sT0}, s{sWAVE}, 3")
    a(f"s_lshl_b32 s{sT0}, s{sT0}, 1")
    a(f"s_lshl_b32 s{sT1}, s{sQB}, 3")
    a(f"s_add_u32 s{sT0}, s{sT0}, s{sT1}")
    a(f"s_add_u32 s{sT0}, s{sT0}, s{sKH}")
    a(f"s_mul_i32 s{sT0}, s{sT0}, {2*AF_T}")
    a(f"s_add_u32 s{sT0}, s{sT0}, {AF_OFF}")
    a(f"s_lshl_b32 s{sT4}, s{sH}, 9")
    a(f"s_add_u32 s{sT4}, s{sT4}, s{sT0}")
    a(f"s_cmp_ge_u32 s{sH}, 20")
    a(f"s_cselect_b32 s{sT1}, 24576, 0")
    a(f"s_add_u32 s{sT4}, s{sT4}, s{sT1}")
    a(f"s_add_u32 s{sT4}, s{sT4}, {24*1024}")
    a(f"s_lshr_b32 s{sT5}, s{sH}, 1")
    a(f"s_lshl_b32 s{sT5}, s{sT5}, 8")
    a(f"s_and_b32 s{sT1}, s{sH}, 1")
    a(f"s_lshl_b32 s{sT1}, s{sT1}, 3")
    a(f"s_add_u32 s{sT5}, s{sT5}, s{sT1}")
    a(f"s_add_u32 s{sT5}, s{sT5}, s{sT0}")
    a(f"s_add_u32 s{sT5}, s{sT5}, {64*1024}")
    a(f"v_bfe_u32 v{t1}, v0, 4, 1")
    a(f"v_mul_u32_u24 v{t1}, {AF_T}, v{t1}")
    a(f"v_and_b32 v{t0}, 15, v0")
    a(f"v_lshl_add_u32 v{t1}, v{t0}, 4, v{t1}")
    a(f"v_lshrrev_b32 v{t0}, 5, v0")
    a(f"v_lshl_add_u32 v{t0}, v{t0}, 8, v{t1}")
    a.lg_all()
    for i in range(13): a(f"v_add_f32 v{OA+i}, v{OA+i}, v{SA+i}")
    chk = SB + 1
    a(f"v_mul_f32 v{chk}, 0, v{OA}")
    for i in range(1, 12): a(f"v_fma_f32 v{chk}, v{OA+i}, 0, v{chk}")
    a(f"v_add_f32 v{chk}, v{chk}, v{OA+12}")
    a(f"s_mov_b32 s{sT0}, {f32hex(2.0**40)}")
    a(f"v_cmp_le_f32 vcc, {f32hex(2.0**-24)}, v{chk}")
    a(f"v_cmp_ge_f32 s[{sSAVE}:{sSAVE+1}], s{sT0}, v{chk}")
    a("s_nop 1")
    a(f"s_and_b64 vcc, vcc, s[{sSAVE}:{sSAVE+1}]")
    a(f"s_cmp_eq_u64 vcc, -1")
    LF = a.newlabel("fast")
    a(f"s_cbranch_scc1 {LF}")
    att_fallback(a)
    a.label(LF)
    att_finish_store(a)

def att_fallback(a):
    a.c("---- fallback: exact row max, then shifted exponentials")
    NEG = OB; mx = PB + 7
    kb = KB; vb = VB
    save = (list(a.vm), list(a.lg))
    a.vm_all()
    for r in range(8): a(f"v_mov_b32 v{VB+r}, 0x3f803f80")
    a(f"s_mul_i32 s{sT0}, s{sKH}, {2*KV_L}")
    if KVL: a(f"s_add_u32 s{sT0}, s{sT0}, {KVL}")
    a(f"v_subrev_u32 v{vKA}, s{sT0}, v{vKA}")
    a(f"v_and_b32 v{vKB}, 31, v0")
    a(f"v_lshlrev_b32 v{vKB}, 3, v{vKB}")
    a(f"v_subrev_u32 v{vVA}, s{sT0}, v{vVA}")
    a(f"s_mul_i32 s{sT2}, s{sH}, {KV_H}")
    a(f"s_add_u32 s{sT2}, s{sT2}, {KV_OFF}")
    a(f"v_mov_b32 v{mx}, 0xff800000")
    L1 = a.newlabel("fb1"); L2 = a.newlabel("fb2")
    a(f"s_mov_b32 s{sT1}, 0")
    a.label(L1)
    a(f"s_add_u32 s{sT0}, s{sT2}, s{sT1}")
    a(f"buffer_load_dwordx2 {vr(kb,2)}, v{vKA}, {srd(S_WS)}, s{sT0} offen sc1")
    a(f"buffer_load_dwordx2 {vr(kb+2,2)}, v{vKA}, {srd(S_WS)}, s{sT0} offen offset:512 sc1")
    a(f"buffer_load_dwordx2 {vr(kb+4,2)}, v{vKB}, {srd(S_WS)}, s{sT0} offen offset:1024 sc1")
    a("s_waitcnt vmcnt(0)")
    a(qk8(0, SA, QA))
    a("s_nop 9")
    a(qk16(0, SA, QA))
    a("s_nop 11")
    for i in range(8): a(f"v_max3_f32 v{mx}, v{mx}, v{SA+2*i}, v{SA+2*i+1}")
    a(f"s_add_u32 s{sT1}, s{sT1}, {KV_T}")
    a(f"s_cmp_lt_u32 s{sT1}, {KV_H}")
    a(f"s_cbranch_scc1 {L1}")
    a(f"v_mov_b32 v{mx-1}, v{mx}")
    a("s_nop 1")
    a(f"v_permlane32_swap_b32 v{mx}, v{mx-1}")
    a("s_nop 1")
    a(f"v_max_f32 v{mx}, v{mx}, v{mx-1}")
    for i in range(16):
        a(f"v_sub_f32 v{NEG+i}, 0, v{mx}")
        a(f"v_mov_b32 v{OA+i}, 0")
    a(f"s_mov_b32 s{sT1}, 0")
    a.label(L2)
    a(f"s_add_u32 s{sT0}, s{sT2}, s{sT1}")
    a(f"buffer_load_dwordx2 {vr(kb,2)}, v{vKA}, {srd(S_WS)}, s{sT0} offen sc1")
    a(f"buffer_load_dwordx2 {vr(kb+2,2)}, v{vKA}, {srd(S_WS)}, s{sT0} offen offset:512 sc1")
    a(f"buffer_load_dwordx2 {vr(kb+4,2)}, v{vKB}, {srd(S_WS)}, s{sT0} offen offset:1024 sc1")
    a(f"s_mov_b64 exec, s[{sEXV}:{sEXV+1}]")
    a(f"buffer_load_dwordx4 {vr(vb,4)}, v{vVA}, {srd(S_WS)}, s{sT0} offen offset:1280 sc1")
    a(f"buffer_load_dwordx4 {vr(vb+4,4)}, v{vVA}, {srd(S_WS)}, s{sT0} offen offset:1920 sc1")
    a("s_mov_b64 exec, -1")
    a("s_waitcnt vmcnt(0)")
    a(f"v_mfma_f32_32x32x8_bf16 {vr(SA,16)}, {vr(kb+4,2)}, {vr(QA+4,2)}, {vr(NEG,16)}")
    a("s_nop 9")
    a(qk16(0, SA, QA))
    a("s_nop 11")
    for i in range(16): a(f"v_exp_f32 v{SA+i}, v{SA+i}")
    a("s_nop 0")
    for i in range(8): a(f"v_cvt_pk_bf16_f32 v{PB+i}, v{SA+2*i}, v{SA+2*i+1}")
    a("s_nop 1")
    a(pv(0, OA, 0, 0))
    a(pv(0, OA, 1, 1))
    a(f"s_add_u32 s{sT1}, s{sT1}, {KV_T}")
    a(f"s_cmp_lt_u32 s{sT1}, {KV_H}")
    a(f"s_cbranch_scc1 {L2}")
    a("s_nop 11")
    a.vm, a.lg = save

AC1, AC2, TW = 8, 28, 48
vWL, vWH, vG, vTT0, vTT1 = 1, 2, 3, 6, 7
vB2 = 88
TSLOT = [40960, 81920, 122880, 0]
NS = 34
def HR(s): return 120 + 4*s

def tail_setup(a):
    a.c("---- tail setup")
    a(f"s_lshr_b32 s{sRB}, s{sXCD}, 1")
    a(f"s_lshl_b32 s{sRB}, s{sRB}, 3")
    a(f"s_add_u32 s{sRB}, s{sRB}, s{sLO}")
    a(f"s_and_b32 s{sCG}, s{sXCD}, 1")
    a(f"s_lshl_b32 s{sCG}, s{sCG}, 2")
    a(f"s_add_u32 s{sCG}, s{sCG}, s{sHI}")
    a(f"s_lshr_b32 s{sKH}, s{sWAVE}, 2")
    a(f"s_and_b32 s{sT0}, s{sWAVE}, 3")
    a(f"s_mul_i32 s{sWG}, s{sCG}, 68")
    a(f"s_mul_i32 s{sT1}, s{sKH}, {NS}")
    a(f"s_add_u32 s{sWG}, s{sWG}, s{sT1}")
    a(f"s_add_u32 s{sWG}, s{sWG}, s{sT0}")
    a(f"s_mul_i32 s{sWG}, s{sWG}, 5120")
    a(f"s_add_u32 s{sWG}, s{sWG}, {WF_OFF}")
    a(f"s_lshl_b32 s{sAG}, s{sRB}, 2")
    a(f"s_add_u32 s{sAG}, s{sAG}, s{sT0}")
    a(f"s_mul_i32 s{sAG}, s{sAG}, {AF_T}")
    a(f"s_lshl_b32 s{sT1}, s{sT1}, 10")
    a(f"s_add_u32 s{sAG}, s{sAG}, s{sT1}")
    a(f"s_add_u32 s{sAG}, s{sAG}, {AF_OFF}")
    a(f"s_mul_i32 s{sTWM}, s{sWAVE}, 5120")

def tail_dma_list(u, sreg=None):
    sr = sreg if sreg is not None else sT0
    d = (u != 8)
    out = [("s", f"s_add_u32 m0, s{sTWM}, {TSLOT[u%4]}"), ("s", f"s_add_u32 s{sr}, s{sWG}, {u*20480}")]
    for e in range(4):
        off = f" offset:{e*1024}" if e else ""
        out.append(("v", f"buffer_load_dwordx4 v{vD4}, {srd(S_WS)}, s{sr} offen{off} sc1 lds", f"w{u}", d))
    out += [("s", f"s_add_u32 m0, s{sTWM}, {TSLOT[u%4]+4096}"), ("s", f"s_add_u32 s{sr}, s{sWG}, {u*20480+4096}")]
    out.append(("v", f"buffer_load_dwordx4 v{vD4}, {srd(S_WS)}, s{sr} offen sc1 lds", f"w{u}", d))
    return out
def tail_dma(a, u):
    L = None
    if u == 8:
        L = a.newlabel("nod")
        a(f"s_bitcmp1_b32 s{sWAVE}, 1")
        a(f"s_cbranch_scc1 {L}")
    emit_list(a, tail_dma_list(u))
    if L: a.label(L)

def tail_aload_list(s0, n, sreg=None):
    sr = sreg if sreg is not None else sT0
    out = [("s", f"s_add_u32 s{sr}, s{sAG}, {(s0//4)*4096}")]
    for s in range(s0, s0+n):
        assert s // 4 == s0 // 4
        off = f" offset:{(s%4)*1024}" if s % 4 else ""
        out.append(("v", f"buffer_load_dwordx4 {vr(HR(s),4)}, v{vD4}, {srd(S_WS)}, s{sr} offen{off} sc1", f"a{s}"))
    return out

def tail_small_loads(a):
    mk_srd(a, S_M1, P_B2, 1280)
    a(f"v_lshrrev_b32 v{vTT0}, 4, v0")
    a(f"v_lshlrev_b32 v{vTT1}, 3, v{vTT0}")
    a(f"v_lshlrev_b32 v{vTT0}, 4, v{vTT0}")
    a(f"s_mul_i32 s{sT0}, s{sCG}, 160")
    a.vmem(f"buffer_load_dwordx4 {vr(vB2,4)}, v{vTT0}, {srd(S_M1)}, s{sT0} offen", "b2")
    a.vmem(f"buffer_load_dwordx4 {vr(vB2+4,4)}, v{vTT0}, {srd(S_M1)}, s{sT0} offen offset:64", "b2")
    a.vmem(f"buffer_load_dwordx2 {vr(vB2+8,2)}, v{vTT1}, {srd(S_M1)}, s{sT0} offen offset:128", "b2")
    a(f"s_and_b32 s{sT0}, s{sWAVE}, 3")
    a(f"s_lshl_b32 s{sT1}, s{sRB}, 2")
    a(f"s_add_u32 s{sT0}, s{sT0}, s{sT1}")
    a(f"s_lshl_b32 s{sT0}, s{sT0}, 6")
    a(f"s_add_u32 s{sT0}, s{sT0}, {G_OFF}")
    a(f"v_and_b32 v{vG}, 15, v0")
    a(f"v_lshlrev_b32 v{vG}, 2, v{vG}")
    a.vmem(f"buffer_load_dword v{vG}, v{vG}, {srd(S_WS)}, s{sT0} offen sc1", "g")

def tail_reads(s):
    u = s // 4
    base = TSLOT[u % 4]
    reg = vWL if base < 81920 else vWH
    base = base if base < 81920 else base - 81920
    return [f"ds_read_b128 {vr(TW+(s%2)*20+4*T,4)}, v{reg} offset:{base+(s%4)*5120+T*1024}" for T in range(5)]
def tail_mfmas(s):
    acc = AC1 if s < 24 else AC2
    out = []
    for T in range(5):
        d = vr(acc+4*T, 4)
        cin = "0" if s in (0, 24) else d
        out.append(f"v_mfma_f32_16x16x32_bf16 {d}, {vr(TW+(s%2)*20+4*T,4)}, {vr(HR(s),4)}, {cin}")
    return out

def tail_main(a, issued, pre=None, post=None):
    pre = pre or {}; post = post or {}
    a(f"s_mul_i32 s{sT0}, s{sKH}, 20480")
    a(f"v_add_u32 v{vWL}, s{sT0}, v{vD4}")
    a(f"v_add_u32 v{vWH}, 81920, v{vWL}")
    pend = []
    for s in range(NS + 1):
        if s % 4 == 0 and s < NS:
            u = s // 4
            if u in pre: pre[u]()
            a.wait_vm(f"w{u}", lg0=True)
            a("s_barrier")
            a.stamp(f"tail chunk{u}")
            if u in post: pend += post[u]()
            if u + 3 < 9 and u + 3 >= issued:
                if u + 3 == 8: pend.append(("f", lambda: tail_dma(a, 8)))
                else: pend += tail_dma_list(u + 3)
        else:
            a.lg_all()
        rd = tail_reads(s) if s < NS else []
        mf = tail_mfmas(s-1) if s > 0 else []
        if s > 0: a.wait_vm(f"a{s-1}")
        for i in range(5):
            if i < len(mf): a(mf[i])
            for r in rd[2*i:2*i+2]: a.ds(r, f"t{s}")
            if i >= 3 and pend:
                n = 1
                while n < len(pend) and pend[n-1][0] == "s": n += 1
                emit_list(a, pend[:n]); pend = pend[n:]
    assert not pend
    a.c("---- mix, exchange, store")
    a.wait_vm(["g", "b2"])
    omg = vWH
    a(f"v_sub_f32 v{omg}, 1.0, v{vG}")
    a(f"v_cvt_pk_bf16_f32 v{omg}, v{omg}, v{omg}")
    a(f"v_and_b32 v{omg}, 0xffff0000, v{omg}")
    a(f"s_mul_i32 s{sT1}, s{sWAVE}, 3072")
    a(f"v_add_u32 v{vTT0}, s{sT1}, v{vD4}")
    a(f"s_xor_b32 s{sT1}, s{sWAVE}, 4")
    a(f"s_mul_i32 s{sT1}, s{sT1}, 3072")
    a(f"v_add_u32 v{vTT1}, s{sT1}, v{vD4}")
    for i in range(20): a(f"v_mul_f32 v{AC1+i}, v{omg}, v{AC1+i}")
    for i in range(20): a(f"v_fma_f32 v{AC1+i}, v{vG}, v{AC2+i}, v{AC1+i}")
    XB = 40960 + 40960
    a(f"s_and_b32 s{sT0}, s{sWAVE}, 3")
    a(f"s_lshl_b32 s{sT1}, s{sRB}, 2")
    a(f"s_add_u32 s{sT0}, s{sT0}, s{sT1}")
    a(f"s_mul_i32 s{sT0}, s{sT0}, {16*1280}")
    a(f"s_mul_i32 s{sT1}, s{sCG}, 160")
    a(f"s_add_u32 s{sT0}, s{sT0}, s{sT1}")
    a(f"v_add_u32 v{vTT0}, {XB}, v{vTT0}")
    a(f"v_add_u32 v{vTT1}, {XB}, v{vTT1}")
    LB = a.newlabel("mixB"); LE = a.newlabel("mixE")
    a(f"s_cmp_eq_u32 s{sKH}, 1")
    a(f"s_cbranch_scc1 {LB}")
    for own, send in (((0, 1), (2, 3, 4)), ((2, 3, 4), (0, 1))):
        for k, T in enumerate(send): a.ds(f"ds_write_b128 v{vTT0}, {vr(AC1+4*T,4)} offset:{k*1024}", "x")
        a(f"v_and_b32 v{vWL}, 15, v0")
        a(f"v_mul_u32_u24 v{vWL}, 1280, v{vWL}")
        a(f"v_lshrrev_b32 v{vD4}, 4, v0")
        a(f"v_lshl_add_u32 v{vG}, v{vD4}, 3, v{vWL}")
        a(f"v_lshl_add_u32 v{vWL}, v{vD4}, 4, v{vWL}")
        for T in own:
            for r in range(4):
                src = vB2 + 2*T + r//2
                tmp = TW + T*4 + r
                if r % 2 == 0: a(f"v_lshlrev_b32 v{tmp}, 16, v{src}")
                else: a(f"v_and_b32 v{tmp}, 0xffff0000, v{src}")
                a(f"v_fma_f32 v{AC1+4*T+r}, v{omg}, v{tmp}, v{AC1+4*T+r}")
        a.lg_all()
        a("s_barrier")
        for k, T in enumerate(own): a.ds(f"ds_read_b128 {vr(TW+4*T,4)}, v{vTT1} offset:{k*1024}", f"x{T}")
        for T in own:
            a.wait_lg(f"x{T}")
            for r in range(4): a(f"v_add_f32 v{AC1+4*T+r}, v{AC1+4*T+r}, v{TW+4*T+r}")
            o = TW + 20 + 2*T
            a(f"v_cvt_pk_bf16_f32 v{o}, v{AC1+4*T}, v{AC1+4*T+1}")
            a(f"v_cvt_pk_bf16_f32 v{o+1}, v{AC1+4*T+2}, v{AC1+4*T+3}")
            if T == 1: a(f"buffer_store_dwordx4 {vr(TW+20,4)}, v{vWL}, {srd(S_OUT)}, s{sT0} offen" + OUTF())
            if T == 3: a(f"buffer_store_dwordx4 {vr(TW+24,4)}, v{vWL}, {srd(S_OUT)}, s{sT0} offen offset:64" + OUTF())
            if T == 4: a(f"buffer_store_dwordx2 {vr(TW+28,2)}, v{vG}, {srd(S_OUT)}, s{sT0} offen offset:128" + OUTF())
        if own == (0, 1):
            a(f"s_branch {LE}")
            a.label(LB)
    a.label(LE)
    a.stamp("tail end")


def att_extra(a):
    pieces = []
    for u in range(3):
        for e in range(5):
            pieces.append([("s", f"s_add_u32 m0, s{sTWM}, {TSLOT[u] + e*1024}"),
                           ("s", f"s_add_u32 s{sDM2}, s{sWG}, {u*20480 + e*1024}"),
                           ("v", f"buffer_load_dwordx4 v{vD4}, {srd(S_WS)}, s{sDM2} offen sc1 lds", f"w{u}")])
    def extra(c):
        out = []
        if c == 1 and OPT["hlate"]: out += h_store(0) + h_store(1) + h_store(2)
        if c == 2: out.append(("f", lambda: (pp_finish(a, 244, 248), second_unit(a, 0))))
        if c == 4: out.append(("f", lambda: second_unit(a, 1)))
        if c == 6: out.append(("f", lambda: flag_set(a, 1, 120)))
        if c == 7: out.append(("f", lambda: poll(a, "B", 120, 122, "issue")))
        if 8 <= c < 16:
            i = c - 8
            if i % 4 == 0: out += tail_aload_list(3*i, 3, sDM)
            elif i % 4 == 1: out += tail_aload_list(3*i, 1, sDM) + tail_aload_list(3*i+1, 2, sDM)
            elif i % 4 == 2: out += tail_aload_list(3*i, 2, sDM) + tail_aload_list(3*i+2, 1, sDM)
            else: out += tail_aload_list(3*i, 3, sDM)
            for _ in range(2):
                if pieces: out += pieces.pop(0)
            if c == 15: out.append(("f", lambda: tail_warm(a)))
        return out
    def pre(c):
        if c == 6: wait_st(a, "st1")
        if c == 8: poll(a, "B", 120, 122, "check")
    return extra, pre

def tail_warm(a):
    t = 250
    a(f"s_lshl_b32 s{sT0}, s{sLO}, 3")
    a(f"s_add_u32 s{sT0}, s{sT0}, s{sWAVE}")
    a(f"s_and_b32 s{sT1}, s{sT0}, 31")
    a(f"s_mul_i32 s{sT1}, s{sT1}, {28*128}")
    a(f"s_lshr_b32 s{sT0}, s{sT0}, 5")
    a(f"s_mul_i32 s{sT0}, s{sT0}, {NS*5120}")
    a(f"s_add_u32 s{sT0}, s{sT0}, s{sT1}")
    a(f"s_mul_i32 s{sT1}, s{sCG}, {68*5120}")
    a(f"s_add_u32 s{sT0}, s{sT0}, s{sT1}")
    a(f"s_add_u32 s{sT0}, s{sT0}, {WF_OFF + 12*5120}")
    a(f"v_min_u32 v{t}, 27, v0")
    a(f"v_lshlrev_b32 v{t}, 7, v{t}")
    a.vmem(f"buffer_load_dword v{t}, v{t}, {srd(S_WS)}, s{sT0} offen sc1", "warm")

def mega(a):
    phase1(a)
    a.stamp_move(255)
    tail_setup(a)
    a(f"s_mov_b32 s{sT3}, s2")
    pp_setup(a, PP_LDS, (232, 233, 234, 235, 236))
    att_setup2(a)
    extra, pre = att_extra(a)
    attention_main(a, extra, pre)
    a.stamp("att main done")
    att_epilogue(a)
    a.stamp("att end")
    a.stamp_move(110)
    tail_small_loads(a)
    pre = {1: lambda: wait_st(a, "sto"), 4: lambda: poll(a, "C", 98, 100, "check")}
    post = {1: lambda: [("f", lambda: flag_set(a, 2, 98))],
            3: lambda: [("f", lambda: poll(a, "C", 98, 100, "issue"))],
            4: lambda: tail_aload_list(24, 4, sDM) + tail_aload_list(28, 4, sDM) + tail_aload_list(32, 2, sDM)}
    tail_main(a, 3, pre, post)

def dbg_out(a):
    want = ["setup done", "p1 chunk0", "p1 chunk1", "p1 chunk5", "p1 chunk10", "p1 chunk14", "p1 A seen", "att chunk0", "att chunk1", "att chunk15", "att end", "tail chunk1", "tail chunk6", "tail end"]
    r = a.stampreg
    def body():
        a.rstamp(63)
        a(f"v_readlane_b32 s97, v{r}, 62")
        a(f"s_not_b32 s97, s97")
        a(f"v_mov_b32 v1, s98")
        a(f"v_writelane_b32 v1, s97, 1")
        a(f"v_lshlrev_b32 v2, 2, v0")
        a("s_mov_b64 exec, 3")
        a(f"buffer_atomic_umax v1, v2, {srd(S_DBG)}, 0 offen sc1")
        a("s_mov_b64 exec, -1")
        L = a.newlabel("dbg")
        a("s_cmp_lg_u32 s2, 5")
        a(f"s_cbranch_scc1 {L}")
        a(f"v_readlane_b32 s97, v{r}, 0")
        for k, n in enumerate(want):
            a(f"v_readlane_b32 s98, v{r}, {a.stampnames.index(n)}")
            a("s_nop 3")
            a("s_sub_u32 s98, s98, s97")
            a(f"v_writelane_b32 v1, s98, {2+k}")
        a("s_mov_b64 exec, 0xfffc")
        a(f"buffer_store_dword v1, v2, {srd(S_DBG)}, 0 offen sc1")
        a("s_mov_b64 exec, -1")
        a.label(L)
    wave0(a, body)

HEADER = open("cdna_kernels/" + NAME + ".s.ref").read().split("; Override launch")[0]

def build(fn, stamps=False):
    a = Asm()
    a.stamps = stamps
    name = NAME + "_kernel"
    a.stampreg = 17; a.nstamp = 0; a.stampnames = []; a.stampbase = STAMP_OFF
    a('.amdgcn_target "amdgcn-amd-amdhsa--gfx950"')
    a(".text")
    a(f".globl {name}")
    a(".p2align 8")
    a(f".type {name},@function")
    a.label(name)
    if OPT.get("padto"):
        a("s_memrealtime s[100:101]")
        a("s_waitcnt lgkmcnt(0)")
    prologue(a)
    a.rstamp(62)
    mega(a)
    if OPT.get("padto"):
        a.label("L_pad")
        a("s_memrealtime s[98:99]")
        a("s_waitcnt lgkmcnt(0)")
        a("s_sub_u32 s98, s98, s100")
        a(f"s_cmp_lt_u32 s98, {OPT['padto']}")
        a("s_cbranch_scc1 L_pad")
    if OPT.get("dbg"): dbg_out(a)
    a.stamp_flush(srd(S_WS), a.stampbase)
    a.label("L_exit")
    a("s_endpgm")
    a('.section .rodata,"a"')
    a(".p2align 6")
    a(f".amdhsa_kernel {name}")
    a(".amdhsa_next_free_vgpr 256")
    a(".amdhsa_next_free_sgpr 102")
    a(".amdhsa_accum_offset 256")
    a(".amdhsa_group_segment_fixed_size 0")
    a(".amdhsa_kernarg_size 96")
    a(".amdhsa_user_sgpr_count 2")
    a(".amdhsa_user_sgpr_kernarg_segment_ptr 1")
    a(".amdhsa_system_sgpr_workgroup_id_x 1")
    a(".end_amdhsa_kernel")
    for e in check_hazards(a.lines): print("HAZARD", e)
    if stamps: json.dump({"mega": a.stampnames}, open(fn + ".names", "w"))
    open(fn, "w").write(HEADER + "; @launch grid=(256,1,1) block=(512,1,1) lds=163840\n" + a.text())

if __name__ == "__main__":
    for o in sys.argv[2:]:
        if o.startswith("no"): OPT[o[2:]] = False
        elif "=" in o: k, v = o.split("="); OPT[k] = int(v)
        else: OPT[o] = True
    build(sys.argv[1], stamps=OPT.get("stamps", False))
```
